```python
import torch

def _softmax(x, axis=-1):
    return torch.softmax(x, dim=axis)
def _gelu(x):
    return torch.nn.functional.gelu(x, approximate="tanh")
def _silu(x):
    return torch.nn.functional.silu(x)
def _sigmoid(x):
    return torch.sigmoid(x)
def _layernorm(x, axis=-1, eps=1e-5):
    m = x.mean(dim=axis, keepdim=True)
    v = x.var(dim=axis, keepdim=True, unbiased=False)
    return (x - m) / torch.sqrt(v + eps)
def _scatter_add(tgt, idx, src, axis=0):
    return tgt.clone().index_add_(axis, idx, src)
def _segment_sum(src, seg, n):
    out = torch.zeros((n,) + src.shape[1:], dtype=src.dtype)
    return out.index_add_(0, seg, src)
def _pad(x, pw):
    flat = tuple(v for pair in reversed(pw) for v in pair)
    return torch.nn.functional.pad(x, flat)

kernel_name = 'gated_mix__gqa_block_cached__compressed_kv_cla__decode'

def setup_inputs():

    _w = (lambda a: (lambda t: t.to(torch.bfloat16) if t.is_floating_point() else t)(torch.as_tensor(a)))
    def _A_setup():
        B, Sq, D = 2, 1, 576
        Hq, Hkv, Sk, Dh = 32, 16, 4096, 128
        assert Hq % Hkv == 0, (Hq, Hkv)
        return {
            "x": _w((lambda *s: torch.randn(*s, dtype=torch.bfloat16) * 0.05)(B, Sq, D)),
            "k_cache": _w((lambda *s: torch.randn(*s, dtype=torch.bfloat16) * 6.4)(B, Hkv, Sk, Dh)),
            "v_cache": _w((lambda *s: torch.randn(*s, dtype=torch.bfloat16) * 0.8)(B, Hkv, Sk, Dh)),
            "wq": _w((lambda *s: torch.randn(*s, dtype=torch.bfloat16) * 6.4)(D, Hq * Dh) * (D ** -0.5)),
            "wo": _w((lambda *s: torch.randn(*s, dtype=torch.bfloat16) * 0.8)(Hq * Dh, D) * ((Hq * Dh) ** -0.5)),
        }
    _A_in = _A_setup()

    def _B_setup():
        B, H, Sq, Sk, D, M = 2, 32, 1, 4096, 128, 576
        Dc = 4 * D
        return {
            "x": _w((lambda *s: torch.randn(*s, dtype=torch.bfloat16) * 0.05)(B, Sq, M)),
            "c_kv": _w((lambda *s: torch.randn(*s, dtype=torch.bfloat16) * 0.8)(B, Sk, Dc)),
            "w_q": _w((lambda *s: torch.randn(*s, dtype=torch.bfloat16) * 6.4)(M, H, D) * (M ** -0.5)),
            "w_uk": _w((lambda *s: torch.randn(*s, dtype=torch.bfloat16) * 6.4)(Dc, H, D) * (Dc ** -0.5)),
            "w_uv": _w((lambda *s: torch.randn(*s, dtype=torch.bfloat16) * 0.8)(Dc, H, D) * (Dc ** -0.5)),
            "w_o": _w((lambda *s: torch.randn(*s, dtype=torch.bfloat16) * 0.8)(H, D, M) * ((H * D) ** -0.5)),
        }
    _B_in = _B_setup()

    return {
        "A_x": _A_in["x"],
        "A_k_cache": _A_in["k_cache"],
        "A_v_cache": _A_in["v_cache"],
        "A_wq": _A_in["wq"],
        "A_wo": _A_in["wo"],
        "B_x": _B_in["x"],
        "B_c_kv": _B_in["c_kv"],
        "B_w_q": _B_in["w_q"],
        "B_w_uk": _B_in["w_uk"],
        "B_w_uv": _B_in["w_uv"],
        "B_w_o": _B_in["w_o"],
        "gate_w": _w((lambda *s: torch.randn(*s, dtype=torch.bfloat16) * 0.05)(576) * 16.0),
    }

def reference(A_x, A_k_cache, A_v_cache, A_wq, A_wo, B_x, B_c_kv, B_w_q, B_w_uk, B_w_uv, B_w_o, gate_w):
    def _A_ref(x, k_cache, v_cache, wq, wo):
        B, Sq, D = x.shape
        Hq, Dh = 32, 128
        Hkv = k_cache.shape[1]
        rep = Hq // Hkv
        q = (lambda x, *d: x.permute(*d))((x @ wq).reshape(B, Sq, Hq, Dh), 0, 2, 1, 3)
        k = (lambda x, n, axis: torch.repeat_interleave(x, n, dim=axis))(k_cache, rep, axis=1)
        v = (lambda x, n, axis: torch.repeat_interleave(x, n, dim=axis))(v_cache, rep, axis=1)
        scores = torch.einsum("bhqd,bhkd->bhqk", q, k) * (Dh ** -0.5)
        p = _softmax(scores, axis=-1)
        o = torch.einsum("bhqk,bhkd->bhqd", p, v)
        return (lambda x, *d: x.permute(*d))(o, 0, 2, 1, 3).reshape(B, Sq, Hq * Dh) @ wo

    def _B_ref(x, c_kv, w_q, w_uk, w_uv, w_o):
        B, Sq, M = x.shape[0], x.shape[1], x.shape[2]
        Sk = c_kv.shape[1]
        H, D = w_q.shape[1], w_q.shape[2]
        q = torch.einsum("bqm,mhd->bhqd", x, w_q)
        k = torch.einsum("bkc,chd->bhkd", c_kv, w_uk)
        v = torch.einsum("bkc,chd->bhkd", c_kv, w_uv)
        scores = torch.einsum("bhqd,bhkd->bhqk", q, k) * (D ** -0.5)
        off = Sk - Sq
        qi = torch.arange(Sq)[:, None]
        kj = torch.arange(Sk)[None, :]
        cmask = kj <= (qi + off)
        scores = torch.where(cmask[None, None], scores, -1e9)
        p = _softmax(scores, axis=-1)
        ctx = torch.einsum("bhqk,bhkd->bhqd", p, v)
        return torch.einsum("bhqd,hdm->bqm", ctx, w_o)

    x = A_x
    g = _sigmoid((x * gate_w).sum(-1, keepdims=True))
    a = _A_ref(x, A_k_cache, A_v_cache, A_wq, A_wo)
    b = _B_ref(x, B_c_kv, B_w_q, B_w_uk, B_w_uv, B_w_o)
    return g * a + (1 - g) * b
```

```python
import sys, math

NAME = "gated_mix__gqa_block_cached__compressed_kv_cla__decode_kernel"

WS_QABS = 0x0
WS_BSTAT = 0x10000
WS_ASTAT = 0x14000
WS_APART = 0x18000
WS_YA = 0x48000
WS_YB = 0x60000
WS_BPART = 0x100000

CEXP = (128 ** -0.5) * math.log2(math.e)
SPIN_LIMIT = 1 << 20

P_AX, P_K, P_V, P_WQ, P_WO, P_BX, P_CKV, P_BWQ, P_WUK, P_WUV, P_BWO, P_GW, P_OUT, P_DBG, P_WS = [8 + 2 * i for i in range(15)]


def f32hex(x):
    import struct
    return "0x%08x" % struct.unpack("<I", struct.pack("<f", x))[0]


class G:
    def __init__(self):
        self.L = []
        self.nlabel = 0

    def __call__(self, s):
        self.L.append("    " + s)

    def label(self, name):
        self.L.append(name + ":")

    def newlabel(self, p="L"):
        self.nlabel += 1
        return "%s_%d" % (p, self.nlabel)

    def c(self, s):
        self.L.append("    ; " + s)


def v(n, cnt=1):
    return "v%d" % n if cnt == 1 else "v[%d:%d]" % (n, n + cnt - 1)


def s(n, cnt=1):
    return "s%d" % n if cnt == 1 else "s[%d:%d]" % (n, n + cnt - 1)


def sp(n):
    return s(n, 2)


g = G()

NT = " nt"


def barrier():
    g("s_waitcnt lgkmcnt(0)")
    g("s_barrier")


def allreduce16(op, reg, tmp=None):
    for r in (8, 4, 2, 1):
        g("s_nop 1")
        g("%s_dpp %s, %s, %s row_ror:%d row_mask:0xf bank_mask:0xf" % (op, v(reg), v(reg), v(reg), r))


def xreduce_16_32(op, reg, tmp):
    for ins in ("v_permlane16_swap_b32", "v_permlane32_swap_b32"):
        g("v_mov_b32 %s, %s" % (v(tmp), v(reg)))
        g("s_nop 1")
        g("%s %s, %s" % (ins, v(reg), v(tmp)))
        g("s_nop 1")
        g("%s %s, %s, %s" % (op, v(reg), v(reg), v(tmp)))


def poll_flags(vaddr, vtmp, phase, nlanes, scnt):
    lp = g.newlabel("POLL")
    le = g.newlabel("POLLX")
    g("s_mov_b32 %s, 0" % s(scnt))
    if nlanes < 64:
        g("s_mov_b64 exec, 0x%x" % ((1 << nlanes) - 1))
    g.label(lp)
    g("global_load_ubyte %s, %s, %s sc1" % (v(vtmp), v(vaddr), sp(P_DBG)))
    g("s_waitcnt vmcnt(0)")
    g("v_cmp_gt_u32 vcc, %d, %s" % (phase, v(vtmp)))
    g("s_nop 1")
    g("s_cmp_eq_u64 vcc, 0")
    g("s_cbranch_scc1 %s" % le)
    g("s_add_u32 %s, %s, 1" % (s(scnt), s(scnt)))
    g("s_cmp_gt_u32 %s, %d" % (s(scnt), SPIN_LIMIT))
    g("s_cbranch_scc1 %s" % le)
    g("s_sleep 1")
    g("s_branch %s" % lp)
    g.label(le)
    g("s_mov_b64 exec, -1")


def set_flag(sbyte, phase, vt0, vt1):
    g("v_mov_b32 %s, %s" % (v(vt0), s(sbyte)))
    g("v_mov_b32 %s, %d" % (v(vt1), phase))
    g("s_mov_b64 exec, 1")
    g("global_store_byte %s, %s, %s sc1" % (v(vt0), v(vt1), sp(P_DBG)))
    g("s_mov_b64 exec, -1")


g.L.append("; @launch grid=(256,1,1) block=(512,1,1) lds=163840")
g.L.append('.amdgcn_target "amdgcn-amd-amdhsa--gfx950"')
g.L.append(".text")
g.L.append(".globl %s" % NAME)
g.L.append(".p2align 8")
g.L.append(".type %s,@function" % NAME)
g.label(NAME)
g("s_cmp_ge_u32 s2, 256")
g("s_cbranch_scc1 L_END")
g("s_load_dwordx16 s[8:23], s[0:1], 0")
g("s_load_dwordx8 s[24:31], s[0:1], 64")
g("s_load_dwordx4 s[32:35], s[0:1], 96")
g("s_load_dwordx2 s[36:37], s[0:1], 112")
S_WAVE = 40
S_SELLO, S_SELHI = 41, 42
S_CEXP = 43
g("v_lshrrev_b32 v1, 6, v0")
g("v_and_b32 v2, 63, v0")
g("s_nop 0")
g("v_readfirstlane_b32 %s, v1" % s(S_WAVE))
g("s_mov_b32 %s, 0x05040100" % s(S_SELLO))
g("s_mov_b32 %s, 0x07060302" % s(S_SELHI))
g("s_mov_b32 %s, %s" % (s(S_CEXP), f32hex(CEXP)))
g("s_waitcnt lgkmcnt(0)")
g("s_cmp_lt_u32 s2, 64")
g("s_cbranch_scc1 L_ROLE_B")

VL = 2

S_KVH, S_B, S_SPLIT, S_PAIR, S_START, S_CNT = 44, 45, 46, 47, 48, 49
S_T0, S_T1, S_T2, S_T3 = 50, 51, 52, 53
S_MASK5 = 54
S_U5 = 55
S_FLAGB = 56
BUF0, BUF1 = 64, 160
QF = 12
QACC = 28
SS = 36

LA_QRED = 0
LA_QBF = 16384
LA_PBUF = 17408
LA_STAT = 20480
LA_ORED = 24576
LA_OBF = 57344
LA_YRED = 0
LA_FIN = 12288
LA_G = 14336

g.c("---- role A setup")
g("s_sub_u32 %s, s2, 64" % s(S_T0))
g("s_and_b32 %s, %s, 7" % (s(S_T1), s(S_T0)))
g("s_lshr_b32 %s, %s, 3" % (s(S_T2), s(S_T0)))
g("s_and_b32 %s, %s, 1" % (s(S_T3), s(S_T2)))
g("s_lshl_b32 %s, %s, 1" % (s(S_KVH), s(S_T1)))
g("s_add_u32 %s, %s, %s" % (s(S_KVH), s(S_KVH), s(S_T3)))
g("s_lshr_b32 %s, %s, 1" % (s(S_T2), s(S_T2)))
g("s_cmp_ge_u32 %s, 6" % s(S_T2))
g("s_cselect_b32 %s, 1, 0" % s(S_B))
g("s_mul_i32 %s, %s, 6" % (s(S_T3), s(S_B)))
g("s_sub_u32 %s, %s, %s" % (s(S_SPLIT), s(S_T2), s(S_T3)))
g("s_lshl_b32 %s, %s, 4" % (s(S_PAIR), s(S_B)))
g("s_add_u32 %s, %s, %s" % (s(S_PAIR), s(S_PAIR), s(S_KVH)))
g("s_mul_i32 %s, %s, 6" % (s(S_FLAGB), s(S_PAIR)))
g("s_add_u32 %s, %s, %s" % (s(S_FLAGB), s(S_FLAGB), s(S_SPLIT)))
g("s_add_u32 %s, %s, 64" % (s(S_FLAGB), s(S_FLAGB)))
g("s_mul_i32 %s, %s, 6" % (s(S_T0), s(S_WAVE)))
g("s_add_u32 %s, %s, %s" % (s(S_T0), s(S_T0), s(S_SPLIT)))
g("s_mul_i32 %s, %s, 6" % (s(S_T1), s(S_T0)))
g("s_mul_i32 %s, %s, 5" % (s(S_T2), s(S_T0)))
g("s_add_u32 %s, %s, 16" % (s(S_T2), s(S_T2)))
g("s_cmp_lt_u32 %s, 16" % s(S_T0))
g("s_cselect_b32 %s, %s, %s" % (s(S_START), s(S_T1), s(S_T2)))
g("s_cselect_b32 %s, 5, 4" % s(S_U5))
g("s_cselect_b32 %s, 0, 0xff800000" % s(S_MASK5))

g.c("---- xp loads: x[b][72w + 4j + 2r .. +1]")
g("v_lshrrev_b32 v3, 5, %s" % v(VL))
g("v_and_b32 v4, 31, %s" % v(VL))
g("s_mul_i32 %s, %s, 1152" % (s(S_T0), s(S_B)))
g("s_mul_i32 %s, %s, 144" % (s(S_T1), s(S_WAVE)))
g("s_add_u32 %s, %s, %s" % (s(S_T0), s(S_T0), s(S_T1)))
g("v_lshl_add_u32 v5, v3, 2, %s" % s(S_T0))
for j in range(18):
    g("global_load_dword %s, v5, %s offset:%d" % (v(SS + j), sp(P_AX), 8 * j))
g.c("---- wq base offset")
g("s_mul_i32 %s, %s, %d" % (s(S_T0), s(S_WAVE), 72 * 8192))
g("s_lshl_b32 %s, %s, 9" % (s(S_T1), s(S_KVH)))
g("s_add_u32 %s, %s, %s" % (s(S_T0), s(S_T0), s(S_T1)))
g("v_lshlrev_b32 v5, 14, v3")
g("v_lshl_add_u32 v5, v4, 4, v5")
g("v_add_u32 v5, %s, v5" % s(S_T0))


def wq_chunk_issue(c):
    for jj in range(6):
        j = 6 * c + jj
        for t in range(2):
            r = BUF0 + (c & 1) * 48 + (jj * 2 + t) * 4
            g("v_add_u32 v6, 0x%x, v5" % ((4 * j + t) * 8192))
            g("global_load_dwordx4 %s, v6, %s" % (v(r, 4), sp(P_WQ)))


def wq_chunk_compute(c):
    for jj in range(6):
        j = 6 * c + jj
        r0 = BUF0 + (c & 1) * 48 + (jj * 2) * 4
        r1 = r0 + 4
        for e in range(4):
            g("v_perm_b32 v7, %s, %s, %s" % (v(r1 + e), v(r0 + e), s(S_SELLO)))
            g("v_perm_b32 v8, %s, %s, %s" % (v(r1 + e), v(r0 + e), s(S_SELHI)))
            g("v_dot2_f32_bf16 %s, v7, %s, %s" % (v(QACC + 2 * e), v(SS + j), v(QACC + 2 * e)))
            g("v_dot2_f32_bf16 %s, v8, %s, %s" % (v(QACC + 2 * e + 1), v(SS + j), v(QACC + 2 * e + 1)))


wq_chunk_issue(0)
wq_chunk_issue(1)
for e in range(8):
    g("v_mov_b32 %s, 0" % v(QACC + e))
g.c("---- K/V per-lane base offsets")
g("s_lshl_b32 %s, %s, 12" % (s(S_T0), s(S_PAIR)))
g("s_lshl_b32 %s, %s, 4" % (s(S_T1), s(S_START)))
g("s_add_u32 %s, %s, %s" % (s(S_T0), s(S_T0), s(S_T1)))
g("s_lshl_b32 %s, %s, 8" % (s(S_T0), s(S_T0)))
g("v_and_b32 v9, 15, %s" % v(VL))
g("v_lshrrev_b32 v10, 4, %s" % v(VL))
g("v_lshlrev_b32 v11, 8, v9")
g("v_lshl_add_u32 v11, v10, 4, v11")
g("v_add_u32 v11, %s, v11" % s(S_T0))
g("v_lshlrev_b32 v60, 8, v10")
g("v_lshl_add_u32 v60, v9, 4, v60")
g("v_add_u32 v60, %s, v60" % s(S_T0))
g("s_lshl_b32 %s, %s, 12" % (s(S_U5), s(S_U5)))

g("s_waitcnt vmcnt(12)")
wq_chunk_compute(0)
wq_chunk_issue(2)
g.c("---- K loads")
for u in range(6):
    if u < 5:
        g("v_add_u32 v6, %d, v11" % (u * 4096))
    else:
        g("v_add_u32 v6, %s, v11" % s(S_U5))
    for j in range(4):
        g("global_load_dwordx4 %s, v6, %s offset:%d%s" % (v(BUF1 + (u * 4 + j) * 4, 4), sp(P_K), j * 64, NT))
g("s_waitcnt vmcnt(36)")
wq_chunk_compute(1)
g("s_waitcnt vmcnt(24)")
wq_chunk_compute(2)
g.c("---- V loads into BUF0")
for i in range(24):
    u = i // 4
    if u < 5:
        g("v_add_u32 v6, %d, v60" % (i * 1024))
    else:
        if i == 20:
            g("v_add_u32 v61, %s, v60" % s(S_U5))
        g("v_add_u32 v6, %d, v61" % ((i - 20) * 1024))
    g("global_load_dwordx4 %s, v6, %s%s" % (v(BUF0 + i * 4, 4), sp(P_V), NT))
g.c("---- q reduce")
g("s_lshl_b32 %s, %s, 11" % (s(S_T0), s(S_WAVE)))
g("v_lshlrev_b32 v5, 10, v3")
g("v_lshl_add_u32 v5, v4, 5, v5")
g("v_add_u32 v5, %s, v5" % s(S_T0))
g("ds_write_b128 v5, %s offset:%d" % (v(QACC, 4), LA_QRED))
g("ds_write_b128 v5, %s offset:%d" % (v(QACC + 4, 4), LA_QRED + 16))
barrier()
lq = g.newlabel("QSUM")
g("s_cmp_ge_u32 %s, 4" % s(S_WAVE))
g("s_cbranch_scc1 %s" % lq)
g("v_lshlrev_b32 v5, 2, v0")
for i in range(16):
    g("ds_read_b32 %s, v5 offset:%d" % (v(QF + i), LA_QRED + i * 1024))
g("s_waitcnt lgkmcnt(0)")
for st in (8, 4, 2, 1):
    for i in range(st):
        g("v_add_f32 %s, %s, %s" % (v(QF + i), v(QF + i), v(QF + i + st)))
g("v_cvt_pk_bf16_f32 v6, %s, %s" % (v(QF), v(QF)))
g("v_lshlrev_b32 v5, 1, v0")
g("ds_write_b16 v5, v6 offset:%d" % LA_QBF)
g.label(lq)
barrier()
g.c("---- q frags (A operand): row = l&15 (<2), slab = l>>4")
for i in range(16):
    g("v_mov_b32 %s, 0" % v(QF + i))
g("v_lshlrev_b32 v5, 8, v9")
g("v_lshl_add_u32 v5, v10, 4, v5")
g("v_cmp_gt_u32 vcc, 2, v9")
g("s_and_saveexec_b64 %s, vcc" % sp(58))
for j in range(4):
    g("ds_read_b128 %s, v5 offset:%d" % (v(QF + 4 * j, 4), LA_QBF + 64 * j))
g("s_mov_b64 exec, %s" % sp(58))
g("s_waitcnt lgkmcnt(0)")
g.c("---- QK")
for u in range(6):
    g("s_waitcnt vmcnt(%d)" % (24 - 4 * (u + 1) + 24))
    for j in range(4):
        cc = "0" if j == 0 else v(SS + 4 * u, 4)
        g("v_mfma_f32_16x16x32_bf16 %s, %s, %s, %s" % (v(SS + 4 * u, 4), v(QF + 4 * j, 4), v(BUF1 + (u * 4 + j) * 4, 4), cc))
g.c("---- wo slice prefetch into BUF1 (8 x dwordx3)")
g("s_lshl_b32 %s, %s, 8" % (s(S_T0), s(S_KVH)))
g("s_lshl_b32 %s, %s, 5" % (s(S_T1), s(S_WAVE)))
g("s_add_u32 %s, %s, %s" % (s(S_T0), s(S_T0), s(S_T1)))
g("s_mul_i32 %s, %s, 1152" % (s(S_T0), s(S_T0)))
g("s_mul_i32 %s, %s, 192" % (s(S_T1), s(S_SPLIT)))
g("s_add_u32 %s, %s, %s" % (s(S_T0), s(S_T0), s(S_T1)))
g("v_mul_u32_u24 v5, 2304, v10")
g("v_mul_u32_u24 v6, 12, v9")
g("v_add3_u32 v5, v5, v6, %s" % s(S_T0))
g("s_nop 7")
for jj in range(4):
    for t in range(2):
        g("v_add_u32 v6, %d, v5" % ((8 * jj + t) * 1152))
        g("global_load_dwordx3 %s, v6, %s" % (v(BUF1 + (jj * 2 + t) * 4, 3), sp(P_WO)))
g.c("---- softmax (lanes 0..15 valid)")
g("v_add_f32 %s, %s, %s" % (v(SS + 20), s(S_MASK5), v(SS + 20)))
g("v_add_f32 %s, %s, %s" % (v(SS + 21), s(S_MASK5), v(SS + 21)))
VM0, VM1, VL0, VL1 = 3, 4, 7, 8
for h in range(2):
    m = VM0 + h
    g("v_max3_f32 %s, %s, %s, %s" % (v(m), v(SS + h), v(SS + 4 + h), v(SS + 8 + h)))
    g("v_max3_f32 %s, %s, %s, %s" % (v(m), v(m), v(SS + 12 + h), v(SS + 16 + h)))
    g("v_max_f32 %s, %s, %s" % (v(m), v(m), v(SS + 20 + h)))
    allreduce16("v_max_f32", m)
g("v_mul_f32 v5, %s, %s" % (s(S_CEXP), v(VM0)))
g("v_mul_f32 v6, %s, %s" % (s(S_CEXP), v(VM1)))
for u in range(6):
    g("v_fma_f32 %s, %s, %s, -v5" % (v(SS + 4 * u), v(SS + 4 * u), s(S_CEXP)))
    g("v_fma_f32 %s, %s, %s, -v6" % (v(SS + 4 * u + 1), v(SS + 4 * u + 1), s(S_CEXP)))
for u in range(6):
    g("v_exp_f32 %s, %s" % (v(SS + 4 * u), v(SS + 4 * u)))
    g("v_exp_f32 %s, %s" % (v(SS + 4 * u + 1), v(SS + 4 * u + 1)))
g("s_nop 0")
for u in range(6):
    g("v_cvt_pk_bf16_f32 %s, %s, %s" % (v(SS + 4 * u + 2), v(SS + 4 * u), v(SS + 4 * u + 1)))
for h in range(2):
    l = VL0 + h
    g("v_add_f32 %s, %s, %s" % (v(l), v(SS + h), v(SS + 4 + h)))
    for u in range(2, 6):
        g("v_add_f32 %s, %s, %s" % (v(l), v(l), v(SS + 4 * u + h)))
    allreduce16("v_add_f32", l)
g("s_mul_i32 %s, %s, 384" % (s(S_T0), s(S_WAVE)))
g("v_and_b32 v5, 3, v9")
g("v_mul_u32_u24 v5, 48, v5")
g("v_lshrrev_b32 v6, 2, v9")
g("v_lshl_add_u32 v5, v6, 1, v5")
g("v_add_u32 v5, %s, v5" % s(S_T0))
g("s_mov_b64 exec, 0xffff")
for u in range(6):
    g("ds_write_b16 v5, %s offset:%d" % (v(SS + 4 * u + 2), LA_PBUF + 8 * u))
    g("ds_write_b16_d16_hi v5, %s offset:%d" % (v(SS + 4 * u + 2), LA_PBUF + 192 + 8 * u))
g("s_mov_b64 exec, 1")
g("v_mov_b32 v60, %s" % v(VM0))
g("v_mov_b32 v61, %s" % v(VL0))
g("v_mov_b32 v62, %s" % v(VM1))
g("v_mov_b32 v63, %s" % v(VL1))
g("s_lshl_b32 %s, %s, 4" % (s(S_T0), s(S_WAVE)))
g("v_mov_b32 v3, %s" % s(S_T0))
g("ds_write_b128 v3, v[60:63] offset:%d" % LA_STAT)
g("s_mov_b64 exec, -1")
g("s_waitcnt lgkmcnt(0)")
g("s_mul_i32 %s, %s, 384" % (s(S_T0), s(S_WAVE)))
g("v_mul_u32_u24 v5, 48, v10")
g("v_add_u32 v5, %s, v5" % s(S_T0))
P2 = SS
for h in range(2):
    for q in range(3):
        g("ds_read_b128 %s, v5 offset:%d" % (v(P2 + h * 12 + q * 4, 4), LA_PBUF + h * 192 + q * 16))
OA = QF
for i in range(16):
    g("v_mov_b32 %s, 0" % v(OA + i))
g("s_waitcnt lgkmcnt(0)")
g.c("---- PV")
for j in range(12):
    g("s_waitcnt vmcnt(%d)" % (24 - 2 * (j + 1) + 8))
    r0 = BUF0 + (2 * j) * 4
    r1 = r0 + 4
    for e in range(4):
        g("v_perm_b32 v7, %s, %s, %s" % (v(r1 + e), v(r0 + e), s(S_SELLO)))
        g("v_perm_b32 v8, %s, %s, %s" % (v(r1 + e), v(r0 + e), s(S_SELHI)))
        for h in range(2):
            g("v_dot2_f32_bf16 %s, v7, %s, %s" % (v(OA + h * 8 + 2 * e), v(P2 + h * 12 + j), v(OA + h * 8 + 2 * e)))
            g("v_dot2_f32_bf16 %s, v8, %s, %s" % (v(OA + h * 8 + 2 * e + 1), v(P2 + h * 12 + j), v(OA + h * 8 + 2 * e + 1)))
g.c("---- WG reduce of o")
g("s_lshl_b32 %s, %s, 12" % (s(S_T0), s(S_WAVE)))
g("v_lshlrev_b32 v5, 10, v10")
g("v_lshl_add_u32 v5, v9, 5, v5")
g("v_add_u32 v5, %s, v5" % s(S_T0))
for h in range(2):
    g("ds_write_b128 v5, %s offset:%d" % (v(OA + h * 8, 4), LA_ORED + h * 512))
    g("ds_write_b128 v5, %s offset:%d" % (v(OA + h * 8 + 4, 4), LA_ORED + h * 512 + 16))
barrier()
la1 = g.newlabel("ARED")
g("s_cmp_ge_u32 %s, 4" % s(S_WAVE))
g("s_cbranch_scc1 %s" % la1)
g("v_lshrrev_b32 v3, 7, v0")
g("v_lshlrev_b32 v4, 3, v3")
for w in range(8):
    g("ds_read_b64 %s, v4 offset:%d" % (v(SS + 2 * w, 2), LA_STAT + 16 * w))
g("v_lshlrev_b32 v5, 2, v0")
for i in range(32):
    g("ds_read_b32 %s, v5 offset:%d" % (v(BUF0 + i), LA_ORED + i * 1024))
g("s_waitcnt lgkmcnt(0)")
g("v_max3_f32 v6, %s, %s, %s" % (v(SS), v(SS + 2), v(SS + 4)))
g("v_max3_f32 v6, v6, %s, %s" % (v(SS + 6), v(SS + 8)))
g("v_max3_f32 v6, v6, %s, %s" % (v(SS + 10), v(SS + 12)))
g("v_max_f32 v6, v6, %s" % v(SS + 14))
for w in range(8):
    g("v_sub_f32 %s, %s, v6" % (v(SS + 2 * w), v(SS + 2 * w)))
    g("v_mul_f32 %s, %s, %s" % (v(SS + 2 * w), s(S_CEXP), v(SS + 2 * w)))
    g("v_exp_f32 %s, %s" % (v(SS + 2 * w), v(SS + 2 * w)))
g("v_mov_b32 v7, 0")
g("v_mov_b32 v8, 0")
for w in range(8):
    g("v_fmac_f32 v7, %s, %s" % (v(SS + 2 * w), v(SS + 2 * w + 1)))
    g("v_add_f32 %s, %s, %s" % (v(BUF0 + 4 * w), v(BUF0 + 4 * w), v(BUF0 + 4 * w + 1)))
    g("v_add_f32 %s, %s, %s" % (v(BUF0 + 4 * w + 2), v(BUF0 + 4 * w + 2), v(BUF0 + 4 * w + 3)))
    g("v_add_f32 %s, %s, %s" % (v(BUF0 + 4 * w), v(BUF0 + 4 * w), v(BUF0 + 4 * w + 2)))
    g("v_fmac_f32 v8, %s, %s" % (v(SS + 2 * w), v(BUF0 + 4 * w)))
g("s_mul_i32 %s, %s, 6" % (s(S_T0), s(S_PAIR)))
g("s_add_u32 %s, %s, %s" % (s(S_T0), s(S_T0), s(S_SPLIT)))
g("s_lshl_b32 %s, %s, 10" % (s(S_T1), s(S_T0)))
g("s_add_u32 %s, %s, 0x%x" % (s(S_T1), s(S_T1), WS_APART))
g("v_add_u32 v5, %s, v5" % s(S_T1))
g("global_store_dword v5, v8, %s sc1" % sp(P_WS))
g("s_lshl_b32 %s, %s, 4" % (s(S_T1), s(S_T0)))
g("s_add_u32 %s, %s, 0x%x" % (s(S_T1), s(S_T1), WS_ASTAT))
g("v_add_u32 v4, %s, v4" % s(S_T1))
g("v_and_b32 v3, 127, v0")
g("v_cmp_eq_u32 vcc, 0, v3")
g("s_and_saveexec_b64 %s, vcc" % sp(58))
lz = g.newlabel("ASTZ")
g("s_cbranch_execz %s" % lz)
g("global_store_dwordx2 v4, v[6:7], %s sc1" % sp(P_WS))
g.label(lz)
g("s_mov_b64 exec, %s" % sp(58))
g.label(la1)
g("s_waitcnt vmcnt(0)")
g("s_barrier")
lf = g.newlabel("AFL")
g("s_cmp_lg_u32 %s, 0" % s(S_WAVE))
g("s_cbranch_scc1 %s" % lf)
set_flag(S_FLAGB, 1, 5, 6)
g.c("poll group flags: bytes 64 + pair*6 + i")
g("s_mul_i32 %s, %s, 6" % (s(S_T0), s(S_PAIR)))
g("s_add_u32 %s, %s, 64" % (s(S_T0), s(S_T0)))
g("v_add_u32 v5, %s, %s" % (s(S_T0), v(VL)))
poll_flags(5, 6, 1, 6, S_T1)
g.label(lf)
g("s_barrier")
g.c("---- combine")
la2 = g.newlabel("ACMB")
g("s_cmp_ge_u32 %s, 4" % s(S_WAVE))
g("s_cbranch_scc1 %s" % la2)
g("s_mul_i32 %s, %s, 6" % (s(S_T0), s(S_PAIR)))
g("s_lshl_b32 %s, %s, 10" % (s(S_T1), s(S_T0)))
g("s_add_u32 %s, %s, 0x%x" % (s(S_T1), s(S_T1), WS_APART))
g("v_lshl_add_u32 v5, v0, 2, %s" % s(S_T1))
for i in range(6):
    g("v_add_u32 v6, %d, v5" % (1024 * i))
    g("global_load_dword %s, v6, %s sc1" % (v(SS + 12 + i), sp(P_WS)))
g("s_lshl_b32 %s, %s, 4" % (s(S_T1), s(S_T0)))
g("s_add_u32 %s, %s, 0x%x" % (s(S_T1), s(S_T1), WS_ASTAT))
g("v_lshrrev_b32 v3, 7, v0")
g("v_lshl_add_u32 v4, v3, 3, %s" % s(S_T1))
for i in range(6):
    g("global_load_dwordx2 %s, v4, %s offset:%d sc1" % (v(SS + 2 * i, 2), sp(P_WS), 16 * i))
g("s_waitcnt vmcnt(0)")
g("v_max3_f32 v6, %s, %s, %s" % (v(SS), v(SS + 2), v(SS + 4)))
g("v_max3_f32 v6, v6, %s, %s" % (v(SS + 6), v(SS + 8)))
g("v_max_f32 v6, v6, %s" % v(SS + 10))
for i in range(6):
    g("v_sub_f32 %s, %s, v6" % (v(SS + 2 * i), v(SS + 2 * i)))
    g("v_mul_f32 %s, %s, %s" % (v(SS + 2 * i), s(S_CEXP), v(SS + 2 * i)))
    g("v_exp_f32 %s, %s" % (v(SS + 2 * i), v(SS + 2 * i)))
g("v_mov_b32 v7, 0")
g("v_mov_b32 v8, 0")
for i in range(6):
    g("v_fmac_f32 v7, %s, %s" % (v(SS + 2 * i), v(SS + 2 * i + 1)))
    g("v_fmac_f32 v8, %s, %s" % (v(SS + 2 * i), v(SS + 12 + i)))
g("v_rcp_f32 v7, v7")
g("s_nop 0")
g("v_mul_f32 v8, v8, v7")
g("v_cvt_pk_bf16_f32 v6, v8, v8")
g("v_lshlrev_b32 v5, 1, v0")
g("ds_write_b16 v5, v6 offset:%d" % LA_OBF)
g.label(la2)
barrier()
g.c("---- wo projection: wave rows 32w + 8jj + 2r + t")
g("s_lshl_b32 %s, %s, 6" % (s(S_T0), s(S_WAVE)))
g("v_lshl_add_u32 v5, v10, 2, %s" % s(S_T0))
for jj in range(4):
    g("ds_read_b32 %s, v5 offset:%d" % (v(SS + jj), LA_OBF + 16 * jj))
for e in range(6):
    g("v_mov_b32 %s, 0" % v(QF + e))
g("s_waitcnt lgkmcnt(0)")
for jj in range(4):
    r0 = BUF1 + (jj * 2) * 4
    r1 = r0 + 4
    for e in range(3):
        g("v_perm_b32 v7, %s, %s, %s" % (v(r1 + e), v(r0 + e), s(S_SELLO)))
        g("v_perm_b32 v8, %s, %s, %s" % (v(r1 + e), v(r0 + e), s(S_SELHI)))
        g("v_dot2_f32_bf16 %s, v7, %s, %s" % (v(QF + 2 * e), v(SS + jj), v(QF + 2 * e)))
        g("v_dot2_f32_bf16 %s, v8, %s, %s" % (v(QF + 2 * e + 1), v(SS + jj), v(QF + 2 * e + 1)))
g("s_mul_i32 %s, %s, 1536" % (s(S_T0), s(S_WAVE)))
g("v_mul_u32_u24 v5, 384, v10")
g("v_mul_u32_u24 v6, 24, v9")
g("v_add3_u32 v5, v5, v6, %s" % s(S_T0))
for e in range(3):
    g("ds_write_b64 v5, %s offset:%d" % (v(QF + 2 * e, 2), LA_YRED + 8 * e))
barrier()
la3 = g.newlabel("AY")
g("v_cmp_gt_u32 vcc, 96, v0")
g("s_and_saveexec_b64 %s, vcc" % sp(58))
g("s_cbranch_execz %s" % la3)
g("v_lshlrev_b32 v5, 2, v0")
for i in range(32):
    g("ds_read_b32 %s, v5 offset:%d" % (v(BUF0 + i), LA_YRED + i * 384))
g("s_waitcnt lgkmcnt(0)")
for st in (16, 8, 4, 2, 1):
    for i in range(st):
        g("v_add_f32 %s, %s, %s" % (v(BUF0 + i), v(BUF0 + i), v(BUF0 + i + st)))
g("s_mul_i32 %s, %s, 2304" % (s(S_T0), s(S_PAIR)))
g("s_mul_i32 %s, %s, 384" % (s(S_T1), s(S_SPLIT)))
g("s_add_u32 %s, %s, %s" % (s(S_T0), s(S_T0), s(S_T1)))
g("s_add_u32 %s, %s, 0x%x" % (s(S_T0), s(S_T0), WS_YA))
g("v_add_u32 v5, %s, v5" % s(S_T0))
g("global_store_dword v5, %s, %s sc1" % (v(BUF0), sp(P_WS)))
g.label(la3)
g("s_mov_b64 exec, %s" % sp(58))
g("s_waitcnt vmcnt(0)")
g("s_barrier")
lf2 = g.newlabel("AFL2")
g("s_cmp_lg_u32 %s, 0" % s(S_WAVE))
g("s_cbranch_scc1 %s" % lf2)
set_flag(S_FLAGB, 2, 5, 6)
g.label(lf2)
g.c("---- finalizer: kvh == 0")
g("s_cmp_lg_u32 %s, 0" % s(S_KVH))
g("s_cbranch_scc1 L_END")
lfin = g.newlabel("FIN")
g("s_cmp_lg_u32 %s, 0" % s(S_WAVE))
g("s_cbranch_scc1 %s" % lfin)
g.c("gate: wave 0 computes g for batch b")
g("s_mul_i32 %s, %s, 1152" % (s(S_T0), s(S_B)))
g("v_lshl_add_u32 v5, %s, 1, %s" % (v(VL), s(S_T0)))
g("v_lshlrev_b32 v6, 1, %s" % v(VL))
for i in range(9):
    g("global_load_ushort %s, v5, %s offset:%d" % (v(SS + i), sp(P_AX), 128 * i))
    g("global_load_ushort %s, v6, %s offset:%d" % (v(SS + 9 + i), sp(P_GW), 128 * i))
g("s_waitcnt vmcnt(0)")
g("v_mov_b32 v7, 0")
for i in range(9):
    g("v_lshlrev_b32 %s, 16, %s" % (v(SS + i), v(SS + i)))
    g("v_lshlrev_b32 %s, 16, %s" % (v(SS + 9 + i), v(SS + 9 + i)))
    g("v_mul_f32 %s, %s, %s" % (v(SS + i), v(SS + i), v(SS + 9 + i)))
    g("v_cvt_pk_bf16_f32 %s, %s, %s" % (v(SS + i), v(SS + i), v(SS + i)))
    g("v_lshlrev_b32 %s, 16, %s" % (v(SS + i), v(SS + i)))
    g("v_add_f32 v7, v7, %s" % v(SS + i))
allreduce16("v_add_f32", 7)
g("s_nop 1")
xreduce_16_32("v_add_f32", 7, 8)
g("v_cvt_pk_bf16_f32 v7, v7, v7")
g("v_lshlrev_b32 v7, 16, v7")
g("v_mul_f32 v7, %s, v7" % f32hex(-math.log2(math.e)))
g("v_exp_f32 v7, v7")
g("s_nop 0")
g("v_add_f32 v7, 1.0, v7")
g("v_rcp_f32 v7, v7")
g("s_nop 0")
g("v_cvt_pk_bf16_f32 v7, v7, v7")
g("v_lshlrev_b32 v7, 16, v7")
g("v_mov_b32 v5, 0")
g("ds_write_b32 v5, v7 offset:%d" % LA_G)
g.c("poll A flags (16: kvh' with same b, split) and B flags (64)")
g("s_mul_i32 %s, %s, 96" % (s(S_T0), s(S_B)))
g("s_add_u32 %s, %s, %s" % (s(S_T0), s(S_T0), s(S_SPLIT)))
g("s_add_u32 %s, %s, 64" % (s(S_T0), s(S_T0)))
g("v_mul_u32_u24 v5, 6, %s" % v(VL))
g("v_add_u32 v5, %s, v5" % s(S_T0))
poll_flags(5, 6, 2, 16, S_T1)
poll_flags(VL, 6, 3, 64, S_T1)
g.label(lfin)
barrier()
lf3 = g.newlabel("FIN2")
g("v_cmp_gt_u32 vcc, 480, v0")
g("s_and_saveexec_b64 %s, vcc" % sp(58))
g("s_cbranch_execz %s" % lf3)
g("v_mul_u32_u24 v3, 683, v0")
g("v_lshrrev_b32 v3, 16, v3")
g("v_mul_u32_u24 v4, 96, v3")
g("v_sub_u32 v4, v0, v4")
g("s_mul_i32 %s, %s, %d" % (s(S_T0), s(S_B), 16 * 2304))
g("s_add_u32 %s, %s, 0x%x" % (s(S_T0), s(S_T0), WS_YA))
g("s_mul_i32 %s, %s, %d" % (s(S_T1), s(S_B), 64 * 2304))
g("s_add_u32 %s, %s, 0x%x" % (s(S_T1), s(S_T1), WS_YB - 16 * 2304))
g("v_mul_u32_u24 v5, %d, v3" % (16 * 2304))
g("v_add_u32 v5, %s, v5" % s(S_T1))
g("v_mov_b32 v6, %s" % s(S_T0))
g("v_cmp_eq_u32 vcc, 0, v3")
g("s_nop 1")
g("v_cndmask_b32 v5, v5, v6, vcc")
g("s_mul_i32 %s, %s, 384" % (s(S_T2), s(S_SPLIT)))
g("v_lshl_add_u32 v5, v4, 2, v5")
g("v_add_u32 v5, %s, v5" % s(S_T2))
for i in range(16):
    g("v_add_u32 v6, %d, v5" % (2304 * i))
    g("global_load_dword %s, v6, %s sc1" % (v(BUF0 + i), sp(P_WS)))
g("s_waitcnt vmcnt(0)")
for st in (8, 4, 2, 1):
    for i in range(st):
        g("v_add_f32 %s, %s, %s" % (v(BUF0 + i), v(BUF0 + i), v(BUF0 + i + st)))
g("v_lshlrev_b32 v5, 2, v0")
g("ds_write_b32 v5, %s offset:%d" % (v(BUF0), LA_FIN))
g.label(lf3)
g("s_mov_b64 exec, %s" % sp(58))
barrier()
g("v_cmp_gt_u32 vcc, 96, v0")
g("s_and_saveexec_b64 %s, vcc" % sp(58))
g("s_cbranch_execz L_END")
g("v_lshlrev_b32 v5, 2, v0")
for i in range(5):
    g("ds_read_b32 %s, v5 offset:%d" % (v(SS + i), LA_FIN + 384 * i))
g("v_mov_b32 v6, 0")
g("ds_read_b32 v7, v6 offset:%d" % LA_G)
g("s_waitcnt lgkmcnt(0)")
g("v_add_f32 %s, %s, %s" % (v(SS + 1), v(SS + 1), v(SS + 2)))
g("v_add_f32 %s, %s, %s" % (v(SS + 3), v(SS + 3), v(SS + 4)))
g("v_add_f32 %s, %s, %s" % (v(SS + 1), v(SS + 1), v(SS + 3)))
g("v_cvt_pk_bf16_f32 v8, %s, %s" % (v(SS), v(SS + 1)))
g("v_lshlrev_b32 %s, 16, v8" % v(SS))
g("v_and_b32 %s, 0xffff0000, v8" % v(SS + 1))
g("v_sub_f32 v8, 1.0, v7")
g("v_mul_f32 %s, v7, %s" % (v(SS), v(SS)))
g("v_cvt_pk_bf16_f32 v8, v8, v8")
g("v_lshlrev_b32 v8, 16, v8")
g("v_mul_f32 %s, v8, %s" % (v(SS + 1), v(SS + 1)))
g("v_cvt_pk_bf16_f32 v8, %s, %s" % (v(SS), v(SS + 1)))
g("v_lshlrev_b32 %s, 16, v8" % v(SS))
g("v_and_b32 %s, 0xffff0000, v8" % v(SS + 1))
g("v_add_f32 v8, %s, %s" % (v(SS), v(SS + 1)))
g("v_cvt_pk_bf16_f32 v8, v8, v8")
g("s_mul_i32 %s, %s, 1152" % (s(S_T0), s(S_B)))
g("s_mul_i32 %s, %s, 192" % (s(S_T1), s(S_SPLIT)))
g("s_add_u32 %s, %s, %s" % (s(S_T0), s(S_T0), s(S_T1)))
g("v_lshl_add_u32 v5, v0, 1, %s" % s(S_T0))
g("global_store_short v5, v8, %s" % sp(P_OUT))
g("s_branch L_END")

S_H, S_HALF, S_B2, S_SP2 = 44, 45, 46, 47
LB_U = 131072
g.label("L_ROLE_B")
g.c("---- role B setup")
g("s_and_b32 %s, s2, 7" % s(S_T0))
g("s_lshr_b32 %s, s2, 3" % s(S_T1))
g("s_lshl_b32 %s, %s, 2" % (s(S_H), s(S_T0)))
g("s_lshr_b32 %s, %s, 1" % (s(S_T2), s(S_T1)))
g("s_add_u32 %s, %s, %s" % (s(S_H), s(S_H), s(S_T2)))
g("s_and_b32 %s, %s, 1" % (s(S_HALF), s(S_T1)))
g("s_lshr_b32 %s, s2, 5" % s(S_B2))
g("s_and_b32 %s, s2, 31" % s(S_SP2))
g("v_and_b32 v9, 15, %s" % v(VL))
g("v_lshrrev_b32 v10, 4, %s" % v(VL))
XP = 12
BACC = 30
WQB = 64
WUKR = 136
g.c("B1 loads: xp[b][j] = dword idx 36w + 4j + r")
g("s_mul_i32 %s, %s, 144" % (s(S_T0), s(S_WAVE)))
g("v_lshl_add_u32 v5, v10, 2, %s" % s(S_T0))
for b in range(2):
    for j in range(9):
        g("global_load_dword %s, v5, %s offset:%d" % (v(XP + b * 9 + j), sp(P_AX), b * 1152 + 16 * j))
g("s_mul_i32 %s, %s, %d" % (s(S_T0), s(S_WAVE), 72 * 8192))
g("s_lshl_b32 %s, %s, 8" % (s(S_T1), s(S_H)))
g("s_add_u32 %s, %s, %s" % (s(S_T0), s(S_T0), s(S_T1)))
g("v_lshlrev_b32 v5, 14, v10")
g("v_lshl_add_u32 v5, v9, 4, v5")
g("v_add_u32 v5, %s, v5" % s(S_T0))
for j in range(9):
    for t in range(2):
        g("v_add_u32 v6, 0x%x, v5" % ((8 * j + t) * 8192))
        g("global_load_dwordx4 %s, v6, %s" % (v(WQB + (2 * j + t) * 4, 4), sp(P_BWQ)))
g("s_lshl_b32 %s, %s, 8" % (s(S_T0), s(S_HALF)))
g("s_lshl_b32 %s, %s, 5" % (s(S_T2), s(S_WAVE)))
g("s_add_u32 %s, %s, %s" % (s(S_T0), s(S_T0), s(S_T2)))
g("s_lshl_b32 %s, %s, 13" % (s(S_T2), s(S_T0)))
g("s_add_u32 %s, %s, %s" % (s(S_T2), s(S_T2), s(S_T1)))
g("v_lshlrev_b32 v5, 13, v9")
g("v_lshl_add_u32 v5, v10, 4, v5")
g("v_add_u32 v5, %s, v5" % s(S_T2))
for gq in range(2):
    g("v_add_u32 v6, 0x%x, v5" % (gq * 16 * 8192))
    for st in range(4):
        g("global_load_dwordx4 %s, v6, %s offset:%d%s" % (v(WUKR + (gq * 4 + st) * 4, 4), sp(P_WUK), st * 64, NT))
for e in range(16):
    g("v_mov_b32 %s, 0" % v(BACC + e))
for j in range(9):
    g("s_waitcnt vmcnt(%d)" % (8 + 18 - 2 * (j + 1)))
    r0 = WQB + (2 * j) * 4
    r1 = r0 + 4
    for e in range(4):
        g("v_perm_b32 v7, %s, %s, %s" % (v(r1 + e), v(r0 + e), s(S_SELLO)))
        g("v_perm_b32 v8, %s, %s, %s" % (v(r1 + e), v(r0 + e), s(S_SELHI)))
        for b in range(2):
            g("v_dot2_f32_bf16 %s, v7, %s, %s" % (v(BACC + b * 8 + 2 * e), v(XP + b * 9 + j), v(BACC + b * 8 + 2 * e)))
            g("v_dot2_f32_bf16 %s, v8, %s, %s" % (v(BACC + b * 8 + 2 * e + 1), v(XP + b * 9 + j), v(BACC + b * 8 + 2 * e + 1)))
g("s_lshl_b32 %s, %s, 12" % (s(S_T0), s(S_WAVE)))
g("v_lshlrev_b32 v5, 10, v10")
g("v_lshl_add_u32 v5, v9, 5, v5")
g("v_add_u32 v5, %s, v5" % s(S_T0))
g("v_add_u32 v5, %d, v5" % LB_U)
for b in range(2):
    g("ds_write_b128 v5, %s offset:%d" % (v(BACC + b * 8, 4), b * 512))
    g("ds_write_b128 v5, %s offset:%d" % (v(BACC + b * 8 + 4, 4), b * 512 + 16))
barrier()
lb1 = g.newlabel("B1S")
g("s_cmp_ge_u32 %s, 4" % s(S_WAVE))
g("s_cbranch_scc1 %s" % lb1)
g("v_lshlrev_b32 v5, 2, v0")
g("v_add_u32 v5, %d, v5" % LB_U)
for i in range(32):
    g("ds_read_b32 %s, v5 offset:%d" % (v(WQB + i), i * 1024))
g("s_waitcnt lgkmcnt(0)")
for st in (16, 8, 4, 2, 1):
    for i in range(st):
        g("v_add_f32 %s, %s, %s" % (v(WQB + i), v(WQB + i), v(WQB + i + st)))
g.label(lb1)
barrier()
lb2 = g.newlabel("B1W")
g("s_cmp_ge_u32 %s, 4" % s(S_WAVE))
g("s_cbranch_scc1 %s" % lb2)
g("v_cvt_pk_bf16_f32 v6, %s, %s" % (v(WQB), v(WQB)))
g("v_lshlrev_b32 v5, 1, v0")
g("v_add_u32 v5, %d, v5" % LB_U)
g("ds_write_b16 v5, v6")
g.label(lb2)
barrier()
g.c("q frags (B operand): col n<2 = batch ; slab g")
QFB = 48
for i in range(16):
    g("v_mov_b32 %s, 0" % v(QFB + i))
g("v_lshlrev_b32 v5, 8, v9")
g("v_lshl_add_u32 v5, v10, 4, v5")
g("v_add_u32 v5, %d, v5" % LB_U)
g("v_cmp_gt_u32 vcc, 2, v9")
g("s_and_saveexec_b64 %s, vcc" % sp(58))
for j in range(4):
    g("ds_read_b128 %s, v5 offset:%d" % (v(QFB + 4 * j, 4), 64 * j))
g("s_mov_b64 exec, %s" % sp(58))
g("s_waitcnt vmcnt(0) lgkmcnt(0)")
DQ = 12
for gq in range(2):
    for st in range(4):
        cc = "0" if st == 0 else v(DQ + 4 * gq, 4)
        g("v_mfma_f32_16x16x32_bf16 %s, %s, %s, %s" % (v(DQ + 4 * gq, 4), v(WUKR + (gq * 4 + st) * 4, 4), v(QFB + 4 * st, 4), cc))
g("s_nop 7")
g("s_nop 1")
g("s_lshl_b32 %s, %s, 8" % (s(S_T0), s(S_HALF)))
g("s_lshl_b32 %s, %s, 5" % (s(S_T2), s(S_WAVE)))
g("s_add_u32 %s, %s, %s" % (s(S_T0), s(S_T0), s(S_T2)))
g("s_lshl_b32 %s, %s, 1" % (s(S_T0), s(S_T0)))
g("s_lshl_b32 %s, %s, 10" % (s(S_T1), s(S_H)))
g("s_add_u32 %s, %s, %s" % (s(S_T0), s(S_T0), s(S_T1)))
g("v_lshlrev_b32 v5, 15, v9")
g("v_lshl_add_u32 v5, v10, 3, v5")
g("v_add_u32 v5, %s, v5" % s(S_T0))
for gq in range(2):
    g("v_cvt_pk_bf16_f32 %s, %s, %s" % (v(20 + 2 * gq), v(DQ + 4 * gq), v(DQ + 4 * gq + 1)))
    g("v_cvt_pk_bf16_f32 %s, %s, %s" % (v(21 + 2 * gq), v(DQ + 4 * gq + 2), v(DQ + 4 * gq + 3)))
g("v_cmp_gt_u32 vcc, 2, v9")
g("s_and_saveexec_b64 %s, vcc" % sp(58))
for gq in range(2):
    g("global_store_dwordx2 v5, %s, %s offset:%d sc1" % (v(20 + 2 * gq, 2), sp(P_WS), WS_QABS + 32 * gq))
g("s_mov_b64 exec, %s" % sp(58))
g.c("C tile DMA: rows 16w + i ; lds = row*1024 ; src chunk = lane ^ (2*(row&7))")
g("s_lshl_b32 %s, %s, 12" % (s(S_T0), s(S_B2)))
g("s_lshl_b32 %s, %s, 7" % (s(S_T1), s(S_SP2)))
g("s_add_u32 %s, %s, %s" % (s(S_T0), s(S_T0), s(S_T1)))
g("s_lshl_b32 %s, %s, 4" % (s(S_T1), s(S_WAVE)))
g("s_add_u32 %s, %s, %s" % (s(S_T0), s(S_T0), s(S_T1)))
g("s_lshl_b32 %s, %s, 10" % (s(S_T0), s(S_T0)))
g("s_lshl_b32 %s, %s, 14" % (s(S_T1), s(S_WAVE)))
for i in range(16):
    g("v_xor_b32 v6, %d, %s" % (2 * (i & 7), v(VL)))
    g("v_lshlrev_b32 v6, 4, v6")
    g("s_add_u32 %s, %s, %d" % (s(S_T2), s(S_T0), i * 1024))
    g("v_add_u32 v6, %s, v6" % s(S_T2))
    g("s_add_u32 m0, %s, %d" % (s(S_T1), i * 1024))
    g("s_nop 0")
    g("global_load_lds_dwordx4 v6, %s%s" % (sp(P_CKV), NT))
g("s_waitcnt vmcnt(16)")
g("s_barrier")
lb3 = g.newlabel("B1F")
g("s_cmp_lg_u32 %s, 0" % s(S_WAVE))
g("s_cbranch_scc1 %s" % lb3)
g("s_mov_b32 %s, s2" % s(S_T0))
set_flag(S_T0, 1, 5, 6)
poll_flags(VL, 6, 1, 64, S_T1)
g.label(lb3)
g("s_waitcnt vmcnt(0)")
g("s_barrier")
g.c("---- B2: load q_abs[b2] -> LDS U (swizzled)")
g("s_lshl_b32 %s, %s, 15" % (s(S_T0), s(S_B2)))
g("s_lshl_b32 %s, %s, 12" % (s(S_T1), s(S_WAVE)))
g("s_add_u32 %s, %s, %s" % (s(S_T0), s(S_T0), s(S_T1)))
g("v_lshl_add_u32 v5, %s, 4, %s" % (v(VL), s(S_T0)))
for i in range(4):
    g("global_load_dwordx4 %s, v5, %s offset:%d sc1" % (v(64 + 4 * i, 4), sp(P_WS), WS_QABS + 1024 * i))
g("s_and_b32 %s, %s, 1" % (s(S_T2), s(S_WAVE)))
g("s_lshl_b32 %s, %s, 3" % (s(S_T2), s(S_T2)))
for i in range(4):
    g("s_add_u32 %s, %s, %d" % (s(S_T3), s(S_T2), 2 * i))
    g("v_xor_b32 %s, %s, %s" % (v(80 + i), s(S_T3), v(VL)))
    g("v_lshlrev_b32 %s, 4, %s" % (v(80 + i), v(80 + i)))
    g("v_add_u32 %s, %s, %s" % (v(80 + i), s(S_T1), v(80 + i)))
g("s_waitcnt vmcnt(0)")
for i in range(4):
    g("v_add_u32 %s, %d, %s" % (v(80 + i), LB_U + 1024 * i, v(80 + i)))
for i in range(4):
    g("ds_write_b128 %s, %s" % (v(80 + i), v(64 + 4 * i, 4)))
barrier()
g.c("QK^T: S^T[hg] (keys x heads)")
g("v_and_b32 v5, 7, v9")
g("v_lshlrev_b32 v5, 1, v5")
g("v_xor_b32 v5, v5, v10")
g("v_lshlrev_b32 v5, 4, v5")
g("s_lshl_b32 %s, %s, 14" % (s(S_T0), s(S_WAVE)))
g("v_lshlrev_b32 v6, 10, v9")
g("v_add_u32 v7, %s, v6" % s(S_T0))
g("v_add_u32 v8, %d, v6" % LB_U)
SQ = 12
FR = 64
nb = 4
for bt in range(4):
    base = FR + (bt & 1) * 48
    for k in range(4):
        st = bt * 4 + k
        g("v_xor_b32 v3, %d, v5" % (st * 64))
        g("v_add_u32 v4, v3, v7")
        g("v_add_u32 v3, v3, v8")
        g("ds_read_b128 %s, v4" % v(base + k * 12, 4))
        g("ds_read_b128 %s, v3" % v(base + k * 12 + 4, 4))
        g("ds_read_b128 %s, v3 offset:16384" % v(base + k * 12 + 8, 4))
    if bt > 0:
        g("s_waitcnt lgkmcnt(12)")
        pb = FR + ((bt - 1) & 1) * 48
        for k in range(4):
            st = (bt - 1) * 4 + k
            for hg in range(2):
                cc = "0" if st == 0 else v(SQ + 4 * hg, 4)
                g("v_mfma_f32_16x16x32_bf16 %s, %s, %s, %s" % (v(SQ + 4 * hg, 4), v(pb + k * 12, 4), v(pb + k * 12 + 4 + 4 * hg, 4), cc))
g("s_waitcnt lgkmcnt(0)")
pb = FR + 48
for k in range(4):
    for hg in range(2):
        g("v_mfma_f32_16x16x32_bf16 %s, %s, %s, %s" % (v(SQ + 4 * hg, 4), v(pb + k * 12, 4), v(pb + k * 12 + 4 + 4 * hg, 4), v(SQ + 4 * hg, 4)))
g("s_nop 7")
g("s_nop 1")
MW = 20
for hg in range(2):
    g("v_max3_f32 %s, %s, %s, %s" % (v(MW + hg), v(SQ + 4 * hg), v(SQ + 4 * hg + 1), v(SQ + 4 * hg + 2)))
    g("v_max_f32 %s, %s, %s" % (v(MW + hg), v(MW + hg), v(SQ + 4 * hg + 3)))
    xreduce_16_32("v_max_f32", MW + hg, 3)
g("s_barrier")
LB_WM = LB_U
LB_WL = LB_U + 1024
LB_P = LB_U + 2048
PSTR = 288
g("s_lshl_b32 %s, %s, 7" % (s(S_T0), s(S_WAVE)))
g("v_lshl_add_u32 v3, v9, 2, %s" % s(S_T0))
g("v_add_u32 v3, %d, v3" % LB_U)
g("s_mov_b64 exec, 0xffff")
g("ds_write_b32 v3, %s" % v(MW))
g("ds_write_b32 v3, %s offset:64" % v(MW + 1))
g("s_mov_b64 exec, -1")
barrier()
g("v_lshlrev_b32 v4, 2, v9")
g("v_add_u32 v4, %d, v4" % LB_U)
for hg in range(2):
    for w in range(8):
        g("ds_read_b32 %s, v4 offset:%d" % (v(64 + hg * 8 + w), w * 128 + hg * 64))
g("s_waitcnt lgkmcnt(0)")
MG = 22
for hg in range(2):
    b0 = 64 + hg * 8
    g("v_max3_f32 %s, %s, %s, %s" % (v(MG + hg), v(b0), v(b0 + 1), v(b0 + 2)))
    g("v_max3_f32 %s, %s, %s, %s" % (v(MG + hg), v(MG + hg), v(b0 + 3), v(b0 + 4)))
    g("v_max3_f32 %s, %s, %s, %s" % (v(MG + hg), v(MG + hg), v(b0 + 5), v(b0 + 6)))
    g("v_max_f32 %s, %s, %s" % (v(MG + hg), v(MG + hg), v(b0 + 7)))
    g("v_mul_f32 v3, %s, %s" % (s(S_CEXP), v(MG + hg)))
    for r in range(4):
        g("v_fma_f32 %s, %s, %s, -v3" % (v(SQ + 4 * hg + r), v(SQ + 4 * hg + r), s(S_CEXP)))
    for r in range(4):
        g("v_exp_f32 %s, %s" % (v(SQ + 4 * hg + r), v(SQ + 4 * hg + r)))
LW = 24
for hg in range(2):
    g("v_add_f32 %s, %s, %s" % (v(LW + hg), v(SQ + 4 * hg), v(SQ + 4 * hg + 1)))
    g("v_add_f32 v3, %s, %s" % (v(SQ + 4 * hg + 2), v(SQ + 4 * hg + 3)))
    g("v_add_f32 %s, %s, v3" % (v(LW + hg), v(LW + hg)))
    xreduce_16_32("v_add_f32", LW + hg, 3)
g("s_lshl_b32 %s, %s, 5" % (s(S_T0), s(S_WAVE)))
g("v_mul_u32_u24 v4, %d, v9" % PSTR)
g("v_lshl_add_u32 v4, v10, 3, v4")
g("v_add_u32 v4, %s, v4" % s(S_T0))
g("v_add_u32 v4, %d, v4" % LB_P)
for hg in range(2):
    g("v_cvt_pk_bf16_f32 %s, %s, %s" % (v(26 + 2 * hg), v(SQ + 4 * hg), v(SQ + 4 * hg + 1)))
    g("v_cvt_pk_bf16_f32 %s, %s, %s" % (v(27 + 2 * hg), v(SQ + 4 * hg + 2), v(SQ + 4 * hg + 3)))
    g("ds_write_b64 v4, %s offset:%d" % (v(26 + 2 * hg, 2), hg * 16 * PSTR))
g("s_lshl_b32 %s, %s, 7" % (s(S_T0), s(S_WAVE)))
g("v_lshl_add_u32 v3, v9, 2, %s" % s(S_T0))
g("v_add_u32 v3, %d, v3" % LB_WL)
g("s_mov_b64 exec, 0xffff")
g("ds_write_b32 v3, %s" % v(LW))
g("ds_write_b32 v3, %s offset:64" % v(LW + 1))
g("s_mov_b64 exec, -1")
barrier()
g.c("stats by wave 0: lanes 0..15 for hg 0,1")
lb4 = g.newlabel("B2S")
g("s_cmp_lg_u32 %s, 0" % s(S_WAVE))
g("s_cbranch_scc1 %s" % lb4)
g("v_lshlrev_b32 v4, 2, v9")
g("v_add_u32 v4, %d, v4" % LB_WL)
for hg in range(2):
    for w in range(8):
        g("ds_read_b32 %s, v4 offset:%d" % (v(64 + hg * 8 + w), w * 128 + hg * 64))
g("s_waitcnt lgkmcnt(0)")
for hg in range(2):
    b0 = 64 + hg * 8
    for st in (4, 2, 1):
        for i in range(st):
            g("v_add_f32 %s, %s, %s" % (v(b0 + i), v(b0 + i), v(b0 + i + st)))
g("s_lshl_b32 %s, s2, 8" % s(S_T0))
g("s_add_u32 %s, %s, 0x%x" % (s(S_T0), s(S_T0), WS_BSTAT))
g("v_lshl_add_u32 v4, v9, 3, %s" % s(S_T0))
g("s_mov_b64 exec, 0xffff")
for hg in range(2):
    g("v_mov_b32 v6, %s" % v(MG + hg))
    g("v_mov_b32 v7, %s" % v(64 + hg * 8))
    g("global_store_dwordx2 v4, v[6:7], %s offset:%d sc1" % (sp(P_WS), hg * 128))
    g("s_nop 1")
g("s_mov_b64 exec, -1")
g.label(lb4)
g.c("PV: D[hg][cg] = C^T x P^T")
g("v_lshrrev_b32 v3, 2, v9")
g("v_lshl_add_u32 v3, v10, 2, v3")
g("v_and_b32 v4, 7, v3")
g("v_lshlrev_b32 v4, 1, v4")
g("v_lshlrev_b32 v3, 10, v3")
g("v_and_b32 v5, 3, v9")
g("v_lshrrev_b32 v6, 1, v5")
g("v_and_b32 v5, 1, v5")
g("v_lshl_add_u32 v3, v5, 3, v3")
g("s_lshl_b32 %s, %s, 3" % (s(S_T0), s(S_WAVE)))
g("v_add_u32 v6, %s, v6" % s(S_T0))
AD = 32
for cg in range(4):
    g("v_add_u32 v7, %d, v6" % (2 * cg))
    g("v_xor_b32 v7, v7, v4")
    g("v_lshl_add_u32 %s, v7, 4, v3" % v(AD + cg))
    g("v_add_u32 %s, 0x10000, %s" % (v(AD + 4 + cg), v(AD + cg)))
g("v_mul_u32_u24 v7, %d, v9" % PSTR)
g("v_lshl_add_u32 v7, v10, 3, v7")
g("v_add_u32 v7, %d, v7" % LB_P)
PF = 40
g("v_add_u32 v8, %d, v7" % (16 * PSTR))
for hg in range(2):
    for ks in range(4):
        g("ds_read2_b64 %s, %s offset0:%d offset1:%d" % (v(PF + (hg * 4 + ks) * 4, 4), "v7" if hg == 0 else "v8", ks * 8, ks * 8 + 4))
CF = 80
for cg in range(4):
    for ks in range(4):
        a = AD + cg + (4 if ks >= 2 else 0)
        off = (ks & 1) * 32768
        g("ds_read_b64_tr_b16 %s, %s offset:%d" % (v(CF + (cg * 4 + ks) * 4, 2), v(a), off))
        g("ds_read_b64_tr_b16 %s, %s offset:%d" % (v(CF + (cg * 4 + ks) * 4 + 2, 2), v(a), off + 16384))
g("s_waitcnt lgkmcnt(0)")
DA = 144
for ks in range(4):
    for hg in range(2):
        for cg in range(4):
            d = DA + (hg * 4 + cg) * 4
            cc = "0" if ks == 0 else v(d, 4)
            g("v_mfma_f32_16x16x32_bf16 %s, %s, %s, %s" % (v(d, 4), v(CF + (cg * 4 + ks) * 4, 4), v(PF + (hg * 4 + ks) * 4, 4), cc))
g("s_nop 7")
g("s_nop 1")
g("s_lshl_b32 %s, s2, 15" % s(S_T0))
g("s_lshl_b32 %s, %s, 7" % (s(S_T1), s(S_WAVE)))
g("s_add_u32 %s, %s, %s" % (s(S_T0), s(S_T0), s(S_T1)))
g("s_add_u32 %s, %s, 0x%x" % (s(S_T0), s(S_T0), WS_BPART))
g("v_lshlrev_b32 v3, 10, v9")
g("v_lshl_add_u32 v3, v10, 5, v3")
g("v_add_u32 v3, %s, v3" % s(S_T0))
for hg in range(2):
    for cg in range(4):
        d = DA + (hg * 4 + cg) * 4
        o = 64 + hg * 8 + cg * 2
        g("v_cvt_pk_bf16_f32 %s, %s, %s" % (v(o), v(d), v(d + 1)))
        g("v_cvt_pk_bf16_f32 %s, %s, %s" % (v(o + 1), v(d + 2), v(d + 3)))
g("v_add_u32 v4, 16384, v3")
g("global_store_dwordx4 v3, %s, %s sc1" % (v(64, 4), sp(P_WS)))
g("global_store_dwordx4 v3, %s, %s offset:16 sc1" % (v(68, 4), sp(P_WS)))
g("global_store_dwordx4 v4, %s, %s sc1" % (v(72, 4), sp(P_WS)))
g("global_store_dwordx4 v4, %s, %s offset:16 sc1" % (v(76, 4), sp(P_WS)))
g("s_waitcnt vmcnt(0)")
g("s_barrier")
lb5 = g.newlabel("B2F")
g("s_cmp_lg_u32 %s, 0" % s(S_WAVE))
g("s_cbranch_scc1 %s" % lb5)
g("s_mov_b32 %s, s2" % s(S_T0))
set_flag(S_T0, 2, 5, 6)
g.label(lb5)
g.c("---- B3: DMA w_uv tile (64 KiB @0) and w_o tile (72 KiB @65536)")
LB_WO = 65536
LB_CRED = 139264
LB_CBF = 155648
LB_XRED = 157696
LB_XBF = 161792
g("v_lshrrev_b32 v3, 3, %s" % v(VL))
g("v_and_b32 v4, 7, %s" % v(VL))
g("v_lshrrev_b32 v5, 1, v3")
g("v_and_b32 v5, 3, v5")
g("v_lshlrev_b32 v5, 1, v5")
g("v_xor_b32 v4, v4, v5")
g("v_lshlrev_b32 v4, 4, v4")
g("v_lshl_add_u32 v4, v3, 13, v4")
g("s_lshl_b32 %s, %s, 8" % (s(S_T0), s(S_H)))
g("s_lshl_b32 %s, %s, 7" % (s(S_T1), s(S_HALF)))
g("s_add_u32 %s, %s, %s" % (s(S_T0), s(S_T0), s(S_T1)))
g("s_lshl_b32 %s, %s, 19" % (s(S_T1), s(S_WAVE)))
g("s_add_u32 %s, %s, %s" % (s(S_T0), s(S_T0), s(S_T1)))
g("v_add_u32 v4, %s, v4" % s(S_T0))
g("s_lshl_b32 %s, %s, 13" % (s(S_T1), s(S_WAVE)))
for i in range(8):
    g("v_add_u32 v6, 0x%x, v4" % (i * 8 * 8192))
    g("s_add_u32 m0, %s, %d" % (s(S_T1), i * 1024))
    g("s_nop 0")
    g("global_load_lds_dwordx4 v6, %s%s" % (sp(P_WUV), NT))
g("s_lshl_b32 %s, %s, 7" % (s(S_T0), s(S_H)))
g("s_lshl_b32 %s, %s, 6" % (s(S_T1), s(S_HALF)))
g("s_add_u32 %s, %s, %s" % (s(S_T0), s(S_T0), s(S_T1)))
g("s_mul_i32 %s, %s, 1152" % (s(S_T0), s(S_T0)))
g("s_mul_i32 %s, %s, 576" % (s(S_T1), s(S_WAVE)))
g("s_mov_b32 %s, 58255" % s(S_T3))
for i in range(9):
    g("v_add_u32 v3, %s, %s" % (s(S_T1), v(VL)))
    g("v_add_u32 v3, %d, v3" % (64 * i))
    g("v_mul_lo_u32 v4, v3, %s" % s(S_T3))
    g("v_lshrrev_b32 v4, 22, v4")
    g("v_mul_u32_u24 v5, 72, v4")
    g("v_sub_u32 v5, v3, v5")
    g("v_lshrrev_b32 v6, 1, v4")
    g("v_and_b32 v6, 3, v6")
    g("v_lshlrev_b32 v6, 1, v6")
    g("v_xor_b32 v5, v5, v6")
    g("v_mul_u32_u24 v4, 1152, v4")
    g("v_lshl_add_u32 v4, v5, 4, v4")
    g("v_add_u32 v4, %s, v4" % s(S_T0))
    g("s_lshl_b32 %s, %s, 4" % (s(S_T2), s(S_T1)))
    g("s_add_u32 m0, %s, %d" % (s(S_T2), LB_WO + 1024 * i))
    g("s_nop 0")
    g("global_load_lds_dwordx4 v4, %s%s" % (sp(P_BWO), NT))
lb6 = g.newlabel("B3P")
g("s_cmp_lg_u32 %s, 0" % s(S_WAVE))
g("s_cbranch_scc1 %s" % lb6)
poll_flags(VL, 6, 2, 64, S_T1)
g.label(lb6)
g("s_barrier")
g.c("combine partials: wave w: b = w>>2 ; splits 8(w&3)+i")
g("s_lshr_b32 %s, %s, 2" % (s(S_T0), s(S_WAVE)))
g("s_and_b32 %s, %s, 3" % (s(S_T1), s(S_WAVE)))
g("s_lshl_b32 %s, %s, 3" % (s(S_T1), s(S_T1)))
g("s_lshl_b32 %s, %s, 5" % (s(S_T2), s(S_T0)))
g("s_add_u32 %s, %s, %s" % (s(S_T2), s(S_T2), s(S_T1)))
g("s_lshl_b32 %s, %s, 15" % (s(S_T2), s(S_T2)))
g("s_lshl_b32 %s, %s, 10" % (s(S_T3), s(S_H)))
g("s_add_u32 %s, %s, %s" % (s(S_T2), s(S_T2), s(S_T3)))
g("s_add_u32 %s, %s, 0x%x" % (s(S_T2), s(S_T2), WS_BPART))
g("v_lshl_add_u32 v3, %s, 4, %s" % (v(VL), s(S_T2)))
for i in range(8):
    g("v_add_u32 v4, 0x%x, v3" % (i * 32768))
    g("global_load_dwordx4 %s, v4, %s sc1" % (v(64 + 4 * i, 4), sp(P_WS)))
g("s_lshl_b32 %s, %s, 13" % (s(S_T2), s(S_T0)))
g("s_lshl_b32 %s, %s, 3" % (s(S_T3), s(S_H)))
g("s_add_u32 %s, %s, %s" % (s(S_T2), s(S_T2), s(S_T3)))
g("s_add_u32 %s, %s, 0x%x" % (s(S_T2), s(S_T2), WS_BSTAT))
g("v_and_b32 v4, 31, %s" % v(VL))
g("v_lshl_add_u32 v4, v4, 8, %s" % s(S_T2))
g("global_load_dwordx2 v[6:7], v4, %s sc1" % sp(P_WS))
g("s_waitcnt vmcnt(0)")
g("v_mov_b32 v5, v6")
allreduce16("v_max_f32", 5)
g("v_mov_b32 v3, v5")
g("s_nop 1")
g("v_permlane16_swap_b32 v5, v3")
g("s_nop 1")
g("v_max_f32 v5, v5, v3")
g("v_sub_f32 v6, v6, v5")
g("v_mul_f32 v6, %s, v6" % s(S_CEXP))
g("v_exp_f32 v6, v6")
g("s_nop 0")
g("v_mul_f32 v7, v6, v7")
allreduce16("v_add_f32", 7)
g("v_mov_b32 v3, v7")
g("s_nop 1")
g("v_permlane16_swap_b32 v7, v3")
g("s_nop 1")
g("v_add_f32 v7, v7, v3")
g("v_rcp_f32 v7, v7")
g("s_nop 0")
g("v_mul_f32 v6, v6, v7")
g("s_nop 0")
for i in range(8):
    g("s_add_u32 %s, %s, %d" % (s(S_T3), s(S_T1), i))
    g("v_readlane_b32 %s, v6, %s" % (s(60 + i), s(S_T3)))
CA = 12
for e in range(8):
    g("v_mov_b32 %s, 0" % v(CA + e))
g("s_nop 1")
for i in range(8):
    for e in range(4):
        g("v_lshlrev_b32 v3, 16, %s" % v(64 + 4 * i + e))
        g("v_and_b32 v4, 0xffff0000, %s" % v(64 + 4 * i + e))
        g("v_fmac_f32 %s, %s, v3" % (v(CA + 2 * e), s(60 + i)))
        g("v_fmac_f32 %s, %s, v4" % (v(CA + 2 * e + 1), s(60 + i)))
g("v_lshrrev_b32 v3, 3, %s" % v(VL))
g("v_bfe_u32 v4, %s, 1, 2" % v(VL))
g("v_and_b32 v5, 1, %s" % v(VL))
g("v_lshlrev_b32 v3, 8, v3")
g("v_lshl_add_u32 v3, v5, 7, v3")
g("v_lshl_add_u32 v3, v4, 4, v3")
g("s_lshl_b32 %s, %s, 11" % (s(S_T2), s(S_WAVE)))
g("v_add_u32 v3, %s, v3" % s(S_T2))
g("v_add_u32 v3, %d, v3" % LB_CRED)
g("ds_write_b128 v3, %s" % v(CA, 4))
g("ds_write_b128 v3, %s offset:64" % v(CA + 4, 4))
barrier()
g("v_lshrrev_b32 v3, 8, v0")
g("v_and_b32 v4, 255, v0")
g("v_lshlrev_b32 v5, 13, v3")
g("v_lshl_add_u32 v5, v4, 3, v5")
g("v_add_u32 v5, %d, v5" % LB_CRED)
for i in range(4):
    g("ds_read_b64 %s, v5 offset:%d" % (v(CA + 2 * i, 2), 2048 * i))
g("s_waitcnt lgkmcnt(0)")
for k in range(2):
    g("v_add_f32 %s, %s, %s" % (v(CA + k), v(CA + k), v(CA + 2 + k)))
    g("v_add_f32 %s, %s, %s" % (v(CA + 4 + k), v(CA + 4 + k), v(CA + 6 + k)))
    g("v_add_f32 %s, %s, %s" % (v(CA + k), v(CA + k), v(CA + 4 + k)))
g("v_cvt_pk_bf16_f32 v6, %s, %s" % (v(CA), v(CA + 1)))
g("v_lshlrev_b32 v5, 2, v0")
g("v_add_u32 v5, %d, v5" % LB_CBF)
g("ds_write_b32 v5, v6")
g("s_waitcnt vmcnt(0)")
barrier()
g.c("MFMA1: ctx[b][64d] partial over c in [64w, 64w+64)")
AF = 12
for i in range(8):
    g("v_mov_b32 %s, 0" % v(AF + i))
g("s_lshl_b32 %s, %s, 7" % (s(S_T0), s(S_WAVE)))
g("v_lshlrev_b32 v3, 10, v9")
g("v_lshl_add_u32 v3, v10, 3, v3")
g("v_add_u32 v3, %s, v3" % s(S_T0))
g("v_add_u32 v3, %d, v3" % LB_CBF)
g("v_cmp_gt_u32 vcc, 2, v9")
g("s_and_saveexec_b64 %s, vcc" % sp(58))
for ks in range(2):
    g("ds_read2_b64 %s, v3 offset0:%d offset1:%d" % (v(AF + 4 * ks, 4), ks * 8, ks * 8 + 4))
g("s_mov_b64 exec, %s" % sp(58))
g("v_lshrrev_b32 v3, 2, v9")
g("v_lshl_add_u32 v3, v10, 2, v3")
g("v_lshrrev_b32 v4, 1, v3")
g("v_and_b32 v4, 3, v4")
g("v_lshlrev_b32 v4, 1, v4")
g("v_lshlrev_b32 v3, 7, v3")
g("v_and_b32 v5, 1, v9")
g("v_lshl_add_u32 v3, v5, 3, v3")
g("s_lshl_b32 %s, %s, 13" % (s(S_T0), s(S_WAVE)))
g("v_add_u32 v3, %s, v3" % s(S_T0))
g("v_bfe_u32 v5, v9, 1, 1")
BFR = 64
for cg in range(4):
    g("v_add_u32 v6, %d, v5" % (2 * cg))
    g("v_xor_b32 v6, v6, v4")
    g("v_lshl_add_u32 v6, v6, 4, v3")
    for ks in range(2):
        g("ds_read_b64_tr_b16 %s, v6 offset:%d" % (v(BFR + (cg * 2 + ks) * 4, 2), ks * 4096))
        g("ds_read_b64_tr_b16 %s, v6 offset:%d" % (v(BFR + (cg * 2 + ks) * 4 + 2, 2), ks * 4096 + 2048))
g("s_waitcnt lgkmcnt(0)")
DX = 28
for ks in range(2):
    for cg in range(4):
        cc = "0" if ks == 0 else v(DX + 4 * cg, 4)
        g("v_mfma_f32_16x16x32_bf16 %s, %s, %s, %s" % (v(DX + 4 * cg, 4), v(AF + 4 * ks, 4), v(BFR + (cg * 2 + ks) * 4, 4), cc))
g("s_nop 7")
g("s_nop 1")
g("s_lshl_b32 %s, %s, 9" % (s(S_T0), s(S_WAVE)))
g("v_lshl_add_u32 v3, v9, 2, %s" % s(S_T0))
g("v_add_u32 v3, %d, v3" % LB_XRED)
g("s_mov_b64 exec, 0xffff")
for cg in range(4):
    g("ds_write_b32 v3, %s offset:%d" % (v(DX + 4 * cg), 64 * cg))
    g("ds_write_b32 v3, %s offset:%d" % (v(DX + 4 * cg + 1), 256 + 64 * cg))
g("s_mov_b64 exec, -1")
barrier()
lb7 = g.newlabel("B3X")
g("s_cmp_ge_u32 %s, 2" % s(S_WAVE))
g("s_cbranch_scc1 %s" % lb7)
g("v_lshlrev_b32 v3, 2, v0")
g("v_add_u32 v3, %d, v3" % LB_XRED)
for w in range(8):
    g("ds_read_b32 %s, v3 offset:%d" % (v(64 + w), 512 * w))
g("s_waitcnt lgkmcnt(0)")
for st in (4, 2, 1):
    for i in range(st):
        g("v_add_f32 %s, %s, %s" % (v(64 + i), v(64 + i), v(64 + i + st)))
g("v_cvt_pk_bf16_f32 v6, v64, v64")
g("v_lshlrev_b32 v3, 1, v0")
g("v_add_u32 v3, %d, v3" % LB_XBF)
g("ds_write_b16 v3, v6")
g.label(lb7)
barrier()
g.c("MFMA2: out partial = ctx[b][64] x w_o tile")
for i in range(8):
    g("v_mov_b32 %s, 0" % v(AF + i))
g("v_lshlrev_b32 v3, 7, v9")
g("v_lshl_add_u32 v3, v10, 3, v3")
g("v_add_u32 v3, %d, v3" % LB_XBF)
g("v_cmp_gt_u32 vcc, 2, v9")
g("s_and_saveexec_b64 %s, vcc" % sp(58))
for ks in range(2):
    g("ds_read2_b64 %s, v3 offset0:%d offset1:%d" % (v(AF + 4 * ks, 4), ks * 8, ks * 8 + 4))
g("s_mov_b64 exec, %s" % sp(58))
g("v_lshrrev_b32 v3, 2, v9")
g("v_lshl_add_u32 v3, v10, 2, v3")
g("v_lshrrev_b32 v4, 1, v3")
g("v_and_b32 v4, 3, v4")
g("v_lshlrev_b32 v4, 1, v4")
g("v_mul_u32_u24 v3, 1152, v3")
g("v_and_b32 v5, 1, v9")
g("v_lshl_add_u32 v3, v5, 3, v3")
g("v_add_u32 v3, %d, v3" % LB_WO)
g("v_bfe_u32 v5, v9, 1, 1")
g("s_lshl_b32 %s, %s, 1" % (s(S_T0), s(S_WAVE)))
g("v_add_u32 v5, %s, v5" % s(S_T0))
g("s_mul_i32 %s, s2, 2304" % s(S_T1))
g("s_add_u32 %s, %s, 0x%x" % (s(S_T1), s(S_T1), WS_YB))
g("s_lshl_b32 %s, %s, 6" % (s(S_T2), s(S_WAVE)))
g("s_add_u32 %s, %s, %s" % (s(S_T1), s(S_T1), s(S_T2)))
g("v_lshl_add_u32 v7, v9, 2, %s" % s(S_T1))
for i in range(5):
    lskip = None
    if i == 4:
        lskip = g.newlabel("B3K")
        g("s_cmp_ge_u32 %s, 4" % s(S_WAVE))
        g("s_cbranch_scc1 %s" % lskip)
    g("v_add_u32 v6, %d, v5" % (16 * i))
    g("v_xor_b32 v6, v6, v4")
    g("v_lshl_add_u32 v6, v6, 4, v3")
    for ks in range(2):
        g("ds_read_b64_tr_b16 %s, v6 offset:%d" % (v(BFR + ks * 4, 2), ks * 32 * 1152))
        g("ds_read_b64_tr_b16 %s, v6 offset:%d" % (v(BFR + ks * 4 + 2, 2), ks * 32 * 1152 + 16 * 1152))
    g("s_waitcnt lgkmcnt(0)")
    g("v_mfma_f32_16x16x32_bf16 %s, %s, %s, 0" % (v(DX, 4), v(AF, 4), v(BFR, 4)))
    g("v_mfma_f32_16x16x32_bf16 %s, %s, %s, %s" % (v(DX, 4), v(AF + 4, 4), v(BFR + 4, 4), v(DX, 4)))
    g("s_nop 7")
    g("s_nop 1")
    g("s_mov_b64 exec, 0xffff")
    g("v_add_u32 v8, %d, v7" % (512 * i))
    g("global_store_dword v8, %s, %s sc1" % (v(DX), sp(P_WS)))
    g("v_add_u32 v8, %d, v8" % (64 * 2304))
    g("global_store_dword v8, %s, %s sc1" % (v(DX + 1), sp(P_WS)))
    g("s_mov_b64 exec, -1")
    g("s_nop 1")
    if lskip:
        g.label(lskip)
g("s_waitcnt vmcnt(0)")
g("s_barrier")
g("s_cmp_lg_u32 %s, 0" % s(S_WAVE))
g("s_cbranch_scc1 L_END")
g("s_mov_b32 %s, s2" % s(S_T0))
set_flag(S_T0, 3, 5, 6)
g("s_waitcnt vmcnt(0)")
g.label("L_END")
g("s_endpgm")
g.L.append('.section .rodata,"a"')
g.L.append(".p2align 6")
g.L.append(".amdhsa_kernel %s" % NAME)
g.L.append("  .amdhsa_next_free_vgpr 256")
g.L.append("  .amdhsa_next_free_sgpr 102")
g.L.append("  .amdhsa_accum_offset 256")
g.L.append("  .amdhsa_group_segment_fixed_size 0")
g.L.append("  .amdhsa_kernarg_size 120")
g.L.append("  .amdhsa_user_sgpr_count 2")
g.L.append("  .amdhsa_user_sgpr_kernarg_segment_ptr 1")
g.L.append("  .amdhsa_system_sgpr_workgroup_id_x 1")
g.L.append(".end_amdhsa_kernel")

out = sys.argv[1] if len(sys.argv) > 1 else "gated_mix__gqa_block_cached__compressed_kv_cla__decode.s"
open(out, "w").write("\n".join(g.L) + "\n")
print("wrote", out, len(g.L), "lines")
```

```python
import sys, math

NAME = "gated_mix__gqa_block_cached__compressed_kv_cla__decode_kernel"

WS_QABS = 0x0
WS_BSTAT = 0x10000
WS_ASTAT = 0x14000
WS_APART = 0x18000
WS_YA = 0x48000
WS_YB = 0x60000
WS_BPART = 0x100000

CEXP = (128 ** -0.5) * math.log2(math.e)
SPIN_LIMIT = 1 << 20

P_AX, P_K, P_V, P_WQ, P_WO, P_BX, P_CKV, P_BWQ, P_WUK, P_WUV, P_BWO, P_GW, P_OUT, P_DBG, P_WS = [8 + 2 * i for i in range(15)]


def f32hex(x):
    import struct
    return "0x%08x" % struct.unpack("<I", struct.pack("<f", x))[0]


class G:
    def __init__(self):
        self.L = []
        self.nlabel = 0

    def __call__(self, s):
        self.L.append("    " + s)

    def label(self, name):
        self.L.append(name + ":")

    def newlabel(self, p="L"):
        self.nlabel += 1
        return "%s_%d" % (p, self.nlabel)

    def c(self, s):
        self.L.append("    ; " + s)


def v(n, cnt=1):
    return "v%d" % n if cnt == 1 else "v[%d:%d]" % (n, n + cnt - 1)


def s(n, cnt=1):
    return "s%d" % n if cnt == 1 else "s[%d:%d]" % (n, n + cnt - 1)


def sp(n):
    return s(n, 2)


g = G()
import os
STAMPS = os.environ.get("STAMPS", "0") == "1"
WS_TS = 0x400000
def stamp(i):
    if STAMPS:
        g("s_memrealtime %s" % sp(70 + 2 * i))
        g("s_waitcnt lgkmcnt(0)")
def dump_stamps(n):
    if STAMPS:
        lx = g.newlabel("TS")
        g("s_cmp_gt_u32 %s, 1" % s(S_WAVE))
        g("s_cbranch_scc1 %s" % lx)
        g("s_lshl_b32 s68, s2, 8")
        g("s_lshl_b32 s69, %s, 7" % s(S_WAVE))
        g("s_add_u32 s68, s68, s69")
        g("s_add_u32 s68, s68, 0x%x" % WS_TS)
        g("v_mov_b32 v5, s68")
        for i in range(n):
            g("v_mov_b32 v6, %s" % s(70 + 2 * i))
            g("v_mov_b32 v7, %s" % s(71 + 2 * i))
            g("global_store_dwordx2 v5, v[6:7], %s offset:%d" % (sp(P_WS), 8 * i))
            g("s_nop 1")
        g.label(lx)

NT = " nt"


def barrier():
    g("s_waitcnt lgkmcnt(0)")
    g("s_barrier")


def allreduce16(op, reg, tmp=None):
    for r in (8, 4, 2, 1):
        g("s_nop 1")
        g("%s_dpp %s, %s, %s row_ror:%d row_mask:0xf bank_mask:0xf" % (op, v(reg), v(reg), v(reg), r))


def xreduce_16_32(op, reg, tmp):
    for ins in ("v_permlane16_swap_b32", "v_permlane32_swap_b32"):
        g("v_mov_b32 %s, %s" % (v(tmp), v(reg)))
        g("s_nop 1")
        g("%s %s, %s" % (ins, v(reg), v(tmp)))
        g("s_nop 1")
        g("%s %s, %s, %s" % (op, v(reg), v(reg), v(tmp)))


WS_FA1 = 0x380000
WS_FA2 = 0x381000
WS_FA3 = 0x382000
WS_FB1 = 0x384000
WS_FB2 = 0x385000
WS_FB3 = 0x386000
S_NONCE = 92
SLEEP = 2


def poll_ws(vaddr, vtmp, nlanes, scnt):
    lp = g.newlabel("POLL")
    le = g.newlabel("POLLX")
    g("s_mov_b32 %s, 0" % s(scnt))
    if nlanes < 64:
        g("s_mov_b64 exec, 0x%x" % ((1 << nlanes) - 1))
    g.label(lp)
    g("global_load_dword %s, %s, %s sc1" % (v(vtmp), v(vaddr), sp(P_WS)))
    g("s_waitcnt vmcnt(0)")
    g("v_cmp_ne_u32 vcc, %s, %s" % (s(S_NONCE), v(vtmp)))
    g("s_nop 1")
    g("s_cmp_eq_u64 vcc, 0")
    g("s_cbranch_scc1 %s" % le)
    g("s_add_u32 %s, %s, 1" % (s(scnt), s(scnt)))
    g("s_cmp_gt_u32 %s, %d" % (s(scnt), SPIN_LIMIT))
    g("s_cbranch_scc1 %s" % le)
    g("s_sleep %d" % SLEEP)
    g("s_branch %s" % lp)
    g.label(le)
    g("s_mov_b64 exec, -1")


def set_ws(vaddr, vt1, nlanes):
    g("v_mov_b32 %s, %s" % (v(vt1), s(S_NONCE)))
    g("s_mov_b64 exec, 0x%x" % ((1 << nlanes) - 1))
    g("global_store_dword %s, %s, %s sc1" % (v(vaddr), v(vt1), sp(P_WS)))
    g("s_mov_b64 exec, -1")


def make_nonce():
    le = g.newlabel("NMX")
    g("s_cmp_lg_u32 s2, 0")
    g("s_cbranch_scc1 %s" % le)
    g("s_cmp_lg_u32 %s, 0" % s(S_WAVE))
    g("s_cbranch_scc1 %s" % le)
    g("s_memrealtime %s" % sp(S_NONCE))
    g("s_waitcnt lgkmcnt(0)")
    g("s_or_b32 %s, %s, 1" % (s(S_NONCE), s(S_NONCE)))
    g("v_mov_b32 v3, 0")
    g("v_mov_b32 v4, %s" % s(S_NONCE))
    g("s_mov_b64 exec, 1")
    g("global_store_dword v3, v4, %s sc1" % sp(P_DBG))
    g("s_mov_b64 exec, -1")
    g.label(le)


def get_nonce(vt0, vt1, scnt):
    le = g.newlabel("NX")
    g("s_cmp_eq_u32 s2, 0")
    g("s_cbranch_scc1 %s" % le)
    g("v_mov_b32 %s, 0" % v(vt0))
    g("s_mov_b32 %s, 0" % s(scnt))
    lq = g.newlabel("NL")
    g.label(lq)
    g("global_load_dword %s, %s, %s sc1" % (v(vt1), v(vt0), sp(P_DBG)))
    g("s_waitcnt vmcnt(0)")
    g("v_readfirstlane_b32 %s, %s" % (s(S_NONCE), v(vt1)))
    g("s_nop 3")
    g("s_cmp_lg_u32 %s, 0" % s(S_NONCE))
    g("s_cbranch_scc1 %s" % le)
    g("s_add_u32 %s, %s, 1" % (s(scnt), s(scnt)))
    g("s_cmp_gt_u32 %s, %d" % (s(scnt), SPIN_LIMIT))
    g("s_cbranch_scc1 %s" % le)
    g("s_sleep 4")
    g("s_branch %s" % lq)
    g.label(le)


g.L.append("; @launch grid=(256,1,1) block=(512,1,1) lds=163840")
g.L.append('.amdgcn_target "amdgcn-amd-amdhsa--gfx950"')
g.L.append(".text")
g.L.append(".globl %s" % NAME)
g.L.append(".p2align 8")
g.L.append(".type %s,@function" % NAME)
g.label(NAME)
g("s_cmp_ge_u32 s2, 256")
g("s_cbranch_scc1 L_END")
g("s_load_dwordx16 s[8:23], s[0:1], 0")
g("s_load_dwordx8 s[24:31], s[0:1], 64")
g("s_load_dwordx4 s[32:35], s[0:1], 96")
g("s_load_dwordx2 s[36:37], s[0:1], 112")
S_WAVE = 40
S_SELLO, S_SELHI = 41, 42
S_CEXP = 43
g("v_lshrrev_b32 v1, 6, v0")
g("v_and_b32 v2, 63, v0")
g("s_nop 0")
g("v_readfirstlane_b32 %s, v1" % s(S_WAVE))
g("s_mov_b32 %s, 0x05040100" % s(S_SELLO))
g("s_mov_b32 %s, 0x07060302" % s(S_SELHI))
g("s_mov_b32 %s, %s" % (s(S_CEXP), f32hex(CEXP)))
g("s_waitcnt lgkmcnt(0)")
make_nonce()
g("s_cmp_lt_u32 s2, 64")
g("s_cbranch_scc1 L_ROLE_B")

VL = 2

S_KVH, S_B, S_SPLIT, S_PAIR, S_START, S_CNT = 44, 45, 46, 47, 48, 49
S_T0, S_T1, S_T2, S_T3 = 50, 51, 52, 53
S_MASK5 = 54
S_U5 = 55
S_FLAGB = 56
BUF0, BUF1 = 64, 160
QF = 12
QACC = 28
SS = 36

LA_QRED = 0
LA_QBF = 16384
LA_PBUF = 17408
LA_STAT = 20480
LA_ORED = 24576
LA_OBF = 57344
LA_YRED = 0
LA_FIN = 12288
LA_G = 14336

g.c("---- role A setup")
stamp(0)
g("s_sub_u32 %s, s2, 64" % s(S_T0))
g("s_and_b32 %s, %s, 7" % (s(S_T1), s(S_T0)))
g("s_lshr_b32 %s, %s, 3" % (s(S_T2), s(S_T0)))
g("s_and_b32 %s, %s, 1" % (s(S_T3), s(S_T2)))
g("s_lshl_b32 %s, %s, 1" % (s(S_KVH), s(S_T1)))
g("s_add_u32 %s, %s, %s" % (s(S_KVH), s(S_KVH), s(S_T3)))
g("s_lshr_b32 %s, %s, 1" % (s(S_T2), s(S_T2)))
g("s_cmp_ge_u32 %s, 6" % s(S_T2))
g("s_cselect_b32 %s, 1, 0" % s(S_B))
g("s_mul_i32 %s, %s, 6" % (s(S_T3), s(S_B)))
g("s_sub_u32 %s, %s, %s" % (s(S_SPLIT), s(S_T2), s(S_T3)))
g("s_lshl_b32 %s, %s, 4" % (s(S_PAIR), s(S_B)))
g("s_add_u32 %s, %s, %s" % (s(S_PAIR), s(S_PAIR), s(S_KVH)))
g("s_mul_i32 %s, %s, 6" % (s(S_FLAGB), s(S_PAIR)))
g("s_add_u32 %s, %s, %s" % (s(S_FLAGB), s(S_FLAGB), s(S_SPLIT)))
g("s_add_u32 %s, %s, 64" % (s(S_FLAGB), s(S_FLAGB)))
g("s_add_u32 %s, %s, 7" % (s(S_T0), s(S_WAVE)))
g("s_and_b32 %s, %s, 7" % (s(S_T0), s(S_T0)))
g("s_mul_i32 %s, %s, 6" % (s(S_T0), s(S_T0)))
g("s_add_u32 %s, %s, %s" % (s(S_T0), s(S_T0), s(S_SPLIT)))
g("s_mul_i32 %s, %s, 6" % (s(S_T1), s(S_T0)))
g("s_mul_i32 %s, %s, 5" % (s(S_T2), s(S_T0)))
g("s_add_u32 %s, %s, 16" % (s(S_T2), s(S_T2)))
g("s_cmp_lt_u32 %s, 16" % s(S_T0))
g("s_cselect_b32 %s, %s, %s" % (s(S_START), s(S_T1), s(S_T2)))
g("s_cselect_b32 %s, 5, 4" % s(S_U5))
g("s_cselect_b32 %s, 0, 0xff800000" % s(S_MASK5))

WIN = int(os.environ.get("WIN", "8"))
WS_QPART = 0x300000
LA_QRED2 = 24576
g.c("---- partial q: rows 48gi + 6w + 2i + r, both batches")
g("v_lshrrev_b32 v3, 5, %s" % v(VL))
g("v_and_b32 v4, 31, %s" % v(VL))
g("s_mul_i32 %s, %s, 6" % (s(S_T0), s(S_B)))
g("s_add_u32 %s, %s, %s" % (s(S_T0), s(S_T0), s(S_SPLIT)))
g("s_mul_i32 %s, %s, 48" % (s(S_T1), s(S_T0)))
g("s_mul_i32 %s, %s, 6" % (s(S_T2), s(S_WAVE)))
g("s_add_u32 %s, %s, %s" % (s(S_T1), s(S_T1), s(S_T2)))
g("v_add_u32 v5, %s, v3" % s(S_T1))
g("v_lshlrev_b32 v6, 1, v5")
for bb in range(2):
    for i in range(3):
        g("global_load_ushort %s, v6, %s offset:%d" % (v(SS + bb * 3 + i), sp(P_AX), bb * 1152 + 4 * i))
g("v_lshlrev_b32 v5, 13, v5")
g("v_lshl_add_u32 v5, v4, 4, v5")
g("s_lshl_b32 %s, %s, 9" % (s(S_T2), s(S_KVH)))
g("v_add_u32 v5, %s, v5" % s(S_T2))
for i in range(3):
    g("v_add_u32 v6, %d, v5" % (2 * i * 8192))
    g("global_load_dwordx4 %s, v6, %s%s" % (v(BUF0 + 4 * i, 4), sp(P_WQ), NT))
for e in range(16):
    g("v_mov_b32 %s, 0" % v(QF + e))
g.c("---- K/V per-lane base offsets")
g("s_lshl_b32 %s, %s, 12" % (s(S_T0), s(S_PAIR)))
g("s_lshl_b32 %s, %s, 4" % (s(S_T1), s(S_START)))
g("s_add_u32 %s, %s, %s" % (s(S_T0), s(S_T0), s(S_T1)))
g("s_lshl_b32 %s, %s, 8" % (s(S_T0), s(S_T0)))
g("v_and_b32 v9, 15, %s" % v(VL))
g("v_lshrrev_b32 v10, 4, %s" % v(VL))
g("v_lshlrev_b32 v11, 8, v9")
g("v_lshl_add_u32 v11, v10, 4, v11")
g("v_add_u32 v11, %s, v11" % s(S_T0))
g("v_lshlrev_b32 v60, 8, v10")
g("v_lshl_add_u32 v60, v9, 4, v60")
g("v_add_u32 v60, %s, v60" % s(S_T0))
g("s_lshl_b32 %s, %s, 12" % (s(S_U5), s(S_U5)))
g("v_add_u32 v61, %s, v60" % s(S_U5))
g("s_waitcnt vmcnt(0)")
for bb in range(2):
    for i in range(3):
        g("v_lshlrev_b32 %s, 16, %s" % (v(SS + bb * 3 + i), v(SS + bb * 3 + i)))
for i in range(3):
    for e in range(4):
        g("v_lshlrev_b32 v7, 16, %s" % v(BUF0 + 4 * i + e))
        g("v_and_b32 v8, 0xffff0000, %s" % v(BUF0 + 4 * i + e))
        for bb in range(2):
            g("v_fmac_f32 %s, %s, v7" % (v(QF + bb * 8 + 2 * e), v(SS + bb * 3 + i)))
            g("v_fmac_f32 %s, %s, v8" % (v(QF + bb * 8 + 2 * e + 1), v(SS + bb * 3 + i)))
g("s_lshl_b32 %s, %s, 12" % (s(S_T0), s(S_WAVE)))
g("v_lshlrev_b32 v5, 11, v3")
g("v_lshl_add_u32 v5, v4, 5, v5")
g("v_add_u32 v5, %s, v5" % s(S_T0))
for bb in range(2):
    g("ds_write_b128 v5, %s offset:%d" % (v(QF + bb * 8, 4), LA_QRED2 + bb * 1024))
    g("ds_write_b128 v5, %s offset:%d" % (v(QF + bb * 8 + 4, 4), LA_QRED2 + bb * 1024 + 16))
barrier()


PACE = {"n": 0}


def pace():
    if PACE["n"] >= WIN:
        g("s_waitcnt vmcnt(%d)" % (WIN - 1))
    PACE["n"] += 1


def k_issue(u):
    if u < 5:
        g("v_add_u32 v6, %d, v11" % (u * 4096))
    else:
        g("v_add_u32 v6, %s, v11" % s(S_U5))
    for j in range(4):
        pace()
        g("global_load_dwordx4 %s, v6, %s offset:%d%s" % (v(BUF1 + (u * 4 + j) * 4, 4), sp(P_K), j * 64, NT))


def v_issue(u):
    for i in range(4 * u, 4 * u + 4):
        if u < 5:
            g("v_add_u32 v6, %d, v60" % (i * 1024))
        else:
            g("v_add_u32 v6, %d, v61" % ((i - 20) * 1024))
        pace()
        g("global_load_dwordx4 %s, v6, %s%s" % (v(BUF0 + i * 4, 4), sp(P_V), NT))


NV_PRE = 2


def k_stage():
    PACE["n"] = 0
    for u in range(6 + NV_PRE):
        if u < 6:
            k_issue(u)
        else:
            v_issue(u - 6)


lw0 = g.newlabel("AW0")
lwj = g.newlabel("AWJ")
g("s_cmp_eq_u32 %s, 0" % s(S_WAVE))
g("s_cbranch_scc1 %s" % lw0)
stamp(7)
k_stage()
stamp(8)
g("s_barrier")
stamp(9)
g("s_branch %s" % lwj)
g.label(lw0)
g.c("wave 0: sum partial q, publish, gather")
get_nonce(6, 7, S_T1)
g("v_lshlrev_b32 v5, 4, %s" % v(VL))
for i in range(16):
    for bb in range(2):
        g("ds_read_b128 %s, v5 offset:%d" % (v(BUF0 + (i * 2 + bb) * 4, 4), LA_QRED2 + i * 2048 + bb * 1024))
g("s_waitcnt lgkmcnt(0)")
for st in (8, 4, 2, 1):
    for i in range(st):
        for k in range(8):
            g("v_add_f32 %s, %s, %s" % (v(BUF0 + i * 8 + k), v(BUF0 + i * 8 + k), v(BUF0 + (i + st) * 8 + k)))
g("s_mul_i32 %s, %s, 6" % (s(S_T0), s(S_B)))
g("s_add_u32 %s, %s, %s" % (s(S_T0), s(S_T0), s(S_SPLIT)))
g("s_mul_i32 %s, %s, 12" % (s(S_T1), s(S_KVH)))
g("s_add_u32 %s, %s, %s" % (s(S_T0), s(S_T0), s(S_T1)))
g("s_lshl_b32 %s, %s, 11" % (s(S_T0), s(S_T0)))
g("s_add_u32 %s, %s, 0x%x" % (s(S_T0), s(S_T0), WS_QPART))
g("v_add_u32 v6, %s, v5" % s(S_T0))
g("global_store_dwordx4 v6, %s, %s sc1" % (v(BUF0, 4), sp(P_WS)))
g("global_store_dwordx4 v6, %s, %s offset:1024 sc1" % (v(BUF0 + 4, 4), sp(P_WS)))
g("s_waitcnt vmcnt(0)")
g("s_mul_i32 %s, %s, 6" % (s(S_T0), s(S_B)))
g("s_add_u32 %s, %s, %s" % (s(S_T0), s(S_T0), s(S_SPLIT)))
g("s_lshl_b32 %s, %s, 2" % (s(S_T0), s(S_T0)))
g("s_lshl_b32 %s, %s, 7" % (s(S_T1), s(S_KVH)))
g("s_add_u32 %s, %s, 0x%x" % (s(S_T1), s(S_T1), WS_FA1))
g("s_add_u32 %s, %s, %s" % (s(S_T0), s(S_T0), s(S_T1)))
g("v_mov_b32 v6, %s" % s(S_T0))
set_ws(6, 7, 1)
stamp(7)
g("v_lshl_add_u32 v6, %s, 2, %s" % (v(VL), s(S_T1)))
poll_ws(6, 7, 12, S_T1)
stamp(8)
g("s_mul_i32 %s, %s, %d" % (s(S_T0), s(S_KVH), 12 * 2048))
g("s_lshl_b32 %s, %s, 10" % (s(S_T1), s(S_B)))
g("s_add_u32 %s, %s, %s" % (s(S_T0), s(S_T0), s(S_T1)))
g("s_add_u32 %s, %s, 0x%x" % (s(S_T0), s(S_T0), WS_QPART))
g("v_add_u32 v6, %s, v5" % s(S_T0))
for i in range(12):
    g("v_add_u32 v7, %d, v6" % (2048 * i))
    g("global_load_dwordx4 %s, v7, %s sc1" % (v(BUF1 + 4 * i, 4), sp(P_WS)))
g("s_waitcnt vmcnt(0)")
for i in range(1, 12):
    for k in range(4):
        g("v_add_f32 %s, %s, %s" % (v(BUF1 + k), v(BUF1 + k), v(BUF1 + 4 * i + k)))
g("v_cvt_pk_bf16_f32 v6, %s, %s" % (v(BUF1), v(BUF1 + 1)))
g("v_cvt_pk_bf16_f32 v7, %s, %s" % (v(BUF1 + 2), v(BUF1 + 3)))
g("v_lshlrev_b32 v5, 3, %s" % v(VL))
g("ds_write_b64 v5, v[6:7] offset:%d" % LA_QBF)
barrier()
stamp(9)
k_stage()
g.label(lwj)
g.c("---- q frags (A operand): row = l&15 (<2), slab = l>>4")
for i in range(16):
    g("v_mov_b32 %s, 0" % v(QF + i))
g("v_lshlrev_b32 v5, 8, v9")
g("v_lshl_add_u32 v5, v10, 4, v5")
g("v_cmp_gt_u32 vcc, 2, v9")
g("s_and_saveexec_b64 %s, vcc" % sp(58))
for j in range(4):
    g("ds_read_b128 %s, v5 offset:%d" % (v(QF + 4 * j, 4), LA_QBF + 64 * j))
g("s_mov_b64 exec, %s" % sp(58))
v_issue(2)
g("s_waitcnt lgkmcnt(0)")
stamp(1)
g.c("---- QK")
g("s_waitcnt vmcnt(12)")
for u in range(6):
    for j in range(4):
        cc = "0" if j == 0 else v(SS + 4 * u, 4)
        g("v_mfma_f32_16x16x32_bf16 %s, %s, %s, %s" % (v(SS + 4 * u, 4), v(QF + 4 * j, 4), v(BUF1 + (u * 4 + j) * 4, 4), cc))
v_issue(3)
g("s_nop 7")
g.c("---- softmax (lanes 0..15 valid)")
stamp(2)
g("v_add_f32 %s, %s, %s" % (v(SS + 20), s(S_MASK5), v(SS + 20)))
g("v_add_f32 %s, %s, %s" % (v(SS + 21), s(S_MASK5), v(SS + 21)))
VM0, VM1, VL0, VL1 = 3, 4, 7, 8
for h in range(2):
    m = VM0 + h
    g("v_max3_f32 %s, %s, %s, %s" % (v(m), v(SS + h), v(SS + 4 + h), v(SS + 8 + h)))
    g("v_max3_f32 %s, %s, %s, %s" % (v(m), v(m), v(SS + 12 + h), v(SS + 16 + h)))
    g("v_max_f32 %s, %s, %s" % (v(m), v(m), v(SS + 20 + h)))
    allreduce16("v_max_f32", m)
g("v_mul_f32 v5, %s, %s" % (s(S_CEXP), v(VM0)))
g("v_mul_f32 v6, %s, %s" % (s(S_CEXP), v(VM1)))
for u in range(6):
    g("v_fma_f32 %s, %s, %s, -v5" % (v(SS + 4 * u), v(SS + 4 * u), s(S_CEXP)))
    g("v_fma_f32 %s, %s, %s, -v6" % (v(SS + 4 * u + 1), v(SS + 4 * u + 1), s(S_CEXP)))
for u in range(6):
    g("v_exp_f32 %s, %s" % (v(SS + 4 * u), v(SS + 4 * u)))
    g("v_exp_f32 %s, %s" % (v(SS + 4 * u + 1), v(SS + 4 * u + 1)))
v_issue(4)
for u in range(6):
    g("v_cvt_pk_bf16_f32 %s, %s, %s" % (v(SS + 4 * u + 2), v(SS + 4 * u), v(SS + 4 * u + 1)))
for h in range(2):
    l = VL0 + h
    g("v_add_f32 %s, %s, %s" % (v(l), v(SS + h), v(SS + 4 + h)))
    for u in range(2, 6):
        g("v_add_f32 %s, %s, %s" % (v(l), v(l), v(SS + 4 * u + h)))
    allreduce16("v_add_f32", l)
g("s_mul_i32 %s, %s, 384" % (s(S_T0), s(S_WAVE)))
g("v_and_b32 v5, 3, v9")
g("v_mul_u32_u24 v5, 48, v5")
g("v_lshrrev_b32 v6, 2, v9")
g("v_lshl_add_u32 v5, v6, 1, v5")
g("v_add_u32 v5, %s, v5" % s(S_T0))
g("s_mov_b64 exec, 0xffff")
for u in range(6):
    g("ds_write_b16 v5, %s offset:%d" % (v(SS + 4 * u + 2), LA_PBUF + 8 * u))
    g("ds_write_b16_d16_hi v5, %s offset:%d" % (v(SS + 4 * u + 2), LA_PBUF + 192 + 8 * u))
g("s_mov_b64 exec, -1")
v_issue(5)
g.c("---- wo slice prefetch into BUF1 (8 x dwordx3)")
g("s_lshl_b32 %s, %s, 8" % (s(S_T0), s(S_KVH)))
g("s_lshl_b32 %s, %s, 5" % (s(S_T1), s(S_WAVE)))
g("s_add_u32 %s, %s, %s" % (s(S_T0), s(S_T0), s(S_T1)))
g("s_mul_i32 %s, %s, 1152" % (s(S_T0), s(S_T0)))
g("s_mul_i32 %s, %s, 192" % (s(S_T1), s(S_SPLIT)))
g("s_add_u32 %s, %s, %s" % (s(S_T0), s(S_T0), s(S_T1)))
g("v_mul_u32_u24 v5, 2304, v10")
g("v_mul_u32_u24 v6, 12, v9")
g("v_add3_u32 v5, v5, v6, %s" % s(S_T0))
for jj in range(4):
    for t in range(2):
        g("v_add_u32 v6, %d, v5" % ((8 * jj + t) * 1152))
        g("global_load_dwordx3 %s, v6, %s" % (v(BUF1 + (jj * 2 + t) * 4, 3), sp(P_WO)))
g("s_mov_b64 exec, 1")
g("v_mov_b32 v60, %s" % v(VM0))
g("v_mov_b32 v61, %s" % v(VL0))
g("v_mov_b32 v62, %s" % v(VM1))
g("v_mov_b32 v63, %s" % v(VL1))
g("s_lshl_b32 %s, %s, 4" % (s(S_T0), s(S_WAVE)))
g("v_mov_b32 v3, %s" % s(S_T0))
g("ds_write_b128 v3, v[60:63] offset:%d" % LA_STAT)
g("s_mov_b64 exec, -1")
g("s_waitcnt lgkmcnt(0)")
g("s_mul_i32 %s, %s, 384" % (s(S_T0), s(S_WAVE)))
g("v_mul_u32_u24 v5, 48, v10")
g("v_add_u32 v5, %s, v5" % s(S_T0))
P2 = SS
for h in range(2):
    for q in range(3):
        g("ds_read_b128 %s, v5 offset:%d" % (v(P2 + h * 12 + q * 4, 4), LA_PBUF + h * 192 + q * 16))
OA = QF
for i in range(16):
    g("v_mov_b32 %s, 0" % v(OA + i))
g("s_waitcnt lgkmcnt(0)")
g.c("---- PV")
for j in range(12):
    g("s_waitcnt vmcnt(%d)" % (24 - 2 * (j + 1) + 8))
    r0 = BUF0 + (2 * j) * 4
    r1 = r0 + 4
    for e in range(4):
        g("v_perm_b32 v7, %s, %s, %s" % (v(r1 + e), v(r0 + e), s(S_SELLO)))
        g("v_perm_b32 v8, %s, %s, %s" % (v(r1 + e), v(r0 + e), s(S_SELHI)))
        for h in range(2):
            g("v_dot2_f32_bf16 %s, v7, %s, %s" % (v(OA + h * 8 + 2 * e), v(P2 + h * 12 + j), v(OA + h * 8 + 2 * e)))
            g("v_dot2_f32_bf16 %s, v8, %s, %s" % (v(OA + h * 8 + 2 * e + 1), v(P2 + h * 12 + j), v(OA + h * 8 + 2 * e + 1)))
stamp(3)
g.c("---- WG reduce of o")
g("s_lshl_b32 %s, %s, 12" % (s(S_T0), s(S_WAVE)))
g("v_lshlrev_b32 v5, 10, v10")
g("v_lshl_add_u32 v5, v9, 5, v5")
g("v_add_u32 v5, %s, v5" % s(S_T0))
for h in range(2):
    g("ds_write_b128 v5, %s offset:%d" % (v(OA + h * 8, 4), LA_ORED + h * 512))
    g("ds_write_b128 v5, %s offset:%d" % (v(OA + h * 8 + 4, 4), LA_ORED + h * 512 + 16))
barrier()
la1 = g.newlabel("ARED")
g("s_cmp_ge_u32 %s, 4" % s(S_WAVE))
g("s_cbranch_scc1 %s" % la1)
g("v_lshrrev_b32 v3, 7, v0")
g("v_lshlrev_b32 v4, 3, v3")
for w in range(8):
    g("ds_read_b64 %s, v4 offset:%d" % (v(SS + 2 * w, 2), LA_STAT + 16 * w))
g("v_lshlrev_b32 v5, 2, v0")
for i in range(32):
    g("ds_read_b32 %s, v5 offset:%d" % (v(BUF0 + i), LA_ORED + i * 1024))
g("s_waitcnt lgkmcnt(0)")
g("v_max3_f32 v6, %s, %s, %s" % (v(SS), v(SS + 2), v(SS + 4)))
g("v_max3_f32 v6, v6, %s, %s" % (v(SS + 6), v(SS + 8)))
g("v_max3_f32 v6, v6, %s, %s" % (v(SS + 10), v(SS + 12)))
g("v_max_f32 v6, v6, %s" % v(SS + 14))
for w in range(8):
    g("v_sub_f32 %s, %s, v6" % (v(SS + 2 * w), v(SS + 2 * w)))
    g("v_mul_f32 %s, %s, %s" % (v(SS + 2 * w), s(S_CEXP), v(SS + 2 * w)))
    g("v_exp_f32 %s, %s" % (v(SS + 2 * w), v(SS + 2 * w)))
g("v_mov_b32 v7, 0")
g("v_mov_b32 v8, 0")
for w in range(8):
    g("v_fmac_f32 v7, %s, %s" % (v(SS + 2 * w), v(SS + 2 * w + 1)))
    g("v_add_f32 %s, %s, %s" % (v(BUF0 + 4 * w), v(BUF0 + 4 * w), v(BUF0 + 4 * w + 1)))
    g("v_add_f32 %s, %s, %s" % (v(BUF0 + 4 * w + 2), v(BUF0 + 4 * w + 2), v(BUF0 + 4 * w + 3)))
    g("v_add_f32 %s, %s, %s" % (v(BUF0 + 4 * w), v(BUF0 + 4 * w), v(BUF0 + 4 * w + 2)))
    g("v_fmac_f32 v8, %s, %s" % (v(SS + 2 * w), v(BUF0 + 4 * w)))
g("s_mul_i32 %s, %s, 6" % (s(S_T0), s(S_PAIR)))
g("s_add_u32 %s, %s, %s" % (s(S_T0), s(S_T0), s(S_SPLIT)))
g("s_lshl_b32 %s, %s, 10" % (s(S_T1), s(S_T0)))
g("s_add_u32 %s, %s, 0x%x" % (s(S_T1), s(S_T1), WS_APART))
g("v_add_u32 v5, %s, v5" % s(S_T1))
g("global_store_dword v5, v8, %s sc1" % sp(P_WS))
g("s_lshl_b32 %s, %s, 4" % (s(S_T1), s(S_T0)))
g("s_add_u32 %s, %s, 0x%x" % (s(S_T1), s(S_T1), WS_ASTAT))
g("v_add_u32 v4, %s, v4" % s(S_T1))
g("v_and_b32 v3, 127, v0")
g("v_cmp_eq_u32 vcc, 0, v3")
g("s_and_saveexec_b64 %s, vcc" % sp(58))
lz = g.newlabel("ASTZ")
g("s_cbranch_execz %s" % lz)
g("global_store_dwordx2 v4, v[6:7], %s sc1" % sp(P_WS))
g.label(lz)
g("s_mov_b64 exec, %s" % sp(58))
g.label(la1)
g("s_waitcnt vmcnt(0)")
g("s_barrier")
lf = g.newlabel("AFL")
g("s_cmp_lg_u32 %s, 0" % s(S_WAVE))
g("s_cbranch_scc1 %s" % lf)
g("s_lshl_b32 %s, %s, 7" % (s(S_T1), s(S_PAIR)))
g("s_add_u32 %s, %s, 0x%x" % (s(S_T1), s(S_T1), WS_FA2))
g("s_lshl_b32 %s, %s, 2" % (s(S_T0), s(S_SPLIT)))
g("s_add_u32 %s, %s, %s" % (s(S_T0), s(S_T0), s(S_T1)))
g("v_mov_b32 v5, %s" % s(S_T0))
set_ws(5, 6, 1)
g("v_lshl_add_u32 v5, %s, 2, %s" % (v(VL), s(S_T1)))
poll_ws(5, 6, 6, S_T1)
g.label(lf)
g("s_barrier")
stamp(4)
g.c("---- combine")
la2 = g.newlabel("ACMB")
g("s_cmp_ge_u32 %s, 4" % s(S_WAVE))
g("s_cbranch_scc1 %s" % la2)
g("s_mul_i32 %s, %s, 6" % (s(S_T0), s(S_PAIR)))
g("s_lshl_b32 %s, %s, 10" % (s(S_T1), s(S_T0)))
g("s_add_u32 %s, %s, 0x%x" % (s(S_T1), s(S_T1), WS_APART))
g("v_lshl_add_u32 v5, v0, 2, %s" % s(S_T1))
for i in range(6):
    g("v_add_u32 v6, %d, v5" % (1024 * i))
    g("global_load_dword %s, v6, %s sc1" % (v(SS + 12 + i), sp(P_WS)))
g("s_lshl_b32 %s, %s, 4" % (s(S_T1), s(S_T0)))
g("s_add_u32 %s, %s, 0x%x" % (s(S_T1), s(S_T1), WS_ASTAT))
g("v_lshrrev_b32 v3, 7, v0")
g("v_lshl_add_u32 v4, v3, 3, %s" % s(S_T1))
for i in range(6):
    g("global_load_dwordx2 %s, v4, %s offset:%d sc1" % (v(SS + 2 * i, 2), sp(P_WS), 16 * i))
g("s_waitcnt vmcnt(0)")
g("v_max3_f32 v6, %s, %s, %s" % (v(SS), v(SS + 2), v(SS + 4)))
g("v_max3_f32 v6, v6, %s, %s" % (v(SS + 6), v(SS + 8)))
g("v_max_f32 v6, v6, %s" % v(SS + 10))
for i in range(6):
    g("v_sub_f32 %s, %s, v6" % (v(SS + 2 * i), v(SS + 2 * i)))
    g("v_mul_f32 %s, %s, %s" % (v(SS + 2 * i), s(S_CEXP), v(SS + 2 * i)))
    g("v_exp_f32 %s, %s" % (v(SS + 2 * i), v(SS + 2 * i)))
g("v_mov_b32 v7, 0")
g("v_mov_b32 v8, 0")
for i in range(6):
    g("v_fmac_f32 v7, %s, %s" % (v(SS + 2 * i), v(SS + 2 * i + 1)))
    g("v_fmac_f32 v8, %s, %s" % (v(SS + 2 * i), v(SS + 12 + i)))
g("v_rcp_f32 v7, v7")
g("s_nop 0")
g("v_mul_f32 v8, v8, v7")
g("v_cvt_pk_bf16_f32 v6, v8, v8")
g("v_lshlrev_b32 v5, 1, v0")
g("ds_write_b16 v5, v6 offset:%d" % LA_OBF)
g.label(la2)
barrier()
g.c("---- wo projection: wave rows 32w + 8jj + 2r + t")
g("s_lshl_b32 %s, %s, 6" % (s(S_T0), s(S_WAVE)))
g("v_lshl_add_u32 v5, v10, 2, %s" % s(S_T0))
for jj in range(4):
    g("ds_read_b32 %s, v5 offset:%d" % (v(SS + jj), LA_OBF + 16 * jj))
for e in range(6):
    g("v_mov_b32 %s, 0" % v(QF + e))
g("s_waitcnt lgkmcnt(0)")
for jj in range(4):
    r0 = BUF1 + (jj * 2) * 4
    r1 = r0 + 4
    for e in range(3):
        g("v_perm_b32 v7, %s, %s, %s" % (v(r1 + e), v(r0 + e), s(S_SELLO)))
        g("v_perm_b32 v8, %s, %s, %s" % (v(r1 + e), v(r0 + e), s(S_SELHI)))
        g("v_dot2_f32_bf16 %s, v7, %s, %s" % (v(QF + 2 * e), v(SS + jj), v(QF + 2 * e)))
        g("v_dot2_f32_bf16 %s, v8, %s, %s" % (v(QF + 2 * e + 1), v(SS + jj), v(QF + 2 * e + 1)))
g("s_mul_i32 %s, %s, 1536" % (s(S_T0), s(S_WAVE)))
g("v_mul_u32_u24 v5, 384, v10")
g("v_mul_u32_u24 v6, 24, v9")
g("v_add3_u32 v5, v5, v6, %s" % s(S_T0))
for e in range(3):
    g("ds_write_b64 v5, %s offset:%d" % (v(QF + 2 * e, 2), LA_YRED + 8 * e))
barrier()
la3 = g.newlabel("AY")
g("v_cmp_gt_u32 vcc, 96, v0")
g("s_and_saveexec_b64 %s, vcc" % sp(58))
g("s_cbranch_execz %s" % la3)
g("v_lshlrev_b32 v5, 2, v0")
for i in range(32):
    g("ds_read_b32 %s, v5 offset:%d" % (v(BUF0 + i), LA_YRED + i * 384))
g("s_waitcnt lgkmcnt(0)")
for st in (16, 8, 4, 2, 1):
    for i in range(st):
        g("v_add_f32 %s, %s, %s" % (v(BUF0 + i), v(BUF0 + i), v(BUF0 + i + st)))
g("s_mul_i32 %s, %s, 2304" % (s(S_T0), s(S_PAIR)))
g("s_mul_i32 %s, %s, 384" % (s(S_T1), s(S_SPLIT)))
g("s_add_u32 %s, %s, %s" % (s(S_T0), s(S_T0), s(S_T1)))
g("s_add_u32 %s, %s, 0x%x" % (s(S_T0), s(S_T0), WS_YA))
g("v_add_u32 v5, %s, v5" % s(S_T0))
g("global_store_dword v5, %s, %s sc1" % (v(BUF0), sp(P_WS)))
g.label(la3)
g("s_mov_b64 exec, %s" % sp(58))
g("s_waitcnt vmcnt(0)")
g("s_barrier")
lf2 = g.newlabel("AFL2")
g("s_cmp_lg_u32 %s, 0" % s(S_WAVE))
g("s_cbranch_scc1 %s" % lf2)
g("s_mul_i32 %s, %s, 6" % (s(S_T0), s(S_B)))
g("s_add_u32 %s, %s, %s" % (s(S_T0), s(S_T0), s(S_SPLIT)))
g("s_lshl_b32 %s, %s, 7" % (s(S_T0), s(S_T0)))
g("s_lshl_b32 %s, %s, 2" % (s(S_T1), s(S_KVH)))
g("s_add_u32 %s, %s, %s" % (s(S_T0), s(S_T0), s(S_T1)))
g("s_add_u32 %s, %s, 0x%x" % (s(S_T0), s(S_T0), WS_FA3))
g("v_mov_b32 v5, %s" % s(S_T0))
set_ws(5, 6, 1)
g.label(lf2)
stamp(5)
g.c("---- finalizer: kvh == 0")
g("s_cmp_lg_u32 %s, 0" % s(S_KVH))
g("s_cbranch_scc1 L_A_END")
lfin = g.newlabel("FIN")
g("s_cmp_lg_u32 %s, 0" % s(S_WAVE))
g("s_cbranch_scc1 %s" % lfin)
g.c("gate: wave 0 computes g for batch b")
g("s_mul_i32 %s, %s, 1152" % (s(S_T0), s(S_B)))
g("v_lshl_add_u32 v5, %s, 1, %s" % (v(VL), s(S_T0)))
g("v_lshlrev_b32 v6, 1, %s" % v(VL))
for i in range(9):
    g("global_load_ushort %s, v5, %s offset:%d" % (v(SS + i), sp(P_AX), 128 * i))
    g("global_load_ushort %s, v6, %s offset:%d" % (v(SS + 9 + i), sp(P_GW), 128 * i))
g("s_waitcnt vmcnt(0)")
g("v_mov_b32 v7, 0")
for i in range(9):
    g("v_lshlrev_b32 %s, 16, %s" % (v(SS + i), v(SS + i)))
    g("v_lshlrev_b32 %s, 16, %s" % (v(SS + 9 + i), v(SS + 9 + i)))
    g("v_mul_f32 %s, %s, %s" % (v(SS + i), v(SS + i), v(SS + 9 + i)))
    g("v_cvt_pk_bf16_f32 %s, %s, %s" % (v(SS + i), v(SS + i), v(SS + i)))
    g("v_lshlrev_b32 %s, 16, %s" % (v(SS + i), v(SS + i)))
    g("v_add_f32 v7, v7, %s" % v(SS + i))
allreduce16("v_add_f32", 7)
g("s_nop 1")
xreduce_16_32("v_add_f32", 7, 8)
g("v_cvt_pk_bf16_f32 v7, v7, v7")
g("v_lshlrev_b32 v7, 16, v7")
g("v_mul_f32 v7, %s, v7" % f32hex(-math.log2(math.e)))
g("v_exp_f32 v7, v7")
g("s_nop 0")
g("v_add_f32 v7, 1.0, v7")
g("v_rcp_f32 v7, v7")
g("s_nop 0")
g("v_cvt_pk_bf16_f32 v7, v7, v7")
g("v_lshlrev_b32 v7, 16, v7")
g("v_mov_b32 v5, 0")
g("ds_write_b32 v5, v7 offset:%d" % LA_G)
g.c("poll A flags (16 kvh) and B flags (64)")
g("s_mul_i32 %s, %s, 6" % (s(S_T0), s(S_B)))
g("s_add_u32 %s, %s, %s" % (s(S_T0), s(S_T0), s(S_SPLIT)))
g("s_lshl_b32 %s, %s, 7" % (s(S_T2), s(S_T0)))
g("s_add_u32 %s, %s, 0x%x" % (s(S_T2), s(S_T2), WS_FA3))
g("v_lshl_add_u32 v5, %s, 2, %s" % (v(VL), s(S_T2)))
poll_ws(5, 6, 16, S_T1)
g("s_lshl_b32 %s, %s, 8" % (s(S_T2), s(S_T0)))
g("s_add_u32 %s, %s, 0x%x" % (s(S_T2), s(S_T2), WS_FB3))
g("v_lshl_add_u32 v5, %s, 2, %s" % (v(VL), s(S_T2)))
poll_ws(5, 6, 64, S_T1)
g.label(lfin)
barrier()
lf3 = g.newlabel("FIN2")
g("v_cmp_gt_u32 vcc, 480, v0")
g("s_and_saveexec_b64 %s, vcc" % sp(58))
g("s_cbranch_execz %s" % lf3)
g("v_mul_u32_u24 v3, 683, v0")
g("v_lshrrev_b32 v3, 16, v3")
g("v_mul_u32_u24 v4, 96, v3")
g("v_sub_u32 v4, v0, v4")
g("s_mul_i32 %s, %s, %d" % (s(S_T0), s(S_B), 16 * 2304))
g("s_add_u32 %s, %s, 0x%x" % (s(S_T0), s(S_T0), WS_YA))
g("s_mul_i32 %s, %s, %d" % (s(S_T1), s(S_B), 64 * 2304))
g("s_add_u32 %s, %s, 0x%x" % (s(S_T1), s(S_T1), WS_YB - 16 * 2304))
g("v_mul_u32_u24 v5, %d, v3" % (16 * 2304))
g("v_add_u32 v5, %s, v5" % s(S_T1))
g("v_mov_b32 v6, %s" % s(S_T0))
g("v_cmp_eq_u32 vcc, 0, v3")
g("s_nop 1")
g("v_cndmask_b32 v5, v5, v6, vcc")
g("s_mul_i32 %s, %s, 384" % (s(S_T2), s(S_SPLIT)))
g("v_lshl_add_u32 v5, v4, 2, v5")
g("v_add_u32 v5, %s, v5" % s(S_T2))
for i in range(16):
    g("v_add_u32 v6, %d, v5" % (2304 * i))
    g("global_load_dword %s, v6, %s sc1" % (v(BUF0 + i), sp(P_WS)))
g("s_waitcnt vmcnt(0)")
for st in (8, 4, 2, 1):
    for i in range(st):
        g("v_add_f32 %s, %s, %s" % (v(BUF0 + i), v(BUF0 + i), v(BUF0 + i + st)))
g("v_lshlrev_b32 v5, 2, v0")
g("ds_write_b32 v5, %s offset:%d" % (v(BUF0), LA_FIN))
g.label(lf3)
g("s_mov_b64 exec, %s" % sp(58))
barrier()
g("v_cmp_gt_u32 vcc, 96, v0")
g("s_and_saveexec_b64 %s, vcc" % sp(58))
g("s_cbranch_execz L_A_END")
g("v_lshlrev_b32 v5, 2, v0")
for i in range(5):
    g("ds_read_b32 %s, v5 offset:%d" % (v(SS + i), LA_FIN + 384 * i))
g("v_mov_b32 v6, 0")
g("ds_read_b32 v7, v6 offset:%d" % LA_G)
g("s_waitcnt lgkmcnt(0)")
g("v_add_f32 %s, %s, %s" % (v(SS + 1), v(SS + 1), v(SS + 2)))
g("v_add_f32 %s, %s, %s" % (v(SS + 3), v(SS + 3), v(SS + 4)))
g("v_add_f32 %s, %s, %s" % (v(SS + 1), v(SS + 1), v(SS + 3)))
g("v_cvt_pk_bf16_f32 v8, %s, %s" % (v(SS), v(SS + 1)))
g("v_lshlrev_b32 %s, 16, v8" % v(SS))
g("v_and_b32 %s, 0xffff0000, v8" % v(SS + 1))
g("v_sub_f32 v8, 1.0, v7")
g("v_mul_f32 %s, v7, %s" % (v(SS), v(SS)))
g("v_cvt_pk_bf16_f32 v8, v8, v8")
g("v_lshlrev_b32 v8, 16, v8")
g("v_mul_f32 %s, v8, %s" % (v(SS + 1), v(SS + 1)))
g("v_cvt_pk_bf16_f32 v8, %s, %s" % (v(SS), v(SS + 1)))
g("v_lshlrev_b32 %s, 16, v8" % v(SS))
g("v_and_b32 %s, 0xffff0000, v8" % v(SS + 1))
g("v_add_f32 v8, %s, %s" % (v(SS), v(SS + 1)))
g("v_cvt_pk_bf16_f32 v8, v8, v8")
g("s_mul_i32 %s, %s, 1152" % (s(S_T0), s(S_B)))
g("s_mul_i32 %s, %s, 192" % (s(S_T1), s(S_SPLIT)))
g("s_add_u32 %s, %s, %s" % (s(S_T0), s(S_T0), s(S_T1)))
g("v_lshl_add_u32 v5, v0, 1, %s" % s(S_T0))
g("global_store_short v5, v8, %s" % sp(P_OUT))
g.label("L_A_END")
g("s_mov_b64 exec, -1")
stamp(6)
dump_stamps(10)
g("s_branch L_END")

S_H, S_HALF, S_B2, S_SP2 = 44, 45, 46, 47
LB_U = 131072
g.label("L_ROLE_B")
g.c("---- role B setup")
stamp(0)
g("s_and_b32 %s, s2, 7" % s(S_T0))
g("s_lshr_b32 %s, s2, 3" % s(S_T1))
g("s_lshl_b32 %s, %s, 2" % (s(S_H), s(S_T0)))
g("s_lshr_b32 %s, %s, 1" % (s(S_T2), s(S_T1)))
g("s_add_u32 %s, %s, %s" % (s(S_H), s(S_H), s(S_T2)))
g("s_and_b32 %s, %s, 1" % (s(S_HALF), s(S_T1)))
g("s_lshr_b32 %s, s2, 5" % s(S_B2))
g("s_and_b32 %s, s2, 31" % s(S_SP2))
g("v_and_b32 v9, 15, %s" % v(VL))
g("v_lshrrev_b32 v10, 4, %s" % v(VL))
XP = 12
BACC = 30
WQB = 64
WUKR = 136
g.c("B1 loads: xp[b][j] = dword idx 36w + 4j + r")
g("s_mul_i32 %s, %s, 144" % (s(S_T0), s(S_WAVE)))
g("v_lshl_add_u32 v5, v10, 2, %s" % s(S_T0))
for b in range(2):
    for j in range(9):
        g("global_load_dword %s, v5, %s offset:%d" % (v(XP + b * 9 + j), sp(P_AX), b * 1152 + 16 * j))
g("s_mul_i32 %s, %s, %d" % (s(S_T0), s(S_WAVE), 72 * 8192))
g("s_lshl_b32 %s, %s, 8" % (s(S_T1), s(S_H)))
g("s_add_u32 %s, %s, %s" % (s(S_T0), s(S_T0), s(S_T1)))
g("v_lshlrev_b32 v5, 14, v10")
g("v_lshl_add_u32 v5, v9, 4, v5")
g("v_add_u32 v5, %s, v5" % s(S_T0))
for j in range(9):
    for t in range(2):
        g("v_add_u32 v6, 0x%x, v5" % ((8 * j + t) * 8192))
        g("global_load_dwordx4 %s, v6, %s" % (v(WQB + (2 * j + t) * 4, 4), sp(P_BWQ)))
g("s_lshl_b32 %s, %s, 8" % (s(S_T0), s(S_HALF)))
g("s_lshl_b32 %s, %s, 5" % (s(S_T2), s(S_WAVE)))
g("s_add_u32 %s, %s, %s" % (s(S_T0), s(S_T0), s(S_T2)))
g("s_lshl_b32 %s, %s, 13" % (s(S_T2), s(S_T0)))
g("s_add_u32 %s, %s, %s" % (s(S_T2), s(S_T2), s(S_T1)))
g("v_lshlrev_b32 v5, 13, v9")
g("v_lshl_add_u32 v5, v10, 4, v5")
g("v_add_u32 v5, %s, v5" % s(S_T2))
for gq in range(2):
    g("v_add_u32 v6, 0x%x, v5" % (gq * 16 * 8192))
    for st in range(4):
        g("global_load_dwordx4 %s, v6, %s offset:%d%s" % (v(WUKR + (gq * 4 + st) * 4, 4), sp(P_WUK), st * 64, NT))
g.c("C tile DMA: rows 16w + i ; lds = row*1024 ; src chunk = lane ^ (2*(row&7))")
g("s_lshl_b32 %s, %s, 12" % (s(S_T0), s(S_B2)))
g("s_lshl_b32 %s, %s, 7" % (s(S_T1), s(S_SP2)))
g("s_add_u32 %s, %s, %s" % (s(S_T0), s(S_T0), s(S_T1)))
g("s_lshl_b32 %s, %s, 4" % (s(S_T1), s(S_WAVE)))
g("s_add_u32 %s, %s, %s" % (s(S_T0), s(S_T0), s(S_T1)))
g("s_lshl_b32 %s, %s, 10" % (s(S_T0), s(S_T0)))
g("s_lshl_b32 %s, %s, 14" % (s(S_T1), s(S_WAVE)))
for i in range(16):
    g("v_xor_b32 v6, %d, %s" % (2 * (i & 7), v(VL)))
    g("v_lshlrev_b32 v6, 4, v6")
    g("s_add_u32 %s, %s, %d" % (s(S_T2), s(S_T0), i * 1024))
    g("v_add_u32 v6, %s, v6" % s(S_T2))
    g("s_add_u32 m0, %s, %d" % (s(S_T1), i * 1024))
    g("s_nop 0")
    g("global_load_lds_dwordx4 v6, %s%s" % (sp(P_CKV), NT))
for e in range(16):
    g("v_mov_b32 %s, 0" % v(BACC + e))
for j in range(9):
    g("s_waitcnt vmcnt(%d)" % (16 + 8 + 18 - 2 * (j + 1)))
    r0 = WQB + (2 * j) * 4
    r1 = r0 + 4
    for e in range(4):
        g("v_perm_b32 v7, %s, %s, %s" % (v(r1 + e), v(r0 + e), s(S_SELLO)))
        g("v_perm_b32 v8, %s, %s, %s" % (v(r1 + e), v(r0 + e), s(S_SELHI)))
        for b in range(2):
            g("v_dot2_f32_bf16 %s, v7, %s, %s" % (v(BACC + b * 8 + 2 * e), v(XP + b * 9 + j), v(BACC + b * 8 + 2 * e)))
            g("v_dot2_f32_bf16 %s, v8, %s, %s" % (v(BACC + b * 8 + 2 * e + 1), v(XP + b * 9 + j), v(BACC + b * 8 + 2 * e + 1)))
g("s_lshl_b32 %s, %s, 12" % (s(S_T0), s(S_WAVE)))
g("v_lshlrev_b32 v5, 10, v10")
g("v_lshl_add_u32 v5, v9, 5, v5")
g("v_add_u32 v5, %s, v5" % s(S_T0))
g("v_add_u32 v5, %d, v5" % LB_U)
for b in range(2):
    g("ds_write_b128 v5, %s offset:%d" % (v(BACC + b * 8, 4), b * 512))
    g("ds_write_b128 v5, %s offset:%d" % (v(BACC + b * 8 + 4, 4), b * 512 + 16))
barrier()
lb1 = g.newlabel("B1S")
g("s_cmp_ge_u32 %s, 4" % s(S_WAVE))
g("s_cbranch_scc1 %s" % lb1)
g("v_lshlrev_b32 v5, 2, v0")
g("v_add_u32 v5, %d, v5" % LB_U)
for i in range(32):
    g("ds_read_b32 %s, v5 offset:%d" % (v(WQB + i), i * 1024))
g("s_waitcnt lgkmcnt(0)")
for st in (16, 8, 4, 2, 1):
    for i in range(st):
        g("v_add_f32 %s, %s, %s" % (v(WQB + i), v(WQB + i), v(WQB + i + st)))
g.label(lb1)
barrier()
lb2 = g.newlabel("B1W")
g("s_cmp_ge_u32 %s, 4" % s(S_WAVE))
g("s_cbranch_scc1 %s" % lb2)
g("v_cvt_pk_bf16_f32 v6, %s, %s" % (v(WQB), v(WQB)))
g("v_lshlrev_b32 v5, 1, v0")
g("v_add_u32 v5, %d, v5" % LB_U)
g("ds_write_b16 v5, v6")
g.label(lb2)
barrier()
g.c("q frags (B operand): col n<2 = batch ; slab g")
QFB = 48
for i in range(16):
    g("v_mov_b32 %s, 0" % v(QFB + i))
g("v_lshlrev_b32 v5, 8, v9")
g("v_lshl_add_u32 v5, v10, 4, v5")
g("v_add_u32 v5, %d, v5" % LB_U)
g("v_cmp_gt_u32 vcc, 2, v9")
g("s_and_saveexec_b64 %s, vcc" % sp(58))
for j in range(4):
    g("ds_read_b128 %s, v5 offset:%d" % (v(QFB + 4 * j, 4), 64 * j))
g("s_mov_b64 exec, %s" % sp(58))
g("s_waitcnt vmcnt(16) lgkmcnt(0)")
DQ = 12
for gq in range(2):
    for st in range(4):
        cc = "0" if st == 0 else v(DQ + 4 * gq, 4)
        g("v_mfma_f32_16x16x32_bf16 %s, %s, %s, %s" % (v(DQ + 4 * gq, 4), v(WUKR + (gq * 4 + st) * 4, 4), v(QFB + 4 * st, 4), cc))
g("s_nop 7")
g("s_nop 1")
g("s_lshl_b32 %s, %s, 8" % (s(S_T0), s(S_HALF)))
g("s_lshl_b32 %s, %s, 5" % (s(S_T2), s(S_WAVE)))
g("s_add_u32 %s, %s, %s" % (s(S_T0), s(S_T0), s(S_T2)))
g("s_lshl_b32 %s, %s, 1" % (s(S_T0), s(S_T0)))
g("s_lshl_b32 %s, %s, 10" % (s(S_T1), s(S_H)))
g("s_add_u32 %s, %s, %s" % (s(S_T0), s(S_T0), s(S_T1)))
g("v_lshlrev_b32 v5, 15, v9")
g("v_lshl_add_u32 v5, v10, 3, v5")
g("v_add_u32 v5, %s, v5" % s(S_T0))
for gq in range(2):
    g("v_cvt_pk_bf16_f32 %s, %s, %s" % (v(20 + 2 * gq), v(DQ + 4 * gq), v(DQ + 4 * gq + 1)))
    g("v_cvt_pk_bf16_f32 %s, %s, %s" % (v(21 + 2 * gq), v(DQ + 4 * gq + 2), v(DQ + 4 * gq + 3)))
g("v_cmp_gt_u32 vcc, 2, v9")
g("s_and_saveexec_b64 %s, vcc" % sp(58))
for gq in range(2):
    g("global_store_dwordx2 v5, %s, %s offset:%d sc1" % (v(20 + 2 * gq, 2), sp(P_WS), WS_QABS + 32 * gq))
g("s_mov_b64 exec, %s" % sp(58))
stamp(1)
g("s_waitcnt vmcnt(0)")
g("s_barrier")
lb3 = g.newlabel("B1F")
g("s_cmp_lg_u32 %s, 0" % s(S_WAVE))
g("s_cbranch_scc1 %s" % lb3)
get_nonce(5, 6, S_T1)
g("s_lshl_b32 %s, s2, 2" % s(S_T0))
g("s_add_u32 %s, %s, 0x%x" % (s(S_T0), s(S_T0), WS_FB1))
g("v_lshl_add_u32 v5, %s, 8, %s" % (v(VL), s(S_T0)))
set_ws(5, 6, 8)
g("s_and_b32 %s, s2, 7" % s(S_T0))
g("s_lshl_b32 %s, %s, 8" % (s(S_T0), s(S_T0)))
g("s_add_u32 %s, %s, 0x%x" % (s(S_T0), s(S_T0), WS_FB1))
g("v_lshl_add_u32 v5, %s, 2, %s" % (v(VL), s(S_T0)))
poll_ws(5, 6, 64, S_T1)
g.label(lb3)
g("s_waitcnt vmcnt(0)")
g("s_barrier")
stamp(2)
g.c("---- B2: load q_abs[b2] -> LDS U (swizzled)")
g("s_lshl_b32 %s, %s, 15" % (s(S_T0), s(S_B2)))
g("s_lshl_b32 %s, %s, 12" % (s(S_T1), s(S_WAVE)))
g("s_add_u32 %s, %s, %s" % (s(S_T0), s(S_T0), s(S_T1)))
g("v_lshl_add_u32 v5, %s, 4, %s" % (v(VL), s(S_T0)))
for i in range(4):
    g("global_load_dwordx4 %s, v5, %s offset:%d sc1" % (v(64 + 4 * i, 4), sp(P_WS), WS_QABS + 1024 * i))
g("s_and_b32 %s, %s, 1" % (s(S_T2), s(S_WAVE)))
g("s_lshl_b32 %s, %s, 3" % (s(S_T2), s(S_T2)))
for i in range(4):
    g("s_add_u32 %s, %s, %d" % (s(S_T3), s(S_T2), 2 * i))
    g("v_xor_b32 %s, %s, %s" % (v(80 + i), s(S_T3), v(VL)))
    g("v_lshlrev_b32 %s, 4, %s" % (v(80 + i), v(80 + i)))
    g("v_add_u32 %s, %s, %s" % (v(80 + i), s(S_T1), v(80 + i)))
g("s_waitcnt vmcnt(0)")
for i in range(4):
    g("v_add_u32 %s, %d, %s" % (v(80 + i), LB_U + 1024 * i, v(80 + i)))
for i in range(4):
    g("ds_write_b128 %s, %s" % (v(80 + i), v(64 + 4 * i, 4)))
barrier()
g.c("QK^T: S^T[hg] (keys x heads)")
g("v_and_b32 v5, 7, v9")
g("v_lshlrev_b32 v5, 1, v5")
g("v_xor_b32 v5, v5, v10")
g("v_lshlrev_b32 v5, 4, v5")
g("s_lshl_b32 %s, %s, 14" % (s(S_T0), s(S_WAVE)))
g("v_lshlrev_b32 v6, 10, v9")
g("v_add_u32 v7, %s, v6" % s(S_T0))
g("v_add_u32 v8, %d, v6" % LB_U)
SQ = 12
FR = 64
nb = 4
for bt in range(4):
    base = FR + (bt & 1) * 48
    for k in range(4):
        st = bt * 4 + k
        g("v_xor_b32 v3, %d, v5" % (st * 64))
        g("v_add_u32 v4, v3, v7")
        g("v_add_u32 v3, v3, v8")
        g("ds_read_b128 %s, v4" % v(base + k * 12, 4))
        g("ds_read_b128 %s, v3" % v(base + k * 12 + 4, 4))
        g("ds_read_b128 %s, v3 offset:16384" % v(base + k * 12 + 8, 4))
    if bt > 0:
        g("s_waitcnt lgkmcnt(12)")
        pb = FR + ((bt - 1) & 1) * 48
        for k in range(4):
            st = (bt - 1) * 4 + k
            for hg in range(2):
                cc = "0" if st == 0 else v(SQ + 4 * hg, 4)
                g("v_mfma_f32_16x16x32_bf16 %s, %s, %s, %s" % (v(SQ + 4 * hg, 4), v(pb + k * 12, 4), v(pb + k * 12 + 4 + 4 * hg, 4), cc))
g("s_waitcnt lgkmcnt(0)")
pb = FR + 48
for k in range(4):
    for hg in range(2):
        g("v_mfma_f32_16x16x32_bf16 %s, %s, %s, %s" % (v(SQ + 4 * hg, 4), v(pb + k * 12, 4), v(pb + k * 12 + 4 + 4 * hg, 4), v(SQ + 4 * hg, 4)))
g("s_nop 7")
g("s_nop 1")
MW = 20
for hg in range(2):
    g("v_max3_f32 %s, %s, %s, %s" % (v(MW + hg), v(SQ + 4 * hg), v(SQ + 4 * hg + 1), v(SQ + 4 * hg + 2)))
    g("v_max_f32 %s, %s, %s" % (v(MW + hg), v(MW + hg), v(SQ + 4 * hg + 3)))
    xreduce_16_32("v_max_f32", MW + hg, 3)
g("s_barrier")
LB_WM = LB_U
LB_WL = LB_U + 1024
LB_P = LB_U + 2048
PSTR = 288
g("s_lshl_b32 %s, %s, 7" % (s(S_T0), s(S_WAVE)))
g("v_lshl_add_u32 v3, v9, 2, %s" % s(S_T0))
g("v_add_u32 v3, %d, v3" % LB_U)
g("s_mov_b64 exec, 0xffff")
g("ds_write_b32 v3, %s" % v(MW))
g("ds_write_b32 v3, %s offset:64" % v(MW + 1))
g("s_mov_b64 exec, -1")
barrier()
g("v_lshlrev_b32 v4, 2, v9")
g("v_add_u32 v4, %d, v4" % LB_U)
for hg in range(2):
    for w in range(8):
        g("ds_read_b32 %s, v4 offset:%d" % (v(64 + hg * 8 + w), w * 128 + hg * 64))
g("s_waitcnt lgkmcnt(0)")
MG = 22
for hg in range(2):
    b0 = 64 + hg * 8
    g("v_max3_f32 %s, %s, %s, %s" % (v(MG + hg), v(b0), v(b0 + 1), v(b0 + 2)))
    g("v_max3_f32 %s, %s, %s, %s" % (v(MG + hg), v(MG + hg), v(b0 + 3), v(b0 + 4)))
    g("v_max3_f32 %s, %s, %s, %s" % (v(MG + hg), v(MG + hg), v(b0 + 5), v(b0 + 6)))
    g("v_max_f32 %s, %s, %s" % (v(MG + hg), v(MG + hg), v(b0 + 7)))
    g("v_mul_f32 v3, %s, %s" % (s(S_CEXP), v(MG + hg)))
    for r in range(4):
        g("v_fma_f32 %s, %s, %s, -v3" % (v(SQ + 4 * hg + r), v(SQ + 4 * hg + r), s(S_CEXP)))
    for r in range(4):
        g("v_exp_f32 %s, %s" % (v(SQ + 4 * hg + r), v(SQ + 4 * hg + r)))
LW = 24
for hg in range(2):
    g("v_add_f32 %s, %s, %s" % (v(LW + hg), v(SQ + 4 * hg), v(SQ + 4 * hg + 1)))
    g("v_add_f32 v3, %s, %s" % (v(SQ + 4 * hg + 2), v(SQ + 4 * hg + 3)))
    g("v_add_f32 %s, %s, v3" % (v(LW + hg), v(LW + hg)))
    xreduce_16_32("v_add_f32", LW + hg, 3)
g("s_lshl_b32 %s, %s, 5" % (s(S_T0), s(S_WAVE)))
g("v_mul_u32_u24 v4, %d, v9" % PSTR)
g("v_lshl_add_u32 v4, v10, 3, v4")
g("v_add_u32 v4, %s, v4" % s(S_T0))
g("v_add_u32 v4, %d, v4" % LB_P)
for hg in range(2):
    g("v_cvt_pk_bf16_f32 %s, %s, %s" % (v(26 + 2 * hg), v(SQ + 4 * hg), v(SQ + 4 * hg + 1)))
    g("v_cvt_pk_bf16_f32 %s, %s, %s" % (v(27 + 2 * hg), v(SQ + 4 * hg + 2), v(SQ + 4 * hg + 3)))
    g("ds_write_b64 v4, %s offset:%d" % (v(26 + 2 * hg, 2), hg * 16 * PSTR))
g("s_lshl_b32 %s, %s, 7" % (s(S_T0), s(S_WAVE)))
g("v_lshl_add_u32 v3, v9, 2, %s" % s(S_T0))
g("v_add_u32 v3, %d, v3" % LB_WL)
g("s_mov_b64 exec, 0xffff")
g("ds_write_b32 v3, %s" % v(LW))
g("ds_write_b32 v3, %s offset:64" % v(LW + 1))
g("s_mov_b64 exec, -1")
barrier()
g.c("stats by wave 0: lanes 0..15 for hg 0,1")
lb4 = g.newlabel("B2S")
g("s_cmp_lg_u32 %s, 0" % s(S_WAVE))
g("s_cbranch_scc1 %s" % lb4)
g("v_lshlrev_b32 v4, 2, v9")
g("v_add_u32 v4, %d, v4" % LB_WL)
for hg in range(2):
    for w in range(8):
        g("ds_read_b32 %s, v4 offset:%d" % (v(64 + hg * 8 + w), w * 128 + hg * 64))
g("s_waitcnt lgkmcnt(0)")
for hg in range(2):
    b0 = 64 + hg * 8
    for st in (4, 2, 1):
        for i in range(st):
            g("v_add_f32 %s, %s, %s" % (v(b0 + i), v(b0 + i), v(b0 + i + st)))
g("s_lshl_b32 %s, s2, 8" % s(S_T0))
g("s_add_u32 %s, %s, 0x%x" % (s(S_T0), s(S_T0), WS_BSTAT))
g("v_lshl_add_u32 v4, v9, 3, %s" % s(S_T0))
g("s_mov_b64 exec, 0xffff")
for hg in range(2):
    g("v_mov_b32 v6, %s" % v(MG + hg))
    g("v_mov_b32 v7, %s" % v(64 + hg * 8))
    g("global_store_dwordx2 v4, v[6:7], %s offset:%d sc1" % (sp(P_WS), hg * 128))
    g("s_nop 1")
g("s_mov_b64 exec, -1")
g.label(lb4)
g.c("PV: D[hg][cg] = C^T x P^T")
g("v_lshrrev_b32 v3, 2, v9")
g("v_lshl_add_u32 v3, v10, 2, v3")
g("v_and_b32 v4, 7, v3")
g("v_lshlrev_b32 v4, 1, v4")
g("v_lshlrev_b32 v3, 10, v3")
g("v_and_b32 v5, 3, v9")
g("v_lshrrev_b32 v6, 1, v5")
g("v_and_b32 v5, 1, v5")
g("v_lshl_add_u32 v3, v5, 3, v3")
g("s_lshl_b32 %s, %s, 3" % (s(S_T0), s(S_WAVE)))
g("v_add_u32 v6, %s, v6" % s(S_T0))
AD = 32
for cg in range(4):
    g("v_add_u32 v7, %d, v6" % (2 * cg))
    g("v_xor_b32 v7, v7, v4")
    g("v_lshl_add_u32 %s, v7, 4, v3" % v(AD + cg))
    g("v_add_u32 %s, 0x10000, %s" % (v(AD + 4 + cg), v(AD + cg)))
g("v_mul_u32_u24 v7, %d, v9" % PSTR)
g("v_lshl_add_u32 v7, v10, 3, v7")
g("v_add_u32 v7, %d, v7" % LB_P)
PF = 40
g("v_add_u32 v8, %d, v7" % (16 * PSTR))
for hg in range(2):
    for ks in range(4):
        g("ds_read2_b64 %s, %s offset0:%d offset1:%d" % (v(PF + (hg * 4 + ks) * 4, 4), "v7" if hg == 0 else "v8", ks * 8, ks * 8 + 4))
CF = 80
for cg in range(4):
    for ks in range(4):
        a = AD + cg + (4 if ks >= 2 else 0)
        off = (ks & 1) * 32768
        g("ds_read_b64_tr_b16 %s, %s offset:%d" % (v(CF + (cg * 4 + ks) * 4, 2), v(a), off))
        g("ds_read_b64_tr_b16 %s, %s offset:%d" % (v(CF + (cg * 4 + ks) * 4 + 2, 2), v(a), off + 16384))
g("s_waitcnt lgkmcnt(0)")
DA = 144
for ks in range(4):
    for hg in range(2):
        for cg in range(4):
            d = DA + (hg * 4 + cg) * 4
            cc = "0" if ks == 0 else v(d, 4)
            g("v_mfma_f32_16x16x32_bf16 %s, %s, %s, %s" % (v(d, 4), v(CF + (cg * 4 + ks) * 4, 4), v(PF + (hg * 4 + ks) * 4, 4), cc))
g("s_nop 7")
g("s_nop 1")
g("s_lshl_b32 %s, s2, 15" % s(S_T0))
g("s_lshl_b32 %s, %s, 7" % (s(S_T1), s(S_WAVE)))
g("s_add_u32 %s, %s, %s" % (s(S_T0), s(S_T0), s(S_T1)))
g("s_add_u32 %s, %s, 0x%x" % (s(S_T0), s(S_T0), WS_BPART))
g("v_lshlrev_b32 v3, 10, v9")
g("v_lshl_add_u32 v3, v10, 5, v3")
g("v_add_u32 v3, %s, v3" % s(S_T0))
for hg in range(2):
    for cg in range(4):
        d = DA + (hg * 4 + cg) * 4
        o = 64 + hg * 8 + cg * 2
        g("v_cvt_pk_bf16_f32 %s, %s, %s" % (v(o), v(d), v(d + 1)))
        g("v_cvt_pk_bf16_f32 %s, %s, %s" % (v(o + 1), v(d + 2), v(d + 3)))
g("v_add_u32 v4, 16384, v3")
g("global_store_dwordx4 v3, %s, %s sc1" % (v(64, 4), sp(P_WS)))
g("global_store_dwordx4 v3, %s, %s offset:16 sc1" % (v(68, 4), sp(P_WS)))
g("global_store_dwordx4 v4, %s, %s sc1" % (v(72, 4), sp(P_WS)))
g("global_store_dwordx4 v4, %s, %s offset:16 sc1" % (v(76, 4), sp(P_WS)))
g("s_waitcnt vmcnt(0)")
g("s_barrier")
lb5 = g.newlabel("B2F")
g("s_cmp_lg_u32 %s, 0" % s(S_WAVE))
g("s_cbranch_scc1 %s" % lb5)
g("s_lshl_b32 %s, s2, 2" % s(S_T0))
g("s_add_u32 %s, %s, 0x%x" % (s(S_T0), s(S_T0), WS_FB2))
g("v_lshl_add_u32 v5, %s, 8, %s" % (v(VL), s(S_T0)))
set_ws(5, 6, 8)
g.label(lb5)
stamp(3)
lb6 = g.newlabel("B3P")
g("s_cmp_lg_u32 %s, 0" % s(S_WAVE))
g("s_cbranch_scc1 %s" % lb6)
g("s_and_b32 %s, s2, 7" % s(S_T0))
g("s_lshl_b32 %s, %s, 8" % (s(S_T0), s(S_T0)))
g("s_add_u32 %s, %s, 0x%x" % (s(S_T0), s(S_T0), WS_FB2))
g("v_lshl_add_u32 v5, %s, 2, %s" % (v(VL), s(S_T0)))
poll_ws(5, 6, 64, S_T1)
g.label(lb6)
g.c("---- B3: DMA w_uv tile (64 KiB @0) and w_o tile (72 KiB @65536)")
LB_WO = 65536
LB_CRED = 139264
LB_CBF = 155648
LB_XRED = 157696
LB_XBF = 161792
g("v_lshrrev_b32 v3, 3, %s" % v(VL))
g("v_and_b32 v4, 7, %s" % v(VL))
g("v_lshrrev_b32 v5, 1, v3")
g("v_and_b32 v5, 3, v5")
g("v_lshlrev_b32 v5, 1, v5")
g("v_xor_b32 v4, v4, v5")
g("v_lshlrev_b32 v4, 4, v4")
g("v_lshl_add_u32 v4, v3, 13, v4")
g("s_lshl_b32 %s, %s, 8" % (s(S_T0), s(S_H)))
g("s_lshl_b32 %s, %s, 7" % (s(S_T1), s(S_HALF)))
g("s_add_u32 %s, %s, %s" % (s(S_T0), s(S_T0), s(S_T1)))
g("s_lshl_b32 %s, %s, 19" % (s(S_T1), s(S_WAVE)))
g("s_add_u32 %s, %s, %s" % (s(S_T0), s(S_T0), s(S_T1)))
g("v_add_u32 v4, %s, v4" % s(S_T0))
g("s_lshl_b32 %s, %s, 13" % (s(S_T1), s(S_WAVE)))
for i in range(8):
    g("v_add_u32 v6, 0x%x, v4" % (i * 8 * 8192))
    g("s_add_u32 m0, %s, %d" % (s(S_T1), i * 1024))
    g("s_nop 0")
    g("global_load_lds_dwordx4 v6, %s%s" % (sp(P_WUV), NT))
g("s_lshl_b32 %s, %s, 7" % (s(S_T0), s(S_H)))
g("s_lshl_b32 %s, %s, 6" % (s(S_T1), s(S_HALF)))
g("s_add_u32 %s, %s, %s" % (s(S_T0), s(S_T0), s(S_T1)))
g("s_mul_i32 %s, %s, 1152" % (s(S_T0), s(S_T0)))
g("s_mul_i32 %s, %s, 576" % (s(S_T1), s(S_WAVE)))
g("s_mov_b32 %s, 58255" % s(S_T3))
for i in range(9):
    g("v_add_u32 v3, %s, %s" % (s(S_T1), v(VL)))
    g("v_add_u32 v3, %d, v3" % (64 * i))
    g("v_mul_lo_u32 v4, v3, %s" % s(S_T3))
    g("v_lshrrev_b32 v4, 22, v4")
    g("v_mul_u32_u24 v5, 72, v4")
    g("v_sub_u32 v5, v3, v5")
    g("v_lshrrev_b32 v6, 1, v4")
    g("v_and_b32 v6, 3, v6")
    g("v_lshlrev_b32 v6, 1, v6")
    g("v_xor_b32 v5, v5, v6")
    g("v_mul_u32_u24 v4, 1152, v4")
    g("v_lshl_add_u32 v4, v5, 4, v4")
    g("v_add_u32 v4, %s, v4" % s(S_T0))
    g("s_lshl_b32 %s, %s, 4" % (s(S_T2), s(S_T1)))
    g("s_add_u32 m0, %s, %d" % (s(S_T2), LB_WO + 1024 * i))
    g("s_nop 0")
    g("global_load_lds_dwordx4 v4, %s%s" % (sp(P_BWO), NT))
g("s_barrier")
stamp(4)
g.c("combine partials: wave w: b = w>>2 ; splits 8(w&3)+i")
g("s_lshr_b32 %s, %s, 2" % (s(S_T0), s(S_WAVE)))
g("s_and_b32 %s, %s, 3" % (s(S_T1), s(S_WAVE)))
g("s_lshl_b32 %s, %s, 3" % (s(S_T1), s(S_T1)))
g("s_lshl_b32 %s, %s, 5" % (s(S_T2), s(S_T0)))
g("s_add_u32 %s, %s, %s" % (s(S_T2), s(S_T2), s(S_T1)))
g("s_lshl_b32 %s, %s, 15" % (s(S_T2), s(S_T2)))
g("s_lshl_b32 %s, %s, 10" % (s(S_T3), s(S_H)))
g("s_add_u32 %s, %s, %s" % (s(S_T2), s(S_T2), s(S_T3)))
g("s_add_u32 %s, %s, 0x%x" % (s(S_T2), s(S_T2), WS_BPART))
g("v_lshl_add_u32 v3, %s, 4, %s" % (v(VL), s(S_T2)))
for i in range(8):
    g("v_add_u32 v4, 0x%x, v3" % (i * 32768))
    g("global_load_dwordx4 %s, v4, %s sc1" % (v(64 + 4 * i, 4), sp(P_WS)))
g("s_lshl_b32 %s, %s, 13" % (s(S_T2), s(S_T0)))
g("s_lshl_b32 %s, %s, 3" % (s(S_T3), s(S_H)))
g("s_add_u32 %s, %s, %s" % (s(S_T2), s(S_T2), s(S_T3)))
g("s_add_u32 %s, %s, 0x%x" % (s(S_T2), s(S_T2), WS_BSTAT))
g("v_and_b32 v4, 31, %s" % v(VL))
g("v_lshl_add_u32 v4, v4, 8, %s" % s(S_T2))
g("global_load_dwordx2 v[6:7], v4, %s sc1" % sp(P_WS))
g("s_waitcnt vmcnt(0)")
g("v_mov_b32 v5, v6")
allreduce16("v_max_f32", 5)
g("v_mov_b32 v3, v5")
g("s_nop 1")
g("v_permlane16_swap_b32 v5, v3")
g("s_nop 1")
g("v_max_f32 v5, v5, v3")
g("v_sub_f32 v6, v6, v5")
g("v_mul_f32 v6, %s, v6" % s(S_CEXP))
g("v_exp_f32 v6, v6")
g("s_nop 0")
g("v_mul_f32 v7, v6, v7")
allreduce16("v_add_f32", 7)
g("v_mov_b32 v3, v7")
g("s_nop 1")
g("v_permlane16_swap_b32 v7, v3")
g("s_nop 1")
g("v_add_f32 v7, v7, v3")
g("v_rcp_f32 v7, v7")
g("s_nop 0")
g("v_mul_f32 v6, v6, v7")
g("s_nop 0")
for i in range(8):
    g("s_add_u32 %s, %s, %d" % (s(S_T3), s(S_T1), i))
    g("v_readlane_b32 %s, v6, %s" % (s(60 + i), s(S_T3)))
CA = 12
for e in range(8):
    g("v_mov_b32 %s, 0" % v(CA + e))
g("s_nop 1")
for i in range(8):
    for e in range(4):
        g("v_lshlrev_b32 v3, 16, %s" % v(64 + 4 * i + e))
        g("v_and_b32 v4, 0xffff0000, %s" % v(64 + 4 * i + e))
        g("v_fmac_f32 %s, %s, v3" % (v(CA + 2 * e), s(60 + i)))
        g("v_fmac_f32 %s, %s, v4" % (v(CA + 2 * e + 1), s(60 + i)))
g("v_lshrrev_b32 v3, 3, %s" % v(VL))
g("v_bfe_u32 v4, %s, 1, 2" % v(VL))
g("v_and_b32 v5, 1, %s" % v(VL))
g("v_lshlrev_b32 v3, 8, v3")
g("v_lshl_add_u32 v3, v5, 7, v3")
g("v_lshl_add_u32 v3, v4, 4, v3")
g("s_lshl_b32 %s, %s, 11" % (s(S_T2), s(S_WAVE)))
g("v_add_u32 v3, %s, v3" % s(S_T2))
g("v_add_u32 v3, %d, v3" % LB_CRED)
g("ds_write_b128 v3, %s" % v(CA, 4))
g("ds_write_b128 v3, %s offset:64" % v(CA + 4, 4))
barrier()
g("v_lshrrev_b32 v3, 8, v0")
g("v_and_b32 v4, 255, v0")
g("v_lshlrev_b32 v5, 13, v3")
g("v_lshl_add_u32 v5, v4, 3, v5")
g("v_add_u32 v5, %d, v5" % LB_CRED)
for i in range(4):
    g("ds_read_b64 %s, v5 offset:%d" % (v(CA + 2 * i, 2), 2048 * i))
g("s_waitcnt lgkmcnt(0)")
for k in range(2):
    g("v_add_f32 %s, %s, %s" % (v(CA + k), v(CA + k), v(CA + 2 + k)))
    g("v_add_f32 %s, %s, %s" % (v(CA + 4 + k), v(CA + 4 + k), v(CA + 6 + k)))
    g("v_add_f32 %s, %s, %s" % (v(CA + k), v(CA + k), v(CA + 4 + k)))
g("v_cvt_pk_bf16_f32 v6, %s, %s" % (v(CA), v(CA + 1)))
g("v_lshlrev_b32 v5, 2, v0")
g("v_add_u32 v5, %d, v5" % LB_CBF)
g("ds_write_b32 v5, v6")
g("s_waitcnt vmcnt(0)")
barrier()
g.c("MFMA1: ctx[b][64d] partial over c in [64w, 64w+64)")
AF = 12
for i in range(8):
    g("v_mov_b32 %s, 0" % v(AF + i))
g("s_lshl_b32 %s, %s, 7" % (s(S_T0), s(S_WAVE)))
g("v_lshlrev_b32 v3, 10, v9")
g("v_lshl_add_u32 v3, v10, 3, v3")
g("v_add_u32 v3, %s, v3" % s(S_T0))
g("v_add_u32 v3, %d, v3" % LB_CBF)
g("v_cmp_gt_u32 vcc, 2, v9")
g("s_and_saveexec_b64 %s, vcc" % sp(58))
for ks in range(2):
    g("ds_read2_b64 %s, v3 offset0:%d offset1:%d" % (v(AF + 4 * ks, 4), ks * 8, ks * 8 + 4))
g("s_mov_b64 exec, %s" % sp(58))
g("v_lshrrev_b32 v3, 2, v9")
g("v_lshl_add_u32 v3, v10, 2, v3")
g("v_lshrrev_b32 v4, 1, v3")
g("v_and_b32 v4, 3, v4")
g("v_lshlrev_b32 v4, 1, v4")
g("v_lshlrev_b32 v3, 7, v3")
g("v_and_b32 v5, 1, v9")
g("v_lshl_add_u32 v3, v5, 3, v3")
g("s_lshl_b32 %s, %s, 13" % (s(S_T0), s(S_WAVE)))
g("v_add_u32 v3, %s, v3" % s(S_T0))
g("v_bfe_u32 v5, v9, 1, 1")
BFR = 64
for cg in range(4):
    g("v_add_u32 v6, %d, v5" % (2 * cg))
    g("v_xor_b32 v6, v6, v4")
    g("v_lshl_add_u32 v6, v6, 4, v3")
    for ks in range(2):
        g("ds_read_b64_tr_b16 %s, v6 offset:%d" % (v(BFR + (cg * 2 + ks) * 4, 2), ks * 4096))
        g("ds_read_b64_tr_b16 %s, v6 offset:%d" % (v(BFR + (cg * 2 + ks) * 4 + 2, 2), ks * 4096 + 2048))
g("s_waitcnt lgkmcnt(0)")
DX = 28
for ks in range(2):
    for cg in range(4):
        cc = "0" if ks == 0 else v(DX + 4 * cg, 4)
        g("v_mfma_f32_16x16x32_bf16 %s, %s, %s, %s" % (v(DX + 4 * cg, 4), v(AF + 4 * ks, 4), v(BFR + (cg * 2 + ks) * 4, 4), cc))
g("s_nop 7")
g("s_nop 1")
g("s_lshl_b32 %s, %s, 9" % (s(S_T0), s(S_WAVE)))
g("v_lshl_add_u32 v3, v9, 2, %s" % s(S_T0))
g("v_add_u32 v3, %d, v3" % LB_XRED)
g("s_mov_b64 exec, 0xffff")
for cg in range(4):
    g("ds_write_b32 v3, %s offset:%d" % (v(DX + 4 * cg), 64 * cg))
    g("ds_write_b32 v3, %s offset:%d" % (v(DX + 4 * cg + 1), 256 + 64 * cg))
g("s_mov_b64 exec, -1")
barrier()
lb7 = g.newlabel("B3X")
g("s_cmp_ge_u32 %s, 2" % s(S_WAVE))
g("s_cbranch_scc1 %s" % lb7)
g("v_lshlrev_b32 v3, 2, v0")
g("v_add_u32 v3, %d, v3" % LB_XRED)
for w in range(8):
    g("ds_read_b32 %s, v3 offset:%d" % (v(64 + w), 512 * w))
g("s_waitcnt lgkmcnt(0)")
for st in (4, 2, 1):
    for i in range(st):
        g("v_add_f32 %s, %s, %s" % (v(64 + i), v(64 + i), v(64 + i + st)))
g("v_cvt_pk_bf16_f32 v6, v64, v64")
g("v_lshlrev_b32 v3, 1, v0")
g("v_add_u32 v3, %d, v3" % LB_XBF)
g("ds_write_b16 v3, v6")
g.label(lb7)
barrier()
g.c("MFMA2: out partial = ctx[b][64] x w_o tile")
for i in range(8):
    g("v_mov_b32 %s, 0" % v(AF + i))
g("v_lshlrev_b32 v3, 7, v9")
g("v_lshl_add_u32 v3, v10, 3, v3")
g("v_add_u32 v3, %d, v3" % LB_XBF)
g("v_cmp_gt_u32 vcc, 2, v9")
g("s_and_saveexec_b64 %s, vcc" % sp(58))
for ks in range(2):
    g("ds_read2_b64 %s, v3 offset0:%d offset1:%d" % (v(AF + 4 * ks, 4), ks * 8, ks * 8 + 4))
g("s_mov_b64 exec, %s" % sp(58))
g("v_lshrrev_b32 v3, 2, v9")
g("v_lshl_add_u32 v3, v10, 2, v3")
g("v_lshrrev_b32 v4, 1, v3")
g("v_and_b32 v4, 3, v4")
g("v_lshlrev_b32 v4, 1, v4")
g("v_mul_u32_u24 v3, 1152, v3")
g("v_and_b32 v5, 1, v9")
g("v_lshl_add_u32 v3, v5, 3, v3")
g("v_add_u32 v3, %d, v3" % LB_WO)
g("v_bfe_u32 v5, v9, 1, 1")
g("s_lshl_b32 %s, %s, 1" % (s(S_T0), s(S_WAVE)))
g("v_add_u32 v5, %s, v5" % s(S_T0))
g("s_mul_i32 %s, s2, 2304" % s(S_T1))
g("s_add_u32 %s, %s, 0x%x" % (s(S_T1), s(S_T1), WS_YB))
g("s_lshl_b32 %s, %s, 6" % (s(S_T2), s(S_WAVE)))
g("s_add_u32 %s, %s, %s" % (s(S_T1), s(S_T1), s(S_T2)))
g("v_lshl_add_u32 v7, v9, 2, %s" % s(S_T1))
for i in range(5):
    lskip = None
    if i == 4:
        lskip = g.newlabel("B3K")
        g("s_cmp_ge_u32 %s, 4" % s(S_WAVE))
        g("s_cbranch_scc1 %s" % lskip)
    g("v_add_u32 v6, %d, v5" % (16 * i))
    g("v_xor_b32 v6, v6, v4")
    g("v_lshl_add_u32 v6, v6, 4, v3")
    for ks in range(2):
        g("ds_read_b64_tr_b16 %s, v6 offset:%d" % (v(BFR + ks * 4, 2), ks * 32 * 1152))
        g("ds_read_b64_tr_b16 %s, v6 offset:%d" % (v(BFR + ks * 4 + 2, 2), ks * 32 * 1152 + 16 * 1152))
    g("s_waitcnt lgkmcnt(0)")
    g("v_mfma_f32_16x16x32_bf16 %s, %s, %s, 0" % (v(DX, 4), v(AF, 4), v(BFR, 4)))
    g("v_mfma_f32_16x16x32_bf16 %s, %s, %s, %s" % (v(DX, 4), v(AF + 4, 4), v(BFR + 4, 4), v(DX, 4)))
    g("s_nop 7")
    g("s_nop 1")
    g("s_mov_b64 exec, 0xffff")
    g("v_add_u32 v8, %d, v7" % (512 * i))
    g("global_store_dword v8, %s, %s sc1" % (v(DX), sp(P_WS)))
    g("v_add_u32 v8, %d, v8" % (64 * 2304))
    g("global_store_dword v8, %s, %s sc1" % (v(DX + 1), sp(P_WS)))
    g("s_mov_b64 exec, -1")
    g("s_nop 1")
    if lskip:
        g.label(lskip)
g("s_waitcnt vmcnt(0)")
g("s_barrier")
g("s_cmp_lg_u32 %s, 0" % s(S_WAVE))
g("s_cbranch_scc1 L_B_END")
g("s_lshl_b32 %s, s2, 2" % s(S_T0))
g("s_add_u32 %s, %s, 0x%x" % (s(S_T0), s(S_T0), WS_FB3))
g("v_lshl_add_u32 v5, %s, 8, %s" % (v(VL), s(S_T0)))
set_ws(5, 6, 12)
g.label("L_B_END")
stamp(5)
stamp(6)
stamp(7)
stamp(8)
stamp(9)
dump_stamps(10)
g("s_waitcnt vmcnt(0)")
g.label("L_END")
g("s_endpgm")
g.L.append('.section .rodata,"a"')
g.L.append(".p2align 6")
g.L.append(".amdhsa_kernel %s" % NAME)
g.L.append("  .amdhsa_next_free_vgpr 256")
g.L.append("  .amdhsa_next_free_sgpr 102")
g.L.append("  .amdhsa_accum_offset 256")
g.L.append("  .amdhsa_group_segment_fixed_size 0")
g.L.append("  .amdhsa_kernarg_size 120")
g.L.append("  .amdhsa_user_sgpr_count 2")
g.L.append("  .amdhsa_user_sgpr_kernarg_segment_ptr 1")
g.L.append("  .amdhsa_system_sgpr_workgroup_id_x 1")
g.L.append(".end_amdhsa_kernel")

out = sys.argv[1] if len(sys.argv) > 1 else "gated_mix__gqa_block_cached__compressed_kv_cla__decode.s"
open(out, "w").write("\n".join(g.L) + "\n")
print("wrote", out, len(g.L), "lines")
```

```python
import sys, math

NAME = "gated_mix__gqa_block_cached__compressed_kv_cla__decode_kernel"

WS_QABS = 0x0
WS_BSTAT = 0x10000
WS_ASTAT = 0x14000
WS_APART = 0x18000
WS_YA = 0x48000
WS_YB = 0x60000
WS_BPART = 0x100000

CEXP = (128 ** -0.5) * math.log2(math.e)
SPIN_LIMIT = 1 << 20

P_AX, P_K, P_V, P_WQ, P_WO, P_BX, P_CKV, P_BWQ, P_WUK, P_WUV, P_BWO, P_GW, P_OUT, P_DBG, P_WS = [8 + 2 * i for i in range(15)]


def f32hex(x):
    import struct
    return "0x%08x" % struct.unpack("<I", struct.pack("<f", x))[0]


class G:
    def __init__(self):
        self.L = []
        self.nlabel = 0

    def __call__(self, s):
        self.L.append("    " + s)

    def label(self, name):
        self.L.append(name + ":")

    def newlabel(self, p="L"):
        self.nlabel += 1
        return "%s_%d" % (p, self.nlabel)

    def c(self, s):
        self.L.append("    ; " + s)


def v(n, cnt=1):
    return "v%d" % n if cnt == 1 else "v[%d:%d]" % (n, n + cnt - 1)


def s(n, cnt=1):
    return "s%d" % n if cnt == 1 else "s[%d:%d]" % (n, n + cnt - 1)


def sp(n):
    return s(n, 2)


g = G()
import os
STAMPS = os.environ.get("STAMPS", "0") == "1"
WS_TS = 0x400000
def stamp(i):
    if STAMPS:
        g("s_memrealtime %s" % sp(70 + 2 * i))
        g("s_waitcnt lgkmcnt(0)")
def dump_stamps(n):
    if STAMPS:
        lx = g.newlabel("TS")
        g("s_add_u32 s69, %s, 1" % s(S_WAVE))
        g("s_and_b32 s69, s69, 7")
        g("s_cmp_gt_u32 s69, 1")
        g("s_cbranch_scc1 %s" % lx)
        g("s_lshl_b32 s68, s2, 8")
        g("s_xor_b32 s69, s69, 1")
        g("s_lshl_b32 s69, s69, 7")
        g("s_add_u32 s68, s68, s69")
        g("s_add_u32 s68, s68, 0x%x" % WS_TS)
        g("v_mov_b32 v5, s68")
        for i in range(n):
            g("v_mov_b32 v6, %s" % s(70 + 2 * i))
            g("v_mov_b32 v7, %s" % s(71 + 2 * i))
            g("global_store_dwordx2 v5, v[6:7], %s offset:%d" % (sp(P_WS), 8 * i))
            g("s_nop 1")
        g.label(lx)

NT = " nt"


def barrier():
    g("s_waitcnt lgkmcnt(0)")
    g("s_barrier")


def allreduce16(op, reg, tmp=None):
    for r in (8, 4, 2, 1):
        g("s_nop 1")
        g("%s_dpp %s, %s, %s row_ror:%d row_mask:0xf bank_mask:0xf" % (op, v(reg), v(reg), v(reg), r))


def xreduce_16_32(op, reg, tmp):
    for ins in ("v_permlane16_swap_b32", "v_permlane32_swap_b32"):
        g("v_mov_b32 %s, %s" % (v(tmp), v(reg)))
        g("s_nop 1")
        g("%s %s, %s" % (ins, v(reg), v(tmp)))
        g("s_nop 1")
        g("%s %s, %s, %s" % (op, v(reg), v(reg), v(tmp)))


WS_FA1 = 0x380000
WS_FA2 = 0x381000
WS_FA3 = 0x382000
WS_FB1 = 0x384000
WS_FB2 = 0x385000
WS_FB3 = 0x386000
S_NONCE = 92
SLEEP = 2


def poll_ws(vaddr, vtmp, nlanes, scnt):
    lp = g.newlabel("POLL")
    le = g.newlabel("POLLX")
    g("s_mov_b32 %s, 0" % s(scnt))
    if nlanes < 64:
        g("s_mov_b64 exec, 0x%x" % ((1 << nlanes) - 1))
    g.label(lp)
    g("global_load_dword %s, %s, %s sc1" % (v(vtmp), v(vaddr), sp(P_WS)))
    g("s_waitcnt vmcnt(0)")
    g("v_cmp_ne_u32 vcc, %s, %s" % (s(S_NONCE), v(vtmp)))
    g("s_nop 1")
    g("s_cmp_eq_u64 vcc, 0")
    g("s_cbranch_scc1 %s" % le)
    g("s_add_u32 %s, %s, 1" % (s(scnt), s(scnt)))
    g("s_cmp_gt_u32 %s, %d" % (s(scnt), SPIN_LIMIT))
    g("s_cbranch_scc1 %s" % le)
    g("s_sleep %d" % SLEEP)
    g("s_branch %s" % lp)
    g.label(le)
    g("s_mov_b64 exec, -1")


def set_ws(vaddr, vt1, nlanes):
    g("v_mov_b32 %s, %s" % (v(vt1), s(S_NONCE)))
    g("s_mov_b64 exec, 0x%x" % ((1 << nlanes) - 1))
    g("global_store_dword %s, %s, %s sc1" % (v(vaddr), v(vt1), sp(P_WS)))
    g("s_mov_b64 exec, -1")


def make_nonce():
    le = g.newlabel("NMX")
    g("s_cmp_lg_u32 s2, 0")
    g("s_cbranch_scc1 %s" % le)
    g("s_cmp_lg_u32 %s, 0" % s(S_WAVE))
    g("s_cbranch_scc1 %s" % le)
    g("s_memrealtime %s" % sp(S_NONCE))
    g("s_waitcnt lgkmcnt(0)")
    g("s_or_b32 %s, %s, 1" % (s(S_NONCE), s(S_NONCE)))
    g("v_mov_b32 v3, 0")
    g("v_mov_b32 v4, %s" % s(S_NONCE))
    g("s_mov_b64 exec, 1")
    g("global_store_dword v3, v4, %s sc1" % sp(P_DBG))
    g("s_mov_b64 exec, -1")
    g.label(le)


def get_nonce(vt0, vt1, scnt):
    le = g.newlabel("NX")
    g("s_cmp_eq_u32 s2, 0")
    g("s_cbranch_scc1 %s" % le)
    g("v_mov_b32 %s, 0" % v(vt0))
    g("s_mov_b32 %s, 0" % s(scnt))
    lq = g.newlabel("NL")
    g.label(lq)
    g("global_load_dword %s, %s, %s sc1" % (v(vt1), v(vt0), sp(P_DBG)))
    g("s_waitcnt vmcnt(0)")
    g("v_readfirstlane_b32 %s, %s" % (s(S_NONCE), v(vt1)))
    g("s_nop 3")
    g("s_cmp_lg_u32 %s, 0" % s(S_NONCE))
    g("s_cbranch_scc1 %s" % le)
    g("s_add_u32 %s, %s, 1" % (s(scnt), s(scnt)))
    g("s_cmp_gt_u32 %s, %d" % (s(scnt), SPIN_LIMIT))
    g("s_cbranch_scc1 %s" % le)
    g("s_sleep 4")
    g("s_branch %s" % lq)
    g.label(le)


g.L.append("; @launch grid=(256,1,1) block=(512,1,1) lds=163840")
g.L.append('.amdgcn_target "amdgcn-amd-amdhsa--gfx950"')
g.L.append(".text")
g.L.append(".globl %s" % NAME)
g.L.append(".p2align 8")
g.L.append(".type %s,@function" % NAME)
g.label(NAME)
g("s_cmp_ge_u32 s2, 256")
g("s_cbranch_scc1 L_END")
g("s_load_dwordx16 s[8:23], s[0:1], 0")
g("s_load_dwordx8 s[24:31], s[0:1], 64")
g("s_load_dwordx4 s[32:35], s[0:1], 96")
g("s_load_dwordx2 s[36:37], s[0:1], 112")
S_WAVE = 40
S_SELLO, S_SELHI = 41, 42
S_CEXP = 43
g("v_lshrrev_b32 v1, 6, v0")
g("v_and_b32 v2, 63, v0")
g("s_nop 0")
g("v_readfirstlane_b32 %s, v1" % s(S_WAVE))
g("s_mov_b32 %s, 0x05040100" % s(S_SELLO))
g("s_mov_b32 %s, 0x07060302" % s(S_SELHI))
g("s_mov_b32 %s, %s" % (s(S_CEXP), f32hex(CEXP)))
g("s_waitcnt lgkmcnt(0)")
make_nonce()
g("s_cmp_lt_u32 s2, 64")
g("s_cbranch_scc1 L_ROLE_B")

VL = 2

S_KVH, S_B, S_SPLIT, S_PAIR, S_START, S_CNT = 44, 45, 46, 47, 48, 49
S_T0, S_T1, S_T2, S_T3 = 50, 51, 52, 53
S_MASK5 = 54
S_U5 = 55
S_FLAGB = 56
BUF0, BUF1 = 64, 160
QF = 12
QACC = 28
SS = 36

LA_QRED = 0
LA_QBF = 16384
LA_PBUF = 17408
LA_STAT = 20480
LA_ORED = 24576
LA_OBF = 57344
LA_YRED = 0
LA_FIN = 12288
LA_G = 14336

g.c("---- role A setup")
stamp(0)
g("s_sub_u32 %s, s2, 64" % s(S_T0))
g("s_and_b32 %s, %s, 7" % (s(S_T1), s(S_T0)))
g("s_lshr_b32 %s, %s, 3" % (s(S_T2), s(S_T0)))
g("s_and_b32 %s, %s, 1" % (s(S_T3), s(S_T2)))
g("s_lshl_b32 %s, %s, 1" % (s(S_KVH), s(S_T1)))
g("s_add_u32 %s, %s, %s" % (s(S_KVH), s(S_KVH), s(S_T3)))
g("s_lshr_b32 %s, %s, 1" % (s(S_T2), s(S_T2)))
g("s_cmp_ge_u32 %s, 6" % s(S_T2))
g("s_cselect_b32 %s, 1, 0" % s(S_B))
g("s_mul_i32 %s, %s, 6" % (s(S_T3), s(S_B)))
g("s_sub_u32 %s, %s, %s" % (s(S_SPLIT), s(S_T2), s(S_T3)))
g("s_lshl_b32 %s, %s, 4" % (s(S_PAIR), s(S_B)))
g("s_add_u32 %s, %s, %s" % (s(S_PAIR), s(S_PAIR), s(S_KVH)))
g("s_mul_i32 %s, %s, 6" % (s(S_FLAGB), s(S_PAIR)))
g("s_add_u32 %s, %s, %s" % (s(S_FLAGB), s(S_FLAGB), s(S_SPLIT)))
g("s_add_u32 %s, %s, 64" % (s(S_FLAGB), s(S_FLAGB)))
g("s_add_u32 %s, %s, 7" % (s(S_T0), s(S_WAVE)))
g("s_and_b32 %s, %s, 7" % (s(S_T0), s(S_T0)))
g("s_mul_i32 %s, %s, 6" % (s(S_T0), s(S_T0)))
g("s_add_u32 %s, %s, %s" % (s(S_T0), s(S_T0), s(S_SPLIT)))
g("s_mul_i32 %s, %s, 6" % (s(S_T1), s(S_T0)))
g("s_mul_i32 %s, %s, 5" % (s(S_T2), s(S_T0)))
g("s_add_u32 %s, %s, 16" % (s(S_T2), s(S_T2)))
g("s_cmp_lt_u32 %s, 16" % s(S_T0))
g("s_cselect_b32 %s, %s, %s" % (s(S_START), s(S_T1), s(S_T2)))
g("s_cselect_b32 %s, 5, 4" % s(S_U5))
g("s_cselect_b32 %s, 0, 0xff800000" % s(S_MASK5))

WIN = int(os.environ.get("WIN", "8"))
WS_QPART = 0x300000
LA_QRED2 = 24576
g.c("---- partial q: rows 48gi + 6w + 2i + r, both batches")
g("v_lshrrev_b32 v3, 5, %s" % v(VL))
g("v_and_b32 v4, 31, %s" % v(VL))
g("s_mul_i32 %s, %s, 6" % (s(S_T0), s(S_B)))
g("s_add_u32 %s, %s, %s" % (s(S_T0), s(S_T0), s(S_SPLIT)))
g("s_mul_i32 %s, %s, 48" % (s(S_T1), s(S_T0)))
g("s_mul_i32 %s, %s, 6" % (s(S_T2), s(S_WAVE)))
g("s_add_u32 %s, %s, %s" % (s(S_T1), s(S_T1), s(S_T2)))
g("v_add_u32 v5, %s, v3" % s(S_T1))
g("v_lshlrev_b32 v6, 1, v5")
for bb in range(2):
    for i in range(3):
        g("global_load_ushort %s, v6, %s offset:%d" % (v(SS + bb * 3 + i), sp(P_AX), bb * 1152 + 4 * i))
g("v_lshlrev_b32 v5, 13, v5")
g("v_lshl_add_u32 v5, v4, 4, v5")
g("s_lshl_b32 %s, %s, 9" % (s(S_T2), s(S_KVH)))
g("v_add_u32 v5, %s, v5" % s(S_T2))
for i in range(3):
    g("v_add_u32 v6, %d, v5" % (2 * i * 8192))
    g("global_load_dwordx4 %s, v6, %s%s" % (v(BUF0 + 4 * i, 4), sp(P_WQ), NT))
g.c("---- partial q_B: head = pair, rows 96split + 12w + 4i + r")
QB_X = 42
QB_W = BUF0 + 16
QB_ACC = BUF1
g("v_lshrrev_b32 v7, 4, %s" % v(VL))
g("v_and_b32 v8, 15, %s" % v(VL))
g("s_mul_i32 %s, %s, 96" % (s(S_T1), s(S_SPLIT)))
g("s_mul_i32 %s, %s, 12" % (s(S_T2), s(S_WAVE)))
g("s_add_u32 %s, %s, %s" % (s(S_T1), s(S_T1), s(S_T2)))
g("v_add_u32 v5, %s, v7" % s(S_T1))
g("v_lshlrev_b32 v6, 1, v5")
for bb in range(2):
    for i in range(3):
        g("global_load_ushort %s, v6, %s offset:%d" % (v(QB_X + bb * 3 + i), sp(P_AX), bb * 1152 + 8 * i))
g("v_lshlrev_b32 v5, 13, v5")
g("v_lshl_add_u32 v5, v8, 4, v5")
g("s_lshl_b32 %s, %s, 8" % (s(S_T2), s(S_PAIR)))
g("v_add_u32 v5, %s, v5" % s(S_T2))
for i in range(3):
    g("v_add_u32 v6, %d, v5" % (4 * i * 8192))
    g("global_load_dwordx4 %s, v6, %s%s" % (v(QB_W + 4 * i, 4), sp(P_BWQ), NT))
for e in range(16):
    g("v_mov_b32 %s, 0" % v(QF + e))
    g("v_mov_b32 %s, 0" % v(QB_ACC + e))
g.c("---- K/V per-lane base offsets")
g("s_lshl_b32 %s, %s, 12" % (s(S_T0), s(S_PAIR)))
g("s_lshl_b32 %s, %s, 4" % (s(S_T1), s(S_START)))
g("s_add_u32 %s, %s, %s" % (s(S_T0), s(S_T0), s(S_T1)))
g("s_lshl_b32 %s, %s, 8" % (s(S_T0), s(S_T0)))
g("v_and_b32 v9, 15, %s" % v(VL))
g("v_lshrrev_b32 v10, 4, %s" % v(VL))
g("v_lshlrev_b32 v11, 8, v9")
g("v_lshl_add_u32 v11, v10, 4, v11")
g("v_add_u32 v11, %s, v11" % s(S_T0))
g("v_lshlrev_b32 v60, 8, v10")
g("v_lshl_add_u32 v60, v9, 4, v60")
g("v_add_u32 v60, %s, v60" % s(S_T0))
g("s_lshl_b32 %s, %s, 12" % (s(S_U5), s(S_U5)))
g("v_add_u32 v61, %s, v60" % s(S_U5))
g("s_waitcnt vmcnt(0)")
for bb in range(2):
    for i in range(3):
        g("v_lshlrev_b32 %s, 16, %s" % (v(SS + bb * 3 + i), v(SS + bb * 3 + i)))
for i in range(3):
    for e in range(4):
        g("v_lshlrev_b32 v7, 16, %s" % v(BUF0 + 4 * i + e))
        g("v_and_b32 v8, 0xffff0000, %s" % v(BUF0 + 4 * i + e))
        for bb in range(2):
            g("v_fmac_f32 %s, %s, v7" % (v(QF + bb * 8 + 2 * e), v(SS + bb * 3 + i)))
            g("v_fmac_f32 %s, %s, v8" % (v(QF + bb * 8 + 2 * e + 1), v(SS + bb * 3 + i)))
for bb in range(2):
    for i in range(3):
        g("v_lshlrev_b32 %s, 16, %s" % (v(QB_X + bb * 3 + i), v(QB_X + bb * 3 + i)))
for i in range(3):
    for e in range(4):
        g("v_lshlrev_b32 v7, 16, %s" % v(QB_W + 4 * i + e))
        g("v_and_b32 v8, 0xffff0000, %s" % v(QB_W + 4 * i + e))
        for bb in range(2):
            g("v_fmac_f32 %s, %s, v7" % (v(QB_ACC + bb * 8 + 2 * e), v(QB_X + bb * 3 + i)))
            g("v_fmac_f32 %s, %s, v8" % (v(QB_ACC + bb * 8 + 2 * e + 1), v(QB_X + bb * 3 + i)))
LA_QBRED = 65536
g("s_lshl_b32 %s, %s, 12" % (s(S_T0), s(S_WAVE)))
g("s_add_u32 %s, %s, %d" % (s(S_T0), s(S_T0), LA_QBRED))
g("v_lshlrev_b32 v5, 10, v10")
g("v_lshl_add_u32 v5, v9, 5, v5")
g("v_add_u32 v5, %s, v5" % s(S_T0))
for bb in range(2):
    g("ds_write_b128 v5, %s offset:%d" % (v(QB_ACC + bb * 8, 4), bb * 512))
    g("ds_write_b128 v5, %s offset:%d" % (v(QB_ACC + bb * 8 + 4, 4), bb * 512 + 16))
g("s_lshl_b32 %s, %s, 12" % (s(S_T0), s(S_WAVE)))
g("v_lshlrev_b32 v5, 11, v3")
g("v_lshl_add_u32 v5, v4, 5, v5")
g("v_add_u32 v5, %s, v5" % s(S_T0))
for bb in range(2):
    g("ds_write_b128 v5, %s offset:%d" % (v(QF + bb * 8, 4), LA_QRED2 + bb * 1024))
    g("ds_write_b128 v5, %s offset:%d" % (v(QF + bb * 8 + 4, 4), LA_QRED2 + bb * 1024 + 16))
barrier()


PACE = {"n": 0}


def pace():
    if PACE["n"] >= WIN:
        g("s_waitcnt vmcnt(%d)" % (WIN - 1))
    PACE["n"] += 1


def k_issue(u):
    if u < 5:
        g("v_add_u32 v6, %d, v11" % (u * 4096))
    else:
        g("v_add_u32 v6, %s, v11" % s(S_U5))
    for j in range(4):
        pace()
        g("global_load_dwordx4 %s, v6, %s offset:%d%s" % (v(BUF1 + (u * 4 + j) * 4, 4), sp(P_K), j * 64, NT))


def v_issue(u):
    for i in range(4 * u, 4 * u + 4):
        if u < 5:
            g("v_add_u32 v6, %d, v60" % (i * 1024))
        else:
            g("v_add_u32 v6, %d, v61" % ((i - 20) * 1024))
        pace()
        g("global_load_dwordx4 %s, v6, %s%s" % (v(BUF0 + i * 4, 4), sp(P_V), NT))


NV_PRE = 2


NPRE = int(os.environ.get("NPRE", "0"))


def k_stage(lo=0, hi=6 + NV_PRE):
    if lo == 0:
        PACE["n"] = 0
    for u in range(lo, hi):
        if u < 6:
            k_issue(u)
        else:
            v_issue(u - 6)


lw0 = g.newlabel("AW0")
lwj = g.newlabel("AWJ")
g("s_cmp_eq_u32 %s, 0" % s(S_WAVE))
g("s_cbranch_scc1 %s" % lw0)
WS_QBPART = 0x3A0000
WS_FQB = 0x383000
lw1 = g.newlabel("AW1")
g("s_cmp_lg_u32 %s, 1" % s(S_WAVE))
g("s_cbranch_scc1 %s" % lw1)
get_nonce(6, 7, S_T1)
g("v_lshlrev_b32 v5, 4, %s" % v(VL))
g("v_add_u32 v5, %d, v5" % LA_QBRED)
for i in range(32):
    g("ds_read_b128 %s, v5 offset:%d" % (v(BUF0 + i * 4, 4), i * 1024))
g("s_waitcnt lgkmcnt(0)")
for st in (16, 8, 4, 2, 1):
    for i in range(st):
        for k in range(4):
            g("v_add_f32 %s, %s, %s" % (v(BUF0 + i * 4 + k), v(BUF0 + i * 4 + k), v(BUF0 + (i + st) * 4 + k)))
g("s_mul_i32 %s, %s, 6" % (s(S_T0), s(S_PAIR)))
g("s_add_u32 %s, %s, %s" % (s(S_T0), s(S_T0), s(S_SPLIT)))
g("s_lshl_b32 %s, %s, 10" % (s(S_T0), s(S_T0)))
g("s_add_u32 %s, %s, 0x%x" % (s(S_T0), s(S_T0), WS_QBPART))
g("v_lshl_add_u32 v6, %s, 4, %s" % (v(VL), s(S_T0)))
g("global_store_dwordx4 v6, %s, %s sc1" % (v(BUF0, 4), sp(P_WS)))
g("s_waitcnt vmcnt(0)")
g("s_lshl_b32 %s, %s, 7" % (s(S_T0), s(S_PAIR)))
g("s_lshl_b32 %s, %s, 2" % (s(S_T1), s(S_SPLIT)))
g("s_add_u32 %s, %s, %s" % (s(S_T0), s(S_T0), s(S_T1)))
g("s_add_u32 %s, %s, 0x%x" % (s(S_T0), s(S_T0), WS_FQB))
g("v_mov_b32 v6, %s" % s(S_T0))
set_ws(6, 7, 1)
g.label(lw1)
stamp(7)
k_stage(0, NPRE)
stamp(8)
g("s_barrier")
stamp(9)
k_stage(NPRE)
g("s_branch %s" % lwj)
g.label(lw0)
g.c("wave 0: sum partial q, publish, gather")
get_nonce(6, 7, S_T1)
g("v_lshlrev_b32 v5, 4, %s" % v(VL))
for i in range(16):
    for bb in range(2):
        g("ds_read_b128 %s, v5 offset:%d" % (v(BUF0 + (i * 2 + bb) * 4, 4), LA_QRED2 + i * 2048 + bb * 1024))
g("s_waitcnt lgkmcnt(0)")
for st in (8, 4, 2, 1):
    for i in range(st):
        for k in range(8):
            g("v_add_f32 %s, %s, %s" % (v(BUF0 + i * 8 + k), v(BUF0 + i * 8 + k), v(BUF0 + (i + st) * 8 + k)))
g("s_mul_i32 %s, %s, 6" % (s(S_T0), s(S_B)))
g("s_add_u32 %s, %s, %s" % (s(S_T0), s(S_T0), s(S_SPLIT)))
g("s_mul_i32 %s, %s, 12" % (s(S_T1), s(S_KVH)))
g("s_add_u32 %s, %s, %s" % (s(S_T0), s(S_T0), s(S_T1)))
g("s_lshl_b32 %s, %s, 11" % (s(S_T0), s(S_T0)))
g("s_add_u32 %s, %s, 0x%x" % (s(S_T0), s(S_T0), WS_QPART))
g("v_add_u32 v6, %s, v5" % s(S_T0))
g("global_store_dwordx4 v6, %s, %s sc1" % (v(BUF0, 4), sp(P_WS)))
g("global_store_dwordx4 v6, %s, %s offset:1024 sc1" % (v(BUF0 + 4, 4), sp(P_WS)))
g("s_waitcnt vmcnt(0)")
g("s_mul_i32 %s, %s, 6" % (s(S_T0), s(S_B)))
g("s_add_u32 %s, %s, %s" % (s(S_T0), s(S_T0), s(S_SPLIT)))
g("s_lshl_b32 %s, %s, 2" % (s(S_T0), s(S_T0)))
g("s_lshl_b32 %s, %s, 7" % (s(S_T1), s(S_KVH)))
g("s_add_u32 %s, %s, 0x%x" % (s(S_T1), s(S_T1), WS_FA1))
g("s_add_u32 %s, %s, %s" % (s(S_T0), s(S_T0), s(S_T1)))
g("v_mov_b32 v6, %s" % s(S_T0))
set_ws(6, 7, 1)
stamp(7)
g("v_lshl_add_u32 v6, %s, 2, %s" % (v(VL), s(S_T1)))
poll_ws(6, 7, 12, S_T1)
stamp(8)
g("s_mul_i32 %s, %s, %d" % (s(S_T0), s(S_KVH), 12 * 2048))
g("s_lshl_b32 %s, %s, 10" % (s(S_T1), s(S_B)))
g("s_add_u32 %s, %s, %s" % (s(S_T0), s(S_T0), s(S_T1)))
g("s_add_u32 %s, %s, 0x%x" % (s(S_T0), s(S_T0), WS_QPART))
g("v_add_u32 v6, %s, v5" % s(S_T0))
for i in range(12):
    g("v_add_u32 v7, %d, v6" % (2048 * i))
    g("global_load_dwordx4 %s, v7, %s sc1" % (v(BUF1 + 4 * i, 4), sp(P_WS)))
g("s_waitcnt vmcnt(0)")
for i in range(1, 12):
    for k in range(4):
        g("v_add_f32 %s, %s, %s" % (v(BUF1 + k), v(BUF1 + k), v(BUF1 + 4 * i + k)))
g("v_cvt_pk_bf16_f32 v6, %s, %s" % (v(BUF1), v(BUF1 + 1)))
g("v_cvt_pk_bf16_f32 v7, %s, %s" % (v(BUF1 + 2), v(BUF1 + 3)))
g("v_lshlrev_b32 v5, 3, %s" % v(VL))
g("ds_write_b64 v5, v[6:7] offset:%d" % LA_QBF)
barrier()
stamp(9)
k_stage()
g.label(lwj)
g.c("---- q frags (A operand): row = l&15 (<2), slab = l>>4")
for i in range(16):
    g("v_mov_b32 %s, 0" % v(QF + i))
g("v_lshlrev_b32 v5, 8, v9")
g("v_lshl_add_u32 v5, v10, 4, v5")
g("v_cmp_gt_u32 vcc, 2, v9")
g("s_and_saveexec_b64 %s, vcc" % sp(58))
for j in range(4):
    g("ds_read_b128 %s, v5 offset:%d" % (v(QF + 4 * j, 4), LA_QBF + 64 * j))
g("s_mov_b64 exec, %s" % sp(58))
v_issue(2)
g("s_waitcnt lgkmcnt(0)")
stamp(1)
g.c("---- QK")
g("s_waitcnt vmcnt(12)")
for u in range(6):
    for j in range(4):
        cc = "0" if j == 0 else v(SS + 4 * u, 4)
        g("v_mfma_f32_16x16x32_bf16 %s, %s, %s, %s" % (v(SS + 4 * u, 4), v(QF + 4 * j, 4), v(BUF1 + (u * 4 + j) * 4, 4), cc))
v_issue(3)
g("s_nop 7")
g.c("---- softmax (lanes 0..15 valid)")
stamp(2)
g("v_add_f32 %s, %s, %s" % (v(SS + 20), s(S_MASK5), v(SS + 20)))
g("v_add_f32 %s, %s, %s" % (v(SS + 21), s(S_MASK5), v(SS + 21)))
VM0, VM1, VL0, VL1 = 3, 4, 7, 8
for h in range(2):
    m = VM0 + h
    g("v_max3_f32 %s, %s, %s, %s" % (v(m), v(SS + h), v(SS + 4 + h), v(SS + 8 + h)))
    g("v_max3_f32 %s, %s, %s, %s" % (v(m), v(m), v(SS + 12 + h), v(SS + 16 + h)))
    g("v_max_f32 %s, %s, %s" % (v(m), v(m), v(SS + 20 + h)))
    allreduce16("v_max_f32", m)
g("v_mul_f32 v5, %s, %s" % (s(S_CEXP), v(VM0)))
g("v_mul_f32 v6, %s, %s" % (s(S_CEXP), v(VM1)))
for u in range(6):
    g("v_fma_f32 %s, %s, %s, -v5" % (v(SS + 4 * u), v(SS + 4 * u), s(S_CEXP)))
    g("v_fma_f32 %s, %s, %s, -v6" % (v(SS + 4 * u + 1), v(SS + 4 * u + 1), s(S_CEXP)))
for u in range(6):
    g("v_exp_f32 %s, %s" % (v(SS + 4 * u), v(SS + 4 * u)))
    g("v_exp_f32 %s, %s" % (v(SS + 4 * u + 1), v(SS + 4 * u + 1)))
v_issue(4)
for u in range(6):
    g("v_cvt_pk_bf16_f32 %s, %s, %s" % (v(SS + 4 * u + 2), v(SS + 4 * u), v(SS + 4 * u + 1)))
for h in range(2):
    l = VL0 + h
    g("v_add_f32 %s, %s, %s" % (v(l), v(SS + h), v(SS + 4 + h)))
    for u in range(2, 6):
        g("v_add_f32 %s, %s, %s" % (v(l), v(l), v(SS + 4 * u + h)))
    allreduce16("v_add_f32", l)
g("s_mul_i32 %s, %s, 384" % (s(S_T0), s(S_WAVE)))
g("v_and_b32 v5, 3, v9")
g("v_mul_u32_u24 v5, 48, v5")
g("v_lshrrev_b32 v6, 2, v9")
g("v_lshl_add_u32 v5, v6, 1, v5")
g("v_add_u32 v5, %s, v5" % s(S_T0))
g("s_mov_b64 exec, 0xffff")
for u in range(6):
    g("ds_write_b16 v5, %s offset:%d" % (v(SS + 4 * u + 2), LA_PBUF + 8 * u))
    g("ds_write_b16_d16_hi v5, %s offset:%d" % (v(SS + 4 * u + 2), LA_PBUF + 192 + 8 * u))
g("s_mov_b64 exec, -1")
v_issue(5)
g.c("---- wo slice prefetch into BUF1 (8 x dwordx3)")
g("s_lshl_b32 %s, %s, 8" % (s(S_T0), s(S_KVH)))
g("s_lshl_b32 %s, %s, 5" % (s(S_T1), s(S_WAVE)))
g("s_add_u32 %s, %s, %s" % (s(S_T0), s(S_T0), s(S_T1)))
g("s_mul_i32 %s, %s, 1152" % (s(S_T0), s(S_T0)))
g("s_mul_i32 %s, %s, 192" % (s(S_T1), s(S_SPLIT)))
g("s_add_u32 %s, %s, %s" % (s(S_T0), s(S_T0), s(S_T1)))
g("v_mul_u32_u24 v5, 2304, v10")
g("v_mul_u32_u24 v6, 12, v9")
g("v_add3_u32 v5, v5, v6, %s" % s(S_T0))
for jj in range(4):
    for t in range(2):
        g("v_add_u32 v6, %d, v5" % ((8 * jj + t) * 1152))
        g("global_load_dwordx3 %s, v6, %s" % (v(BUF1 + (jj * 2 + t) * 4, 3), sp(P_WO)))
g("s_mov_b64 exec, 1")
g("v_mov_b32 v60, %s" % v(VM0))
g("v_mov_b32 v61, %s" % v(VL0))
g("v_mov_b32 v62, %s" % v(VM1))
g("v_mov_b32 v63, %s" % v(VL1))
g("s_lshl_b32 %s, %s, 4" % (s(S_T0), s(S_WAVE)))
g("v_mov_b32 v3, %s" % s(S_T0))
g("ds_write_b128 v3, v[60:63] offset:%d" % LA_STAT)
g("s_mov_b64 exec, -1")
g("s_waitcnt lgkmcnt(0)")
g("s_mul_i32 %s, %s, 384" % (s(S_T0), s(S_WAVE)))
g("v_mul_u32_u24 v5, 48, v10")
g("v_add_u32 v5, %s, v5" % s(S_T0))
P2 = SS
for h in range(2):
    for q in range(3):
        g("ds_read_b128 %s, v5 offset:%d" % (v(P2 + h * 12 + q * 4, 4), LA_PBUF + h * 192 + q * 16))
OA = QF
for i in range(16):
    g("v_mov_b32 %s, 0" % v(OA + i))
g("s_waitcnt lgkmcnt(0)")
g.c("---- PV")
for j in range(12):
    g("s_waitcnt vmcnt(%d)" % (24 - 2 * (j + 1) + 8))
    r0 = BUF0 + (2 * j) * 4
    r1 = r0 + 4
    for e in range(4):
        g("v_perm_b32 v7, %s, %s, %s" % (v(r1 + e), v(r0 + e), s(S_SELLO)))
        g("v_perm_b32 v8, %s, %s, %s" % (v(r1 + e), v(r0 + e), s(S_SELHI)))
        for h in range(2):
            g("v_dot2_f32_bf16 %s, v7, %s, %s" % (v(OA + h * 8 + 2 * e), v(P2 + h * 12 + j), v(OA + h * 8 + 2 * e)))
            g("v_dot2_f32_bf16 %s, v8, %s, %s" % (v(OA + h * 8 + 2 * e + 1), v(P2 + h * 12 + j), v(OA + h * 8 + 2 * e + 1)))
stamp(3)
g.c("---- WG reduce of o")
g("s_lshl_b32 %s, %s, 12" % (s(S_T0), s(S_WAVE)))
g("v_lshlrev_b32 v5, 10, v10")
g("v_lshl_add_u32 v5, v9, 5, v5")
g("v_add_u32 v5, %s, v5" % s(S_T0))
for h in range(2):
    g("ds_write_b128 v5, %s offset:%d" % (v(OA + h * 8, 4), LA_ORED + h * 512))
    g("ds_write_b128 v5, %s offset:%d" % (v(OA + h * 8 + 4, 4), LA_ORED + h * 512 + 16))
barrier()
la1 = g.newlabel("ARED")
g("s_cmp_ge_u32 %s, 4" % s(S_WAVE))
g("s_cbranch_scc1 %s" % la1)
g("v_lshrrev_b32 v3, 7, v0")
g("v_lshlrev_b32 v4, 3, v3")
for w in range(8):
    g("ds_read_b64 %s, v4 offset:%d" % (v(SS + 2 * w, 2), LA_STAT + 16 * w))
g("v_lshlrev_b32 v5, 2, v0")
for i in range(32):
    g("ds_read_b32 %s, v5 offset:%d" % (v(BUF0 + i), LA_ORED + i * 1024))
g("s_waitcnt lgkmcnt(0)")
g("v_max3_f32 v6, %s, %s, %s" % (v(SS), v(SS + 2), v(SS + 4)))
g("v_max3_f32 v6, v6, %s, %s" % (v(SS + 6), v(SS + 8)))
g("v_max3_f32 v6, v6, %s, %s" % (v(SS + 10), v(SS + 12)))
g("v_max_f32 v6, v6, %s" % v(SS + 14))
for w in range(8):
    g("v_sub_f32 %s, %s, v6" % (v(SS + 2 * w), v(SS + 2 * w)))
    g("v_mul_f32 %s, %s, %s" % (v(SS + 2 * w), s(S_CEXP), v(SS + 2 * w)))
    g("v_exp_f32 %s, %s" % (v(SS + 2 * w), v(SS + 2 * w)))
g("v_mov_b32 v7, 0")
g("v_mov_b32 v8, 0")
for w in range(8):
    g("v_fmac_f32 v7, %s, %s" % (v(SS + 2 * w), v(SS + 2 * w + 1)))
    g("v_add_f32 %s, %s, %s" % (v(BUF0 + 4 * w), v(BUF0 + 4 * w), v(BUF0 + 4 * w + 1)))
    g("v_add_f32 %s, %s, %s" % (v(BUF0 + 4 * w + 2), v(BUF0 + 4 * w + 2), v(BUF0 + 4 * w + 3)))
    g("v_add_f32 %s, %s, %s" % (v(BUF0 + 4 * w), v(BUF0 + 4 * w), v(BUF0 + 4 * w + 2)))
    g("v_fmac_f32 v8, %s, %s" % (v(SS + 2 * w), v(BUF0 + 4 * w)))
g("s_mul_i32 %s, %s, 6" % (s(S_T0), s(S_PAIR)))
g("s_add_u32 %s, %s, %s" % (s(S_T0), s(S_T0), s(S_SPLIT)))
g("s_lshl_b32 %s, %s, 10" % (s(S_T1), s(S_T0)))
g("s_add_u32 %s, %s, 0x%x" % (s(S_T1), s(S_T1), WS_APART))
g("v_add_u32 v5, %s, v5" % s(S_T1))
g("global_store_dword v5, v8, %s sc1" % sp(P_WS))
g("s_lshl_b32 %s, %s, 4" % (s(S_T1), s(S_T0)))
g("s_add_u32 %s, %s, 0x%x" % (s(S_T1), s(S_T1), WS_ASTAT))
g("v_add_u32 v4, %s, v4" % s(S_T1))
g("v_and_b32 v3, 127, v0")
g("v_cmp_eq_u32 vcc, 0, v3")
g("s_and_saveexec_b64 %s, vcc" % sp(58))
lz = g.newlabel("ASTZ")
g("s_cbranch_execz %s" % lz)
g("global_store_dwordx2 v4, v[6:7], %s sc1" % sp(P_WS))
g.label(lz)
g("s_mov_b64 exec, %s" % sp(58))
g.label(la1)
g("s_waitcnt vmcnt(0)")
g("s_barrier")
lf = g.newlabel("AFL")
g("s_cmp_lg_u32 %s, 0" % s(S_WAVE))
g("s_cbranch_scc1 %s" % lf)
g("s_lshl_b32 %s, %s, 7" % (s(S_T1), s(S_PAIR)))
g("s_add_u32 %s, %s, 0x%x" % (s(S_T1), s(S_T1), WS_FA2))
g("s_lshl_b32 %s, %s, 2" % (s(S_T0), s(S_SPLIT)))
g("s_add_u32 %s, %s, %s" % (s(S_T0), s(S_T0), s(S_T1)))
g("v_mov_b32 v5, %s" % s(S_T0))
set_ws(5, 6, 1)
g("v_lshl_add_u32 v5, %s, 2, %s" % (v(VL), s(S_T1)))
poll_ws(5, 6, 6, S_T1)
g.label(lf)
g("s_barrier")
stamp(4)
g.c("---- combine")
la2 = g.newlabel("ACMB")
g("s_cmp_ge_u32 %s, 4" % s(S_WAVE))
g("s_cbranch_scc1 %s" % la2)
g("s_mul_i32 %s, %s, 6" % (s(S_T0), s(S_PAIR)))
g("s_lshl_b32 %s, %s, 10" % (s(S_T1), s(S_T0)))
g("s_add_u32 %s, %s, 0x%x" % (s(S_T1), s(S_T1), WS_APART))
g("v_lshl_add_u32 v5, v0, 2, %s" % s(S_T1))
for i in range(6):
    g("v_add_u32 v6, %d, v5" % (1024 * i))
    g("global_load_dword %s, v6, %s sc1" % (v(SS + 12 + i), sp(P_WS)))
g("s_lshl_b32 %s, %s, 4" % (s(S_T1), s(S_T0)))
g("s_add_u32 %s, %s, 0x%x" % (s(S_T1), s(S_T1), WS_ASTAT))
g("v_lshrrev_b32 v3, 7, v0")
g("v_lshl_add_u32 v4, v3, 3, %s" % s(S_T1))
for i in range(6):
    g("global_load_dwordx2 %s, v4, %s offset:%d sc1" % (v(SS + 2 * i, 2), sp(P_WS), 16 * i))
g("s_waitcnt vmcnt(0)")
g("v_max3_f32 v6, %s, %s, %s" % (v(SS), v(SS + 2), v(SS + 4)))
g("v_max3_f32 v6, v6, %s, %s" % (v(SS + 6), v(SS + 8)))
g("v_max_f32 v6, v6, %s" % v(SS + 10))
for i in range(6):
    g("v_sub_f32 %s, %s, v6" % (v(SS + 2 * i), v(SS + 2 * i)))
    g("v_mul_f32 %s, %s, %s" % (v(SS + 2 * i), s(S_CEXP), v(SS + 2 * i)))
    g("v_exp_f32 %s, %s" % (v(SS + 2 * i), v(SS + 2 * i)))
g("v_mov_b32 v7, 0")
g("v_mov_b32 v8, 0")
for i in range(6):
    g("v_fmac_f32 v7, %s, %s" % (v(SS + 2 * i), v(SS + 2 * i + 1)))
    g("v_fmac_f32 v8, %s, %s" % (v(SS + 2 * i), v(SS + 12 + i)))
g("v_rcp_f32 v7, v7")
g("s_nop 0")
g("v_mul_f32 v8, v8, v7")
g("v_cvt_pk_bf16_f32 v6, v8, v8")
g("v_lshlrev_b32 v5, 1, v0")
g("ds_write_b16 v5, v6 offset:%d" % LA_OBF)
g.label(la2)
barrier()
g.c("---- wo projection: wave rows 32w + 8jj + 2r + t")
g("s_lshl_b32 %s, %s, 6" % (s(S_T0), s(S_WAVE)))
g("v_lshl_add_u32 v5, v10, 2, %s" % s(S_T0))
for jj in range(4):
    g("ds_read_b32 %s, v5 offset:%d" % (v(SS + jj), LA_OBF + 16 * jj))
for e in range(6):
    g("v_mov_b32 %s, 0" % v(QF + e))
g("s_waitcnt lgkmcnt(0)")
for jj in range(4):
    r0 = BUF1 + (jj * 2) * 4
    r1 = r0 + 4
    for e in range(3):
        g("v_perm_b32 v7, %s, %s, %s" % (v(r1 + e), v(r0 + e), s(S_SELLO)))
        g("v_perm_b32 v8, %s, %s, %s" % (v(r1 + e), v(r0 + e), s(S_SELHI)))
        g("v_dot2_f32_bf16 %s, v7, %s, %s" % (v(QF + 2 * e), v(SS + jj), v(QF + 2 * e)))
        g("v_dot2_f32_bf16 %s, v8, %s, %s" % (v(QF + 2 * e + 1), v(SS + jj), v(QF + 2 * e + 1)))
g("s_mul_i32 %s, %s, 1536" % (s(S_T0), s(S_WAVE)))
g("v_mul_u32_u24 v5, 384, v10")
g("v_mul_u32_u24 v6, 24, v9")
g("v_add3_u32 v5, v5, v6, %s" % s(S_T0))
for e in range(3):
    g("ds_write_b64 v5, %s offset:%d" % (v(QF + 2 * e, 2), LA_YRED + 8 * e))
barrier()
la3 = g.newlabel("AY")
g("v_cmp_gt_u32 vcc, 96, v0")
g("s_and_saveexec_b64 %s, vcc" % sp(58))
g("s_cbranch_execz %s" % la3)
g("v_lshlrev_b32 v5, 2, v0")
for i in range(32):
    g("ds_read_b32 %s, v5 offset:%d" % (v(BUF0 + i), LA_YRED + i * 384))
g("s_waitcnt lgkmcnt(0)")
for st in (16, 8, 4, 2, 1):
    for i in range(st):
        g("v_add_f32 %s, %s, %s" % (v(BUF0 + i), v(BUF0 + i), v(BUF0 + i + st)))
g("s_mul_i32 %s, %s, 2304" % (s(S_T0), s(S_PAIR)))
g("s_mul_i32 %s, %s, 384" % (s(S_T1), s(S_SPLIT)))
g("s_add_u32 %s, %s, %s" % (s(S_T0), s(S_T0), s(S_T1)))
g("s_add_u32 %s, %s, 0x%x" % (s(S_T0), s(S_T0), WS_YA))
g("v_add_u32 v5, %s, v5" % s(S_T0))
g("global_store_dword v5, %s, %s sc1" % (v(BUF0), sp(P_WS)))
g.label(la3)
g("s_mov_b64 exec, %s" % sp(58))
g("s_waitcnt vmcnt(0)")
g("s_barrier")
lf2 = g.newlabel("AFL2")
g("s_cmp_lg_u32 %s, 0" % s(S_WAVE))
g("s_cbranch_scc1 %s" % lf2)
g("s_mul_i32 %s, %s, 6" % (s(S_T0), s(S_B)))
g("s_add_u32 %s, %s, %s" % (s(S_T0), s(S_T0), s(S_SPLIT)))
g("s_lshl_b32 %s, %s, 7" % (s(S_T0), s(S_T0)))
g("s_lshl_b32 %s, %s, 2" % (s(S_T1), s(S_KVH)))
g("s_add_u32 %s, %s, %s" % (s(S_T0), s(S_T0), s(S_T1)))
g("s_add_u32 %s, %s, 0x%x" % (s(S_T0), s(S_T0), WS_FA3))
g("v_mov_b32 v5, %s" % s(S_T0))
set_ws(5, 6, 1)
g.label(lf2)
stamp(5)
g.c("---- finalizer: kvh == 0")
g("s_cmp_lg_u32 %s, 0" % s(S_KVH))
g("s_cbranch_scc1 L_A_END")
lfin = g.newlabel("FIN")
g("s_cmp_lg_u32 %s, 0" % s(S_WAVE))
g("s_cbranch_scc1 %s" % lfin)
g.c("gate: wave 0 computes g for batch b")
g("s_mul_i32 %s, %s, 1152" % (s(S_T0), s(S_B)))
g("v_lshl_add_u32 v5, %s, 1, %s" % (v(VL), s(S_T0)))
g("v_lshlrev_b32 v6, 1, %s" % v(VL))
for i in range(9):
    g("global_load_ushort %s, v5, %s offset:%d" % (v(SS + i), sp(P_AX), 128 * i))
    g("global_load_ushort %s, v6, %s offset:%d" % (v(SS + 9 + i), sp(P_GW), 128 * i))
g("s_waitcnt vmcnt(0)")
g("v_mov_b32 v7, 0")
for i in range(9):
    g("v_lshlrev_b32 %s, 16, %s" % (v(SS + i), v(SS + i)))
    g("v_lshlrev_b32 %s, 16, %s" % (v(SS + 9 + i), v(SS + 9 + i)))
    g("v_mul_f32 %s, %s, %s" % (v(SS + i), v(SS + i), v(SS + 9 + i)))
    g("v_cvt_pk_bf16_f32 %s, %s, %s" % (v(SS + i), v(SS + i), v(SS + i)))
    g("v_lshlrev_b32 %s, 16, %s" % (v(SS + i), v(SS + i)))
    g("v_add_f32 v7, v7, %s" % v(SS + i))
allreduce16("v_add_f32", 7)
g("s_nop 1")
xreduce_16_32("v_add_f32", 7, 8)
g("v_cvt_pk_bf16_f32 v7, v7, v7")
g("v_lshlrev_b32 v7, 16, v7")
g("v_mul_f32 v7, %s, v7" % f32hex(-math.log2(math.e)))
g("v_exp_f32 v7, v7")
g("s_nop 0")
g("v_add_f32 v7, 1.0, v7")
g("v_rcp_f32 v7, v7")
g("s_nop 0")
g("v_cvt_pk_bf16_f32 v7, v7, v7")
g("v_lshlrev_b32 v7, 16, v7")
g("v_mov_b32 v5, 0")
g("ds_write_b32 v5, v7 offset:%d" % LA_G)
g.c("poll A flags (16 kvh) and B flags (64)")
g("s_mul_i32 %s, %s, 6" % (s(S_T0), s(S_B)))
g("s_add_u32 %s, %s, %s" % (s(S_T0), s(S_T0), s(S_SPLIT)))
g("s_lshl_b32 %s, %s, 7" % (s(S_T2), s(S_T0)))
g("s_add_u32 %s, %s, 0x%x" % (s(S_T2), s(S_T2), WS_FA3))
g("v_lshl_add_u32 v5, %s, 2, %s" % (v(VL), s(S_T2)))
poll_ws(5, 6, 16, S_T1)
g("s_lshl_b32 %s, %s, 8" % (s(S_T2), s(S_T0)))
g("s_add_u32 %s, %s, 0x%x" % (s(S_T2), s(S_T2), WS_FB3))
g("v_lshl_add_u32 v5, %s, 2, %s" % (v(VL), s(S_T2)))
poll_ws(5, 6, 64, S_T1)
g.label(lfin)
barrier()
lf3 = g.newlabel("FIN2")
g("v_cmp_gt_u32 vcc, 480, v0")
g("s_and_saveexec_b64 %s, vcc" % sp(58))
g("s_cbranch_execz %s" % lf3)
g("v_mul_u32_u24 v3, 683, v0")
g("v_lshrrev_b32 v3, 16, v3")
g("v_mul_u32_u24 v4, 96, v3")
g("v_sub_u32 v4, v0, v4")
g("s_mul_i32 %s, %s, %d" % (s(S_T0), s(S_B), 16 * 2304))
g("s_add_u32 %s, %s, 0x%x" % (s(S_T0), s(S_T0), WS_YA))
g("s_mul_i32 %s, %s, %d" % (s(S_T1), s(S_B), 64 * 2304))
g("s_add_u32 %s, %s, 0x%x" % (s(S_T1), s(S_T1), WS_YB - 16 * 2304))
g("v_mul_u32_u24 v5, %d, v3" % (16 * 2304))
g("v_add_u32 v5, %s, v5" % s(S_T1))
g("v_mov_b32 v6, %s" % s(S_T0))
g("v_cmp_eq_u32 vcc, 0, v3")
g("s_nop 1")
g("v_cndmask_b32 v5, v5, v6, vcc")
g("s_mul_i32 %s, %s, 384" % (s(S_T2), s(S_SPLIT)))
g("v_lshl_add_u32 v5, v4, 2, v5")
g("v_add_u32 v5, %s, v5" % s(S_T2))
for i in range(16):
    g("v_add_u32 v6, %d, v5" % (2304 * i))
    g("global_load_dword %s, v6, %s sc1" % (v(BUF0 + i), sp(P_WS)))
g("s_waitcnt vmcnt(0)")
for st in (8, 4, 2, 1):
    for i in range(st):
        g("v_add_f32 %s, %s, %s" % (v(BUF0 + i), v(BUF0 + i), v(BUF0 + i + st)))
g("v_lshlrev_b32 v5, 2, v0")
g("ds_write_b32 v5, %s offset:%d" % (v(BUF0), LA_FIN))
g.label(lf3)
g("s_mov_b64 exec, %s" % sp(58))
barrier()
g("v_cmp_gt_u32 vcc, 96, v0")
g("s_and_saveexec_b64 %s, vcc" % sp(58))
g("s_cbranch_execz L_A_END")
g("v_lshlrev_b32 v5, 2, v0")
for i in range(5):
    g("ds_read_b32 %s, v5 offset:%d" % (v(SS + i), LA_FIN + 384 * i))
g("v_mov_b32 v6, 0")
g("ds_read_b32 v7, v6 offset:%d" % LA_G)
g("s_waitcnt lgkmcnt(0)")
g("v_add_f32 %s, %s, %s" % (v(SS + 1), v(SS + 1), v(SS + 2)))
g("v_add_f32 %s, %s, %s" % (v(SS + 3), v(SS + 3), v(SS + 4)))
g("v_add_f32 %s, %s, %s" % (v(SS + 1), v(SS + 1), v(SS + 3)))
g("v_cvt_pk_bf16_f32 v8, %s, %s" % (v(SS), v(SS + 1)))
g("v_lshlrev_b32 %s, 16, v8" % v(SS))
g("v_and_b32 %s, 0xffff0000, v8" % v(SS + 1))
g("v_sub_f32 v8, 1.0, v7")
g("v_mul_f32 %s, v7, %s" % (v(SS), v(SS)))
g("v_cvt_pk_bf16_f32 v8, v8, v8")
g("v_lshlrev_b32 v8, 16, v8")
g("v_mul_f32 %s, v8, %s" % (v(SS + 1), v(SS + 1)))
g("v_cvt_pk_bf16_f32 v8, %s, %s" % (v(SS), v(SS + 1)))
g("v_lshlrev_b32 %s, 16, v8" % v(SS))
g("v_and_b32 %s, 0xffff0000, v8" % v(SS + 1))
g("v_add_f32 v8, %s, %s" % (v(SS), v(SS + 1)))
g("v_cvt_pk_bf16_f32 v8, v8, v8")
g("s_mul_i32 %s, %s, 1152" % (s(S_T0), s(S_B)))
g("s_mul_i32 %s, %s, 192" % (s(S_T1), s(S_SPLIT)))
g("s_add_u32 %s, %s, %s" % (s(S_T0), s(S_T0), s(S_T1)))
g("v_lshl_add_u32 v5, v0, 1, %s" % s(S_T0))
g("global_store_short v5, v8, %s" % sp(P_OUT))
g.label("L_A_END")
g("s_mov_b64 exec, -1")
stamp(6)
dump_stamps(10)
g("s_branch L_END")

S_H, S_HALF, S_B2, S_SP2 = 44, 45, 46, 47
LB_U = 131072
LB_WO = 65536
LB_CRED = 139264
LB_CBF = 155648
LB_XRED = 157696
LB_XBF = 161792
def b_prefetch():
    g.c("---- prefetch w_uv / w_o tiles into v176..v243")
    LB_WO = 65536
    LB_CRED = 139264
    LB_CBF = 155648
    LB_XRED = 157696
    LB_XBF = 161792
    g("v_lshrrev_b32 v3, 3, %s" % v(VL))
    g("v_and_b32 v4, 7, %s" % v(VL))
    g("v_lshrrev_b32 v5, 1, v3")
    g("v_and_b32 v5, 3, v5")
    g("v_lshlrev_b32 v5, 1, v5")
    g("v_xor_b32 v4, v4, v5")
    g("v_lshlrev_b32 v4, 4, v4")
    g("v_lshl_add_u32 v4, v3, 13, v4")
    g("s_lshl_b32 %s, %s, 8" % (s(S_T0), s(S_H)))
    g("s_lshl_b32 %s, %s, 7" % (s(S_T1), s(S_HALF)))
    g("s_add_u32 %s, %s, %s" % (s(S_T0), s(S_T0), s(S_T1)))
    g("s_lshl_b32 %s, %s, 19" % (s(S_T1), s(S_WAVE)))
    g("s_add_u32 %s, %s, %s" % (s(S_T0), s(S_T0), s(S_T1)))
    g("v_add_u32 v4, %s, v4" % s(S_T0))
    g("s_lshl_b32 %s, %s, 13" % (s(S_T1), s(S_WAVE)))
    for i in range(8):
        g("v_add_u32 v6, 0x%x, v4" % (i * 8 * 8192))
        g("global_load_dwordx4 %s, v6, %s%s" % (v(176 + 4 * i, 4), sp(P_WUV), NT))
    g("s_lshl_b32 %s, %s, 7" % (s(S_T0), s(S_H)))
    g("s_lshl_b32 %s, %s, 6" % (s(S_T1), s(S_HALF)))
    g("s_add_u32 %s, %s, %s" % (s(S_T0), s(S_T0), s(S_T1)))
    g("s_mul_i32 %s, %s, 1152" % (s(S_T0), s(S_T0)))
    g("s_mul_i32 %s, %s, 576" % (s(S_T1), s(S_WAVE)))
    g("s_mov_b32 %s, 58255" % s(S_T3))
    for i in range(9):
        g("v_add_u32 v3, %s, %s" % (s(S_T1), v(VL)))
        g("v_add_u32 v3, %d, v3" % (64 * i))
        g("v_mul_lo_u32 v4, v3, %s" % s(S_T3))
        g("v_lshrrev_b32 v4, 22, v4")
        g("v_mul_u32_u24 v5, 72, v4")
        g("v_sub_u32 v5, v3, v5")
        g("v_lshrrev_b32 v6, 1, v4")
        g("v_and_b32 v6, 3, v6")
        g("v_lshlrev_b32 v6, 1, v6")
        g("v_xor_b32 v5, v5, v6")
        g("v_mul_u32_u24 v4, 1152, v4")
        g("v_lshl_add_u32 v4, v5, 4, v4")
        g("v_add_u32 v4, %s, v4" % s(S_T0))
        g("global_load_dwordx4 %s, v4, %s%s" % (v(208 + 4 * i, 4), sp(P_BWO), NT))


g.label("L_ROLE_B")
g.c("---- role B setup")
stamp(0)
g("s_and_b32 %s, s2, 7" % s(S_T0))
g("s_lshr_b32 %s, s2, 3" % s(S_T1))
g("s_lshl_b32 %s, %s, 2" % (s(S_H), s(S_T0)))
g("s_lshr_b32 %s, %s, 1" % (s(S_T2), s(S_T1)))
g("s_add_u32 %s, %s, %s" % (s(S_H), s(S_H), s(S_T2)))
g("s_and_b32 %s, %s, 1" % (s(S_HALF), s(S_T1)))
g("s_lshr_b32 %s, s2, 5" % s(S_B2))
g("s_and_b32 %s, s2, 31" % s(S_SP2))
g("v_and_b32 v9, 15, %s" % v(VL))
g("v_lshrrev_b32 v10, 4, %s" % v(VL))
XP = 12
BACC = 30
WQB = 64
WUKR = 136
g("s_lshl_b32 %s, %s, 8" % (s(S_T1), s(S_H)))
g("s_lshl_b32 %s, %s, 8" % (s(S_T0), s(S_HALF)))
g("s_lshl_b32 %s, %s, 5" % (s(S_T2), s(S_WAVE)))
g("s_add_u32 %s, %s, %s" % (s(S_T0), s(S_T0), s(S_T2)))
g("s_lshl_b32 %s, %s, 13" % (s(S_T2), s(S_T0)))
g("s_add_u32 %s, %s, %s" % (s(S_T2), s(S_T2), s(S_T1)))
g("v_lshlrev_b32 v5, 13, v9")
g("v_lshl_add_u32 v5, v10, 4, v5")
g("v_add_u32 v5, %s, v5" % s(S_T2))
for gq in range(2):
    g("v_add_u32 v6, 0x%x, v5" % (gq * 16 * 8192))
    for st in range(4):
        g("global_load_dwordx4 %s, v6, %s offset:%d%s" % (v(WUKR + (gq * 4 + st) * 4, 4), sp(P_WUK), st * 64, NT))
stamp(6)
stamp(7)
g.c("C tile -> registers v168..v231 (rows 16w + i)")
CT = 168
g("s_lshl_b32 %s, %s, 12" % (s(S_T0), s(S_B2)))
g("s_lshl_b32 %s, %s, 7" % (s(S_T1), s(S_SP2)))
g("s_add_u32 %s, %s, %s" % (s(S_T0), s(S_T0), s(S_T1)))
g("s_lshl_b32 %s, %s, 4" % (s(S_T1), s(S_WAVE)))
g("s_add_u32 %s, %s, %s" % (s(S_T0), s(S_T0), s(S_T1)))
g("s_lshl_b32 %s, %s, 10" % (s(S_T0), s(S_T0)))
g("v_lshl_add_u32 v5, %s, 4, %s" % (v(VL), s(S_T0)))
for i in range(16):
    if i % 4 == 0 and i:
        g("v_add_u32 v5, 4096, v5")
    g("global_load_dwordx4 %s, v5, %s offset:%d%s" % (v(CT + 4 * i, 4), sp(P_CKV), (i % 4) * 1024, NT))
g.c("wave 0: wait for 6 q_B partial flags of head h")
lbq = g.newlabel("BQ")
g("s_cmp_lg_u32 %s, 0" % s(S_WAVE))
g("s_cbranch_scc1 %s" % lbq)
get_nonce(5, 6, S_T1)
g("s_lshl_b32 %s, %s, 7" % (s(S_T0), s(S_H)))
g("s_add_u32 %s, %s, 0x%x" % (s(S_T0), s(S_T0), 0x383000))
g("v_lshl_add_u32 v5, %s, 2, %s" % (v(VL), s(S_T0)))
poll_ws(5, 6, 6, S_T1)
g.c("gather: lane -> 4 values; 6 partials")
g("s_mul_i32 %s, %s, 6144" % (s(S_T0), s(S_H)))
g("s_add_u32 %s, %s, 0x%x" % (s(S_T0), s(S_T0), 0x3A0000))
g("v_lshl_add_u32 v5, %s, 4, %s" % (v(VL), s(S_T0)))
for i in range(6):
    g("v_add_u32 v6, %d, v5" % (1024 * i))
    g("global_load_dwordx4 %s, v6, %s sc1" % (v(WQB + 4 * i, 4), sp(P_WS)))
g("s_waitcnt vmcnt(0)")
for i in range(1, 6):
    for k in range(4):
        g("v_add_f32 %s, %s, %s" % (v(WQB + k), v(WQB + k), v(WQB + 4 * i + k)))
g("v_cvt_pk_bf16_f32 v6, %s, %s" % (v(WQB), v(WQB + 1)))
g("v_cvt_pk_bf16_f32 v7, %s, %s" % (v(WQB + 2), v(WQB + 3)))
g("v_lshlrev_b32 v5, 3, %s" % v(VL))
g("v_add_u32 v5, %d, v5" % LB_U)
g("ds_write_b64 v5, v[6:7]")
g.label(lbq)
barrier()
stamp(8)
g.c("q frags (B operand): col n<2 = batch ; slab g")
QFB = 48
for i in range(16):
    g("v_mov_b32 %s, 0" % v(QFB + i))
g("v_lshlrev_b32 v5, 8, v9")
g("v_lshl_add_u32 v5, v10, 4, v5")
g("v_add_u32 v5, %d, v5" % LB_U)
g("v_cmp_gt_u32 vcc, 2, v9")
g("s_and_saveexec_b64 %s, vcc" % sp(58))
for j in range(4):
    g("ds_read_b128 %s, v5 offset:%d" % (v(QFB + 4 * j, 4), 64 * j))
g("s_mov_b64 exec, %s" % sp(58))
g("s_waitcnt vmcnt(16) lgkmcnt(0)")
stamp(9)
DQ = 12
for gq in range(2):
    for st in range(4):
        cc = "0" if st == 0 else v(DQ + 4 * gq, 4)
        g("v_mfma_f32_16x16x32_bf16 %s, %s, %s, %s" % (v(DQ + 4 * gq, 4), v(WUKR + (gq * 4 + st) * 4, 4), v(QFB + 4 * st, 4), cc))
g("s_nop 7")
g("s_nop 1")
g("s_lshl_b32 %s, %s, 8" % (s(S_T0), s(S_HALF)))
g("s_lshl_b32 %s, %s, 5" % (s(S_T2), s(S_WAVE)))
g("s_add_u32 %s, %s, %s" % (s(S_T0), s(S_T0), s(S_T2)))
g("s_lshl_b32 %s, %s, 1" % (s(S_T0), s(S_T0)))
g("s_lshl_b32 %s, %s, 10" % (s(S_T1), s(S_H)))
g("s_add_u32 %s, %s, %s" % (s(S_T0), s(S_T0), s(S_T1)))
g("v_lshlrev_b32 v5, 15, v9")
g("v_lshl_add_u32 v5, v10, 3, v5")
g("v_add_u32 v5, %s, v5" % s(S_T0))
for gq in range(2):
    g("v_cvt_pk_bf16_f32 %s, %s, %s" % (v(20 + 2 * gq), v(DQ + 4 * gq), v(DQ + 4 * gq + 1)))
    g("v_cvt_pk_bf16_f32 %s, %s, %s" % (v(21 + 2 * gq), v(DQ + 4 * gq + 2), v(DQ + 4 * gq + 3)))
g("v_cmp_gt_u32 vcc, 2, v9")
g("s_and_saveexec_b64 %s, vcc" % sp(58))
for gq in range(2):
    g("global_store_dwordx2 v5, %s, %s offset:%d sc1" % (v(20 + 2 * gq, 2), sp(P_WS), WS_QABS + 32 * gq))
g("s_mov_b64 exec, %s" % sp(58))
stamp(1)
g("s_lshl_b32 %s, %s, 14" % (s(S_T1), s(S_WAVE)))
for k in range(8):
    g("v_xor_b32 %s, %d, %s" % (v(24 + k), 2 * k, v(VL)))
    g("v_lshl_add_u32 %s, %s, 4, %s" % (v(24 + k), v(24 + k), s(S_T1)))
g("s_waitcnt vmcnt(0)")
for i in range(16):
    g("ds_write_b128 %s, %s offset:%d" % (v(24 + (i & 7)), v(CT + 4 * i, 4), i * 1024))
g("s_waitcnt lgkmcnt(0)")
g("s_barrier")
lb3 = g.newlabel("B1F")
lb3b = g.newlabel("B1G")
g("s_cmp_lg_u32 %s, 0" % s(S_WAVE))
g("s_cbranch_scc1 %s" % lb3)
g("s_lshl_b32 %s, s2, 2" % s(S_T0))
g("s_add_u32 %s, %s, 0x%x" % (s(S_T0), s(S_T0), WS_FB1))
g("v_lshl_add_u32 v5, %s, 8, %s" % (v(VL), s(S_T0)))
set_ws(5, 6, 8)
g("s_and_b32 %s, s2, 7" % s(S_T0))
g("s_lshl_b32 %s, %s, 8" % (s(S_T0), s(S_T0)))
g("s_add_u32 %s, %s, 0x%x" % (s(S_T0), s(S_T0), WS_FB1))
g("v_lshl_add_u32 v5, %s, 2, %s" % (v(VL), s(S_T0)))
poll_ws(5, 6, 64, S_T1)
g("s_branch %s" % lb3b)
g.label(lb3)
b_prefetch()
g.label(lb3b)
g("s_barrier")
stamp(2)
g.c("---- B2: load q_abs[b2] -> LDS U (swizzled)")
g("s_lshl_b32 %s, %s, 15" % (s(S_T0), s(S_B2)))
g("s_lshl_b32 %s, %s, 12" % (s(S_T1), s(S_WAVE)))
g("s_add_u32 %s, %s, %s" % (s(S_T0), s(S_T0), s(S_T1)))
g("v_lshl_add_u32 v5, %s, 4, %s" % (v(VL), s(S_T0)))
for i in range(4):
    g("global_load_dwordx4 %s, v5, %s offset:%d sc1" % (v(64 + 4 * i, 4), sp(P_WS), WS_QABS + 1024 * i))
g("s_and_b32 %s, %s, 1" % (s(S_T2), s(S_WAVE)))
g("s_lshl_b32 %s, %s, 3" % (s(S_T2), s(S_T2)))
for i in range(4):
    g("s_add_u32 %s, %s, %d" % (s(S_T3), s(S_T2), 2 * i))
    g("v_xor_b32 %s, %s, %s" % (v(80 + i), s(S_T3), v(VL)))
    g("v_lshlrev_b32 %s, 4, %s" % (v(80 + i), v(80 + i)))
    g("v_add_u32 %s, %s, %s" % (v(80 + i), s(S_T1), v(80 + i)))
g("s_waitcnt vmcnt(0)")
for i in range(4):
    g("v_add_u32 %s, %d, %s" % (v(80 + i), LB_U + 1024 * i, v(80 + i)))
for i in range(4):
    g("ds_write_b128 %s, %s" % (v(80 + i), v(64 + 4 * i, 4)))
lb3c = g.newlabel("B1H")
g("s_cmp_lg_u32 %s, 0" % s(S_WAVE))
g("s_cbranch_scc1 %s" % lb3c)
b_prefetch()
g.label(lb3c)
barrier()
g.c("QK^T: S^T[hg] (keys x heads)")
g("v_and_b32 v5, 7, v9")
g("v_lshlrev_b32 v5, 1, v5")
g("v_xor_b32 v5, v5, v10")
g("v_lshlrev_b32 v5, 4, v5")
g("s_lshl_b32 %s, %s, 14" % (s(S_T0), s(S_WAVE)))
g("v_lshlrev_b32 v6, 10, v9")
g("v_add_u32 v7, %s, v6" % s(S_T0))
g("v_add_u32 v8, %d, v6" % LB_U)
SQ = 12
FR = 64
nb = 4
for bt in range(4):
    base = FR + (bt & 1) * 48
    for k in range(4):
        st = bt * 4 + k
        g("v_xor_b32 v3, %d, v5" % (st * 64))
        g("v_add_u32 v4, v3, v7")
        g("v_add_u32 v3, v3, v8")
        g("ds_read_b128 %s, v4" % v(base + k * 12, 4))
        g("ds_read_b128 %s, v3" % v(base + k * 12 + 4, 4))
        g("ds_read_b128 %s, v3 offset:16384" % v(base + k * 12 + 8, 4))
    if bt > 0:
        g("s_waitcnt lgkmcnt(12)")
        pb = FR + ((bt - 1) & 1) * 48
        for k in range(4):
            st = (bt - 1) * 4 + k
            for hg in range(2):
                cc = "0" if st == 0 else v(SQ + 4 * hg, 4)
                g("v_mfma_f32_16x16x32_bf16 %s, %s, %s, %s" % (v(SQ + 4 * hg, 4), v(pb + k * 12, 4), v(pb + k * 12 + 4 + 4 * hg, 4), cc))
g("s_waitcnt lgkmcnt(0)")
pb = FR + 48
for k in range(4):
    for hg in range(2):
        g("v_mfma_f32_16x16x32_bf16 %s, %s, %s, %s" % (v(SQ + 4 * hg, 4), v(pb + k * 12, 4), v(pb + k * 12 + 4 + 4 * hg, 4), v(SQ + 4 * hg, 4)))
g("s_nop 7")
g("s_nop 1")
MW = 20
for hg in range(2):
    g("v_max3_f32 %s, %s, %s, %s" % (v(MW + hg), v(SQ + 4 * hg), v(SQ + 4 * hg + 1), v(SQ + 4 * hg + 2)))
    g("v_max_f32 %s, %s, %s" % (v(MW + hg), v(MW + hg), v(SQ + 4 * hg + 3)))
    xreduce_16_32("v_max_f32", MW + hg, 3)
g("s_barrier")
LB_WM = LB_U
LB_WL = LB_U + 1024
LB_P = LB_U + 2048
PSTR = 288
g("s_lshl_b32 %s, %s, 7" % (s(S_T0), s(S_WAVE)))
g("v_lshl_add_u32 v3, v9, 2, %s" % s(S_T0))
g("v_add_u32 v3, %d, v3" % LB_U)
g("s_mov_b64 exec, 0xffff")
g("ds_write_b32 v3, %s" % v(MW))
g("ds_write_b32 v3, %s offset:64" % v(MW + 1))
g("s_mov_b64 exec, -1")
barrier()
g("v_lshlrev_b32 v4, 2, v9")
g("v_add_u32 v4, %d, v4" % LB_U)
for hg in range(2):
    for w in range(8):
        g("ds_read_b32 %s, v4 offset:%d" % (v(64 + hg * 8 + w), w * 128 + hg * 64))
g("s_waitcnt lgkmcnt(0)")
MG = 22
for hg in range(2):
    b0 = 64 + hg * 8
    g("v_max3_f32 %s, %s, %s, %s" % (v(MG + hg), v(b0), v(b0 + 1), v(b0 + 2)))
    g("v_max3_f32 %s, %s, %s, %s" % (v(MG + hg), v(MG + hg), v(b0 + 3), v(b0 + 4)))
    g("v_max3_f32 %s, %s, %s, %s" % (v(MG + hg), v(MG + hg), v(b0 + 5), v(b0 + 6)))
    g("v_max_f32 %s, %s, %s" % (v(MG + hg), v(MG + hg), v(b0 + 7)))
    g("v_mul_f32 v3, %s, %s" % (s(S_CEXP), v(MG + hg)))
    for r in range(4):
        g("v_fma_f32 %s, %s, %s, -v3" % (v(SQ + 4 * hg + r), v(SQ + 4 * hg + r), s(S_CEXP)))
    for r in range(4):
        g("v_exp_f32 %s, %s" % (v(SQ + 4 * hg + r), v(SQ + 4 * hg + r)))
LW = 24
for hg in range(2):
    g("v_add_f32 %s, %s, %s" % (v(LW + hg), v(SQ + 4 * hg), v(SQ + 4 * hg + 1)))
    g("v_add_f32 v3, %s, %s" % (v(SQ + 4 * hg + 2), v(SQ + 4 * hg + 3)))
    g("v_add_f32 %s, %s, v3" % (v(LW + hg), v(LW + hg)))
    xreduce_16_32("v_add_f32", LW + hg, 3)
g("s_lshl_b32 %s, %s, 5" % (s(S_T0), s(S_WAVE)))
g("v_mul_u32_u24 v4, %d, v9" % PSTR)
g("v_lshl_add_u32 v4, v10, 3, v4")
g("v_add_u32 v4, %s, v4" % s(S_T0))
g("v_add_u32 v4, %d, v4" % LB_P)
for hg in range(2):
    g("v_cvt_pk_bf16_f32 %s, %s, %s" % (v(26 + 2 * hg), v(SQ + 4 * hg), v(SQ + 4 * hg + 1)))
    g("v_cvt_pk_bf16_f32 %s, %s, %s" % (v(27 + 2 * hg), v(SQ + 4 * hg + 2), v(SQ + 4 * hg + 3)))
    g("ds_write_b64 v4, %s offset:%d" % (v(26 + 2 * hg, 2), hg * 16 * PSTR))
g("s_lshl_b32 %s, %s, 7" % (s(S_T0), s(S_WAVE)))
g("v_lshl_add_u32 v3, v9, 2, %s" % s(S_T0))
g("v_add_u32 v3, %d, v3" % LB_WL)
g("s_mov_b64 exec, 0xffff")
g("ds_write_b32 v3, %s" % v(LW))
g("ds_write_b32 v3, %s offset:64" % v(LW + 1))
g("s_mov_b64 exec, -1")
barrier()
g.c("stats by wave 0: lanes 0..15 for hg 0,1")
lb4 = g.newlabel("B2S")
g("s_cmp_lg_u32 %s, 0" % s(S_WAVE))
g("s_cbranch_scc1 %s" % lb4)
g("v_lshlrev_b32 v4, 2, v9")
g("v_add_u32 v4, %d, v4" % LB_WL)
for hg in range(2):
    for w in range(8):
        g("ds_read_b32 %s, v4 offset:%d" % (v(64 + hg * 8 + w), w * 128 + hg * 64))
g("s_waitcnt lgkmcnt(0)")
for hg in range(2):
    b0 = 64 + hg * 8
    for st in (4, 2, 1):
        for i in range(st):
            g("v_add_f32 %s, %s, %s" % (v(b0 + i), v(b0 + i), v(b0 + i + st)))
g("s_lshl_b32 %s, s2, 8" % s(S_T0))
g("s_add_u32 %s, %s, 0x%x" % (s(S_T0), s(S_T0), WS_BSTAT))
g("v_lshl_add_u32 v4, v9, 3, %s" % s(S_T0))
g("s_mov_b64 exec, 0xffff")
for hg in range(2):
    g("v_mov_b32 v6, %s" % v(MG + hg))
    g("v_mov_b32 v7, %s" % v(64 + hg * 8))
    g("global_store_dwordx2 v4, v[6:7], %s offset:%d sc1" % (sp(P_WS), hg * 128))
    g("s_nop 1")
g("s_mov_b64 exec, -1")
g.label(lb4)
g.c("PV: D[hg][cg] = C^T x P^T")
g("v_lshrrev_b32 v3, 2, v9")
g("v_lshl_add_u32 v3, v10, 2, v3")
g("v_and_b32 v4, 7, v3")
g("v_lshlrev_b32 v4, 1, v4")
g("v_lshlrev_b32 v3, 10, v3")
g("v_and_b32 v5, 3, v9")
g("v_lshrrev_b32 v6, 1, v5")
g("v_and_b32 v5, 1, v5")
g("v_lshl_add_u32 v3, v5, 3, v3")
g("s_lshl_b32 %s, %s, 3" % (s(S_T0), s(S_WAVE)))
g("v_add_u32 v6, %s, v6" % s(S_T0))
AD = 32
for cg in range(4):
    g("v_add_u32 v7, %d, v6" % (2 * cg))
    g("v_xor_b32 v7, v7, v4")
    g("v_lshl_add_u32 %s, v7, 4, v3" % v(AD + cg))
    g("v_add_u32 %s, 0x10000, %s" % (v(AD + 4 + cg), v(AD + cg)))
g("v_mul_u32_u24 v7, %d, v9" % PSTR)
g("v_lshl_add_u32 v7, v10, 3, v7")
g("v_add_u32 v7, %d, v7" % LB_P)
PF = 40
g("v_add_u32 v8, %d, v7" % (16 * PSTR))
for hg in range(2):
    for ks in range(4):
        g("ds_read2_b64 %s, %s offset0:%d offset1:%d" % (v(PF + (hg * 4 + ks) * 4, 4), "v7" if hg == 0 else "v8", ks * 8, ks * 8 + 4))
CF = 80
for cg in range(4):
    for ks in range(4):
        a = AD + cg + (4 if ks >= 2 else 0)
        off = (ks & 1) * 32768
        g("ds_read_b64_tr_b16 %s, %s offset:%d" % (v(CF + (cg * 4 + ks) * 4, 2), v(a), off))
        g("ds_read_b64_tr_b16 %s, %s offset:%d" % (v(CF + (cg * 4 + ks) * 4 + 2, 2), v(a), off + 16384))
g("s_waitcnt lgkmcnt(0)")
DA = 144
for ks in range(4):
    for hg in range(2):
        for cg in range(4):
            d = DA + (hg * 4 + cg) * 4
            cc = "0" if ks == 0 else v(d, 4)
            g("v_mfma_f32_16x16x32_bf16 %s, %s, %s, %s" % (v(d, 4), v(CF + (cg * 4 + ks) * 4, 4), v(PF + (hg * 4 + ks) * 4, 4), cc))
g("s_nop 7")
g("s_nop 1")
g("s_lshl_b32 %s, s2, 15" % s(S_T0))
g("s_lshl_b32 %s, %s, 7" % (s(S_T1), s(S_WAVE)))
g("s_add_u32 %s, %s, %s" % (s(S_T0), s(S_T0), s(S_T1)))
g("s_add_u32 %s, %s, 0x%x" % (s(S_T0), s(S_T0), WS_BPART))
g("v_lshlrev_b32 v3, 10, v9")
g("v_lshl_add_u32 v3, v10, 5, v3")
g("v_add_u32 v3, %s, v3" % s(S_T0))
for hg in range(2):
    for cg in range(4):
        d = DA + (hg * 4 + cg) * 4
        o = 64 + hg * 8 + cg * 2
        g("v_cvt_pk_bf16_f32 %s, %s, %s" % (v(o), v(d), v(d + 1)))
        g("v_cvt_pk_bf16_f32 %s, %s, %s" % (v(o + 1), v(d + 2), v(d + 3)))
g("v_add_u32 v4, 16384, v3")
g("global_store_dwordx4 v3, %s, %s sc1" % (v(64, 4), sp(P_WS)))
g("global_store_dwordx4 v3, %s, %s offset:16 sc1" % (v(68, 4), sp(P_WS)))
g("global_store_dwordx4 v4, %s, %s sc1" % (v(72, 4), sp(P_WS)))
g("global_store_dwordx4 v4, %s, %s offset:16 sc1" % (v(76, 4), sp(P_WS)))
g("s_waitcnt vmcnt(0)")
g("s_barrier")
lb5 = g.newlabel("B2F")
g("s_cmp_lg_u32 %s, 0" % s(S_WAVE))
g("s_cbranch_scc1 %s" % lb5)
g("s_lshl_b32 %s, s2, 2" % s(S_T0))
g("s_add_u32 %s, %s, 0x%x" % (s(S_T0), s(S_T0), WS_FB2))
g("v_lshl_add_u32 v5, %s, 8, %s" % (v(VL), s(S_T0)))
set_ws(5, 6, 8)
g.label(lb5)
stamp(3)
lb6 = g.newlabel("B3P")
g("s_cmp_lg_u32 %s, 0" % s(S_WAVE))
g("s_cbranch_scc1 %s" % lb6)
g("s_and_b32 %s, s2, 7" % s(S_T0))
g("s_lshl_b32 %s, %s, 8" % (s(S_T0), s(S_T0)))
g("s_add_u32 %s, %s, 0x%x" % (s(S_T0), s(S_T0), WS_FB2))
g("v_lshl_add_u32 v5, %s, 2, %s" % (v(VL), s(S_T0)))
poll_ws(5, 6, 64, S_T1)
g.label(lb6)
g.c("---- B3: write prefetched tiles to LDS")
g("s_lshl_b32 %s, %s, 13" % (s(S_T1), s(S_WAVE)))
g("v_lshl_add_u32 v3, %s, 4, %s" % (v(VL), s(S_T1)))
for i in range(8):
    g("ds_write_b128 v3, %s offset:%d" % (v(176 + 4 * i, 4), i * 1024))
g("s_mul_i32 %s, %s, %d" % (s(S_T1), s(S_WAVE), 576 * 16))
g("s_add_u32 %s, %s, %d" % (s(S_T1), s(S_T1), LB_WO))
g("v_lshl_add_u32 v3, %s, 4, %s" % (v(VL), s(S_T1)))
for i in range(9):
    g("ds_write_b128 v3, %s offset:%d" % (v(208 + 4 * i, 4), i * 1024))
g("s_barrier")
stamp(4)
g.c("combine partials: wave w: b = w>>2 ; splits 8(w&3)+i")
g("s_lshr_b32 %s, %s, 2" % (s(S_T0), s(S_WAVE)))
g("s_and_b32 %s, %s, 3" % (s(S_T1), s(S_WAVE)))
g("s_lshl_b32 %s, %s, 3" % (s(S_T1), s(S_T1)))
g("s_lshl_b32 %s, %s, 5" % (s(S_T2), s(S_T0)))
g("s_add_u32 %s, %s, %s" % (s(S_T2), s(S_T2), s(S_T1)))
g("s_lshl_b32 %s, %s, 15" % (s(S_T2), s(S_T2)))
g("s_lshl_b32 %s, %s, 10" % (s(S_T3), s(S_H)))
g("s_add_u32 %s, %s, %s" % (s(S_T2), s(S_T2), s(S_T3)))
g("s_add_u32 %s, %s, 0x%x" % (s(S_T2), s(S_T2), WS_BPART))
g("v_lshl_add_u32 v3, %s, 4, %s" % (v(VL), s(S_T2)))
for i in range(8):
    g("v_add_u32 v4, 0x%x, v3" % (i * 32768))
    g("global_load_dwordx4 %s, v4, %s sc1" % (v(64 + 4 * i, 4), sp(P_WS)))
g("s_lshl_b32 %s, %s, 13" % (s(S_T2), s(S_T0)))
g("s_lshl_b32 %s, %s, 3" % (s(S_T3), s(S_H)))
g("s_add_u32 %s, %s, %s" % (s(S_T2), s(S_T2), s(S_T3)))
g("s_add_u32 %s, %s, 0x%x" % (s(S_T2), s(S_T2), WS_BSTAT))
g("v_and_b32 v4, 31, %s" % v(VL))
g("v_lshl_add_u32 v4, v4, 8, %s" % s(S_T2))
g("global_load_dwordx2 v[6:7], v4, %s sc1" % sp(P_WS))
g("s_waitcnt vmcnt(0)")
g("v_mov_b32 v5, v6")
allreduce16("v_max_f32", 5)
g("v_mov_b32 v3, v5")
g("s_nop 1")
g("v_permlane16_swap_b32 v5, v3")
g("s_nop 1")
g("v_max_f32 v5, v5, v3")
g("v_sub_f32 v6, v6, v5")
g("v_mul_f32 v6, %s, v6" % s(S_CEXP))
g("v_exp_f32 v6, v6")
g("s_nop 0")
g("v_mul_f32 v7, v6, v7")
allreduce16("v_add_f32", 7)
g("v_mov_b32 v3, v7")
g("s_nop 1")
g("v_permlane16_swap_b32 v7, v3")
g("s_nop 1")
g("v_add_f32 v7, v7, v3")
g("v_rcp_f32 v7, v7")
g("s_nop 0")
g("v_mul_f32 v6, v6, v7")
g("s_nop 0")
for i in range(8):
    g("s_add_u32 %s, %s, %d" % (s(S_T3), s(S_T1), i))
    g("v_readlane_b32 %s, v6, %s" % (s(60 + i), s(S_T3)))
CA = 12
for e in range(8):
    g("v_mov_b32 %s, 0" % v(CA + e))
g("s_nop 1")
for i in range(8):
    for e in range(4):
        g("v_lshlrev_b32 v3, 16, %s" % v(64 + 4 * i + e))
        g("v_and_b32 v4, 0xffff0000, %s" % v(64 + 4 * i + e))
        g("v_fmac_f32 %s, %s, v3" % (v(CA + 2 * e), s(60 + i)))
        g("v_fmac_f32 %s, %s, v4" % (v(CA + 2 * e + 1), s(60 + i)))
g("v_lshrrev_b32 v3, 3, %s" % v(VL))
g("v_bfe_u32 v4, %s, 1, 2" % v(VL))
g("v_and_b32 v5, 1, %s" % v(VL))
g("v_lshlrev_b32 v3, 8, v3")
g("v_lshl_add_u32 v3, v5, 7, v3")
g("v_lshl_add_u32 v3, v4, 4, v3")
g("s_lshl_b32 %s, %s, 11" % (s(S_T2), s(S_WAVE)))
g("v_add_u32 v3, %s, v3" % s(S_T2))
g("v_add_u32 v3, %d, v3" % LB_CRED)
g("ds_write_b128 v3, %s" % v(CA, 4))
g("ds_write_b128 v3, %s offset:64" % v(CA + 4, 4))
barrier()
g("v_lshrrev_b32 v3, 8, v0")
g("v_and_b32 v4, 255, v0")
g("v_lshlrev_b32 v5, 13, v3")
g("v_lshl_add_u32 v5, v4, 3, v5")
g("v_add_u32 v5, %d, v5" % LB_CRED)
for i in range(4):
    g("ds_read_b64 %s, v5 offset:%d" % (v(CA + 2 * i, 2), 2048 * i))
g("s_waitcnt lgkmcnt(0)")
for k in range(2):
    g("v_add_f32 %s, %s, %s" % (v(CA + k), v(CA + k), v(CA + 2 + k)))
    g("v_add_f32 %s, %s, %s" % (v(CA + 4 + k), v(CA + 4 + k), v(CA + 6 + k)))
    g("v_add_f32 %s, %s, %s" % (v(CA + k), v(CA + k), v(CA + 4 + k)))
g("v_cvt_pk_bf16_f32 v6, %s, %s" % (v(CA), v(CA + 1)))
g("v_lshlrev_b32 v5, 2, v0")
g("v_add_u32 v5, %d, v5" % LB_CBF)
g("ds_write_b32 v5, v6")
g("s_waitcnt vmcnt(0)")
barrier()
g.c("MFMA1: ctx[b][64d] partial over c in [64w, 64w+64)")
AF = 12
for i in range(8):
    g("v_mov_b32 %s, 0" % v(AF + i))
g("s_lshl_b32 %s, %s, 7" % (s(S_T0), s(S_WAVE)))
g("v_lshlrev_b32 v3, 10, v9")
g("v_lshl_add_u32 v3, v10, 3, v3")
g("v_add_u32 v3, %s, v3" % s(S_T0))
g("v_add_u32 v3, %d, v3" % LB_CBF)
g("v_cmp_gt_u32 vcc, 2, v9")
g("s_and_saveexec_b64 %s, vcc" % sp(58))
for ks in range(2):
    g("ds_read2_b64 %s, v3 offset0:%d offset1:%d" % (v(AF + 4 * ks, 4), ks * 8, ks * 8 + 4))
g("s_mov_b64 exec, %s" % sp(58))
g("v_lshrrev_b32 v3, 2, v9")
g("v_lshl_add_u32 v3, v10, 2, v3")
g("v_lshrrev_b32 v4, 1, v3")
g("v_and_b32 v4, 3, v4")
g("v_lshlrev_b32 v4, 1, v4")
g("v_lshlrev_b32 v3, 7, v3")
g("v_and_b32 v5, 1, v9")
g("v_lshl_add_u32 v3, v5, 3, v3")
g("s_lshl_b32 %s, %s, 13" % (s(S_T0), s(S_WAVE)))
g("v_add_u32 v3, %s, v3" % s(S_T0))
g("v_bfe_u32 v5, v9, 1, 1")
BFR = 64
for cg in range(4):
    g("v_add_u32 v6, %d, v5" % (2 * cg))
    g("v_xor_b32 v6, v6, v4")
    g("v_lshl_add_u32 v6, v6, 4, v3")
    for ks in range(2):
        g("ds_read_b64_tr_b16 %s, v6 offset:%d" % (v(BFR + (cg * 2 + ks) * 4, 2), ks * 4096))
        g("ds_read_b64_tr_b16 %s, v6 offset:%d" % (v(BFR + (cg * 2 + ks) * 4 + 2, 2), ks * 4096 + 2048))
g("s_waitcnt lgkmcnt(0)")
DX = 28
for ks in range(2):
    for cg in range(4):
        cc = "0" if ks == 0 else v(DX + 4 * cg, 4)
        g("v_mfma_f32_16x16x32_bf16 %s, %s, %s, %s" % (v(DX + 4 * cg, 4), v(AF + 4 * ks, 4), v(BFR + (cg * 2 + ks) * 4, 4), cc))
g("s_nop 7")
g("s_nop 1")
g("s_lshl_b32 %s, %s, 9" % (s(S_T0), s(S_WAVE)))
g("v_lshl_add_u32 v3, v9, 2, %s" % s(S_T0))
g("v_add_u32 v3, %d, v3" % LB_XRED)
g("s_mov_b64 exec, 0xffff")
for cg in range(4):
    g("ds_write_b32 v3, %s offset:%d" % (v(DX + 4 * cg), 64 * cg))
    g("ds_write_b32 v3, %s offset:%d" % (v(DX + 4 * cg + 1), 256 + 64 * cg))
g("s_mov_b64 exec, -1")
barrier()
lb7 = g.newlabel("B3X")
g("s_cmp_ge_u32 %s, 2" % s(S_WAVE))
g("s_cbranch_scc1 %s" % lb7)
g("v_lshlrev_b32 v3, 2, v0")
g("v_add_u32 v3, %d, v3" % LB_XRED)
for w in range(8):
    g("ds_read_b32 %s, v3 offset:%d" % (v(64 + w), 512 * w))
g("s_waitcnt lgkmcnt(0)")
for st in (4, 2, 1):
    for i in range(st):
        g("v_add_f32 %s, %s, %s" % (v(64 + i), v(64 + i), v(64 + i + st)))
g("v_cvt_pk_bf16_f32 v6, v64, v64")
g("v_lshlrev_b32 v3, 1, v0")
g("v_add_u32 v3, %d, v3" % LB_XBF)
g("ds_write_b16 v3, v6")
g.label(lb7)
barrier()
g.c("MFMA2: out partial = ctx[b][64] x w_o tile")
for i in range(8):
    g("v_mov_b32 %s, 0" % v(AF + i))
g("v_lshlrev_b32 v3, 7, v9")
g("v_lshl_add_u32 v3, v10, 3, v3")
g("v_add_u32 v3, %d, v3" % LB_XBF)
g("v_cmp_gt_u32 vcc, 2, v9")
g("s_and_saveexec_b64 %s, vcc" % sp(58))
for ks in range(2):
    g("ds_read2_b64 %s, v3 offset0:%d offset1:%d" % (v(AF + 4 * ks, 4), ks * 8, ks * 8 + 4))
g("s_mov_b64 exec, %s" % sp(58))
g("v_lshrrev_b32 v3, 2, v9")
g("v_lshl_add_u32 v3, v10, 2, v3")
g("v_lshrrev_b32 v4, 1, v3")
g("v_and_b32 v4, 3, v4")
g("v_lshlrev_b32 v4, 1, v4")
g("v_mul_u32_u24 v3, 1152, v3")
g("v_and_b32 v5, 1, v9")
g("v_lshl_add_u32 v3, v5, 3, v3")
g("v_add_u32 v3, %d, v3" % LB_WO)
g("v_bfe_u32 v5, v9, 1, 1")
g("s_lshl_b32 %s, %s, 1" % (s(S_T0), s(S_WAVE)))
g("v_add_u32 v5, %s, v5" % s(S_T0))
g("s_mul_i32 %s, s2, 2304" % s(S_T1))
g("s_add_u32 %s, %s, 0x%x" % (s(S_T1), s(S_T1), WS_YB))
g("s_lshl_b32 %s, %s, 6" % (s(S_T2), s(S_WAVE)))
g("s_add_u32 %s, %s, %s" % (s(S_T1), s(S_T1), s(S_T2)))
g("v_lshl_add_u32 v7, v9, 2, %s" % s(S_T1))
for i in range(5):
    lskip = None
    if i == 4:
        lskip = g.newlabel("B3K")
        g("s_cmp_ge_u32 %s, 4" % s(S_WAVE))
        g("s_cbranch_scc1 %s" % lskip)
    g("v_add_u32 v6, %d, v5" % (16 * i))
    g("v_xor_b32 v6, v6, v4")
    g("v_lshl_add_u32 v6, v6, 4, v3")
    for ks in range(2):
        g("ds_read_b64_tr_b16 %s, v6 offset:%d" % (v(BFR + ks * 4, 2), ks * 32 * 1152))
        g("ds_read_b64_tr_b16 %s, v6 offset:%d" % (v(BFR + ks * 4 + 2, 2), ks * 32 * 1152 + 16 * 1152))
    g("s_waitcnt lgkmcnt(0)")
    g("v_mfma_f32_16x16x32_bf16 %s, %s, %s, 0" % (v(DX, 4), v(AF, 4), v(BFR, 4)))
    g("v_mfma_f32_16x16x32_bf16 %s, %s, %s, %s" % (v(DX, 4), v(AF + 4, 4), v(BFR + 4, 4), v(DX, 4)))
    g("s_nop 7")
    g("s_nop 1")
    g("s_mov_b64 exec, 0xffff")
    g("v_add_u32 v8, %d, v7" % (512 * i))
    g("global_store_dword v8, %s, %s sc1" % (v(DX), sp(P_WS)))
    g("v_add_u32 v8, %d, v8" % (64 * 2304))
    g("global_store_dword v8, %s, %s sc1" % (v(DX + 1), sp(P_WS)))
    g("s_mov_b64 exec, -1")
    g("s_nop 1")
    if lskip:
        g.label(lskip)
g("s_waitcnt vmcnt(0)")
g("s_barrier")
g("s_cmp_lg_u32 %s, 0" % s(S_WAVE))
g("s_cbranch_scc1 L_B_END")
g("s_lshl_b32 %s, s2, 2" % s(S_T0))
g("s_add_u32 %s, %s, 0x%x" % (s(S_T0), s(S_T0), WS_FB3))
g("v_lshl_add_u32 v5, %s, 8, %s" % (v(VL), s(S_T0)))
set_ws(5, 6, 12)
g.label("L_B_END")
stamp(5)
dump_stamps(10)
g("s_waitcnt vmcnt(0)")
g.label("L_END")
g("s_endpgm")
g.L.append('.section .rodata,"a"')
g.L.append(".p2align 6")
g.L.append(".amdhsa_kernel %s" % NAME)
g.L.append("  .amdhsa_next_free_vgpr 256")
g.L.append("  .amdhsa_next_free_sgpr 102")
g.L.append("  .amdhsa_accum_offset 256")
g.L.append("  .amdhsa_group_segment_fixed_size 0")
g.L.append("  .amdhsa_kernarg_size 120")
g.L.append("  .amdhsa_user_sgpr_count 2")
g.L.append("  .amdhsa_user_sgpr_kernarg_segment_ptr 1")
g.L.append("  .amdhsa_system_sgpr_workgroup_id_x 1")
g.L.append(".end_amdhsa_kernel")

out = sys.argv[1] if len(sys.argv) > 1 else "gated_mix__gqa_block_cached__compressed_kv_cla__decode.s"
open(out, "w").write("\n".join(g.L) + "\n")
print("wrote", out, len(g.L), "lines")
```

```python
import sys, math

NAME = "gated_mix__gqa_block_cached__compressed_kv_cla__decode_kernel"

WS_QABS = 0x0
WS_BSTAT = 0x10000
WS_ASTAT = 0x14000
WS_APART = 0x18000
WS_YA = 0x48000
WS_YB = 0x60000
WS_APART2 = 0x500000
WS_ASTAT2 = 0x570000
WS_YA2 = 0x580000
WS_YB2 = 0x5C0000
WS_BPART = 0x100000

CEXP = (128 ** -0.5) * math.log2(math.e)
SPIN_LIMIT = 1 << 20

P_AX, P_K, P_V, P_WQ, P_WO, P_BX, P_CKV, P_BWQ, P_WUK, P_WUV, P_BWO, P_GW, P_OUT, P_DBG, P_WS = [8 + 2 * i for i in range(15)]


def f32hex(x):
    import struct
    return "0x%08x" % struct.unpack("<I", struct.pack("<f", x))[0]


class G:
    def __init__(self):
        self.L = []
        self.nlabel = 0

    def __call__(self, s):
        self.L.append("    " + s)

    def label(self, name):
        self.L.append(name + ":")

    def newlabel(self, p="L"):
        self.nlabel += 1
        return "%s_%d" % (p, self.nlabel)

    def c(self, s):
        self.L.append("    ; " + s)


def v(n, cnt=1):
    return "v%d" % n if cnt == 1 else "v[%d:%d]" % (n, n + cnt - 1)


def s(n, cnt=1):
    return "s%d" % n if cnt == 1 else "s[%d:%d]" % (n, n + cnt - 1)


def sp(n):
    return s(n, 2)


g = G()
import os
STAMPS = os.environ.get("STAMPS", "0") == "1"
WS_TS = 0x400000
def stamp(i):
    if STAMPS:
        g("s_memrealtime %s" % sp(70 + 2 * i))
        g("s_waitcnt lgkmcnt(0)")
def dump_stamps(n):
    if STAMPS:
        lx = g.newlabel("TS")
        g("s_add_u32 s69, %s, 1" % s(S_WAVE))
        g("s_and_b32 s69, s69, 7")
        g("s_cmp_gt_u32 s69, 1")
        g("s_cbranch_scc1 %s" % lx)
        g("s_lshl_b32 s68, s2, 8")
        g("s_xor_b32 s69, s69, 1")
        g("s_lshl_b32 s69, s69, 7")
        g("s_add_u32 s68, s68, s69")
        g("s_add_u32 s68, s68, 0x%x" % WS_TS)
        g("v_mov_b32 v5, s68")
        for i in range(n):
            g("v_mov_b32 v6, %s" % s(70 + 2 * i))
            g("v_mov_b32 v7, %s" % s(71 + 2 * i))
            g("global_store_dwordx2 v5, v[6:7], %s offset:%d" % (sp(P_WS), 8 * i))
            g("s_nop 1")
        g.label(lx)

NT = " nt"


def barrier():
    g("s_waitcnt lgkmcnt(0)")
    g("s_barrier")


def allreduce16(op, reg, tmp=None):
    for r in (8, 4, 2, 1):
        g("s_nop 1")
        g("%s_dpp %s, %s, %s row_ror:%d row_mask:0xf bank_mask:0xf" % (op, v(reg), v(reg), v(reg), r))


def xreduce_16_32(op, reg, tmp):
    for ins in ("v_permlane16_swap_b32", "v_permlane32_swap_b32"):
        g("v_mov_b32 %s, %s" % (v(tmp), v(reg)))
        g("s_nop 1")
        g("%s %s, %s" % (ins, v(reg), v(tmp)))
        g("s_nop 1")
        g("%s %s, %s, %s" % (op, v(reg), v(reg), v(tmp)))


WS_FA1 = 0x380000
WS_FA2 = 0x381000
WS_FA3 = 0x382000
WS_FB1 = 0x384000
WS_FB2 = 0x385000
WS_FB3 = 0x386000
S_NONCE = 92
SLEEP = 2


def poll_ws(vaddr, vtmp, nlanes, scnt):
    lp = g.newlabel("POLL")
    le = g.newlabel("POLLX")
    g("s_mov_b32 %s, 0" % s(scnt))
    if nlanes < 64:
        g("s_mov_b64 exec, 0x%x" % ((1 << nlanes) - 1))
    g.label(lp)
    g("global_load_dword %s, %s, %s sc1" % (v(vtmp), v(vaddr), sp(P_WS)))
    g("s_waitcnt vmcnt(0)")
    g("v_cmp_ne_u32 vcc, %s, %s" % (s(S_NONCE), v(vtmp)))
    g("s_nop 1")
    g("s_cmp_eq_u64 vcc, 0")
    g("s_cbranch_scc1 %s" % le)
    g("s_add_u32 %s, %s, 1" % (s(scnt), s(scnt)))
    g("s_cmp_gt_u32 %s, %d" % (s(scnt), SPIN_LIMIT))
    g("s_cbranch_scc1 %s" % le)
    g("s_sleep %d" % SLEEP)
    g("s_branch %s" % lp)
    g.label(le)
    g("s_mov_b64 exec, -1")


def set_ws(vaddr, vt1, nlanes):
    g("v_mov_b32 %s, %s" % (v(vt1), s(S_NONCE)))
    g("s_mov_b64 exec, 0x%x" % ((1 << nlanes) - 1))
    g("global_store_dword %s, %s, %s sc1" % (v(vaddr), v(vt1), sp(P_WS)))
    g("s_mov_b64 exec, -1")


def tag_retry_begin(scnt):
    lp = g.newlabel("TG")
    g("s_mov_b32 %s, 0" % s(scnt))
    g.label(lp)
    return lp


def tag_retry_end(lp, vacc, scnt):
    le = g.newlabel("TGX")
    g("v_cmp_ne_u32 vcc, 0, %s" % v(vacc))
    g("s_nop 1")
    g("s_cmp_eq_u64 vcc, 0")
    g("s_cbranch_scc1 %s" % le)
    g("s_add_u32 %s, %s, 1" % (s(scnt), s(scnt)))
    g("s_cmp_gt_u32 %s, %d" % (s(scnt), SPIN_LIMIT))
    g("s_cbranch_scc1 %s" % le)
    g("s_sleep 1")
    g("s_branch %s" % lp)
    g.label(le)


def make_nonce():
    le = g.newlabel("NMX")
    g("s_cmp_lg_u32 s2, 0")
    g("s_cbranch_scc1 %s" % le)
    g("s_cmp_lg_u32 %s, 0" % s(S_WAVE))
    g("s_cbranch_scc1 %s" % le)
    g("s_memrealtime %s" % sp(S_NONCE))
    g("s_waitcnt lgkmcnt(0)")
    g("s_or_b32 %s, %s, 1" % (s(S_NONCE), s(S_NONCE)))
    g("v_mov_b32 v3, 0")
    g("v_mov_b32 v4, %s" % s(S_NONCE))
    g("s_mov_b64 exec, 1")
    g("global_store_dword v3, v4, %s sc1" % sp(P_DBG))
    g("s_mov_b64 exec, -1")
    g.label(le)


def get_nonce(vt0, vt1, scnt):
    le = g.newlabel("NX")
    g("s_cmp_eq_u32 s2, 0")
    g("s_cbranch_scc1 %s" % le)
    g("v_mov_b32 %s, 0" % v(vt0))
    g("s_mov_b32 %s, 0" % s(scnt))
    lq = g.newlabel("NL")
    g.label(lq)
    g("global_load_dword %s, %s, %s sc1" % (v(vt1), v(vt0), sp(P_DBG)))
    g("s_waitcnt vmcnt(0)")
    g("v_readfirstlane_b32 %s, %s" % (s(S_NONCE), v(vt1)))
    g("s_nop 3")
    g("s_cmp_lg_u32 %s, 0" % s(S_NONCE))
    g("s_cbranch_scc1 %s" % le)
    g("s_add_u32 %s, %s, 1" % (s(scnt), s(scnt)))
    g("s_cmp_gt_u32 %s, %d" % (s(scnt), SPIN_LIMIT))
    g("s_cbranch_scc1 %s" % le)
    g("s_sleep 4")
    g("s_branch %s" % lq)
    g.label(le)


g.L.append("; @launch grid=(256,1,1) block=(512,1,1) lds=163840")
g.L.append('.amdgcn_target "amdgcn-amd-amdhsa--gfx950"')
g.L.append(".text")
g.L.append(".globl %s" % NAME)
g.L.append(".p2align 8")
g.L.append(".type %s,@function" % NAME)
g.label(NAME)
g("s_cmp_ge_u32 s2, 256")
g("s_cbranch_scc1 L_END")
g("s_load_dwordx16 s[8:23], s[0:1], 0")
g("s_load_dwordx8 s[24:31], s[0:1], 64")
g("s_load_dwordx4 s[32:35], s[0:1], 96")
g("s_load_dwordx2 s[36:37], s[0:1], 112")
S_WAVE = 40
S_SELLO, S_SELHI = 41, 42
S_CEXP = 43
g("v_lshrrev_b32 v1, 6, v0")
g("v_and_b32 v2, 63, v0")
g("s_nop 0")
g("v_readfirstlane_b32 %s, v1" % s(S_WAVE))
g("s_mov_b32 %s, 0x05040100" % s(S_SELLO))
g("s_mov_b32 %s, 0x07060302" % s(S_SELHI))
g("s_mov_b32 %s, %s" % (s(S_CEXP), f32hex(CEXP)))
g("s_waitcnt lgkmcnt(0)")
make_nonce()
g("s_cmp_lt_u32 s2, 64")
g("s_cbranch_scc1 L_ROLE_B")

VL = 2

S_KVH, S_B, S_SPLIT, S_PAIR, S_START, S_CNT = 44, 45, 46, 47, 48, 49
S_T0, S_T1, S_T2, S_T3 = 50, 51, 52, 53
S_MASK5 = 54
S_U5 = 55
S_FLAGB = 56
BUF0, BUF1 = 64, 160
QF = 12
QACC = 28
SS = 36

LA_QRED = 0
LA_QBF = 16384
LA_PBUF = 17408
LA_STAT = 20480
LA_ORED = 24576
LA_OBF = 57344
LA_YRED = 0
LA_FIN = 12288
LA_G = 14336

g.c("---- role A setup")
stamp(0)
g("s_sub_u32 %s, s2, 64" % s(S_T0))
g("s_and_b32 %s, %s, 7" % (s(S_T1), s(S_T0)))
g("s_lshr_b32 %s, %s, 3" % (s(S_T2), s(S_T0)))
g("s_and_b32 %s, %s, 1" % (s(S_T3), s(S_T2)))
g("s_lshl_b32 %s, %s, 1" % (s(S_KVH), s(S_T1)))
g("s_add_u32 %s, %s, %s" % (s(S_KVH), s(S_KVH), s(S_T3)))
g("s_lshr_b32 %s, %s, 1" % (s(S_T2), s(S_T2)))
g("s_cmp_ge_u32 %s, 6" % s(S_T2))
g("s_cselect_b32 %s, 1, 0" % s(S_B))
g("s_mul_i32 %s, %s, 6" % (s(S_T3), s(S_B)))
g("s_sub_u32 %s, %s, %s" % (s(S_SPLIT), s(S_T2), s(S_T3)))
g("s_lshl_b32 %s, %s, 4" % (s(S_PAIR), s(S_B)))
g("s_add_u32 %s, %s, %s" % (s(S_PAIR), s(S_PAIR), s(S_KVH)))
g("s_mul_i32 %s, %s, 6" % (s(S_FLAGB), s(S_PAIR)))
g("s_add_u32 %s, %s, %s" % (s(S_FLAGB), s(S_FLAGB), s(S_SPLIT)))
g("s_add_u32 %s, %s, 64" % (s(S_FLAGB), s(S_FLAGB)))
g("s_add_u32 %s, %s, 7" % (s(S_T0), s(S_WAVE)))
g("s_and_b32 %s, %s, 7" % (s(S_T0), s(S_T0)))
g("s_mul_i32 %s, %s, 6" % (s(S_T0), s(S_T0)))
g("s_add_u32 %s, %s, %s" % (s(S_T0), s(S_T0), s(S_SPLIT)))
g("s_mul_i32 %s, %s, 6" % (s(S_T1), s(S_T0)))
g("s_mul_i32 %s, %s, 5" % (s(S_T2), s(S_T0)))
g("s_add_u32 %s, %s, 16" % (s(S_T2), s(S_T2)))
g("s_cmp_lt_u32 %s, 16" % s(S_T0))
g("s_cselect_b32 %s, %s, %s" % (s(S_START), s(S_T1), s(S_T2)))
g("s_cselect_b32 %s, 5, 4" % s(S_U5))
g("s_cselect_b32 %s, 0, 0xff800000" % s(S_MASK5))

WIN = int(os.environ.get("WIN", "8"))
WS_QPART = 0x300000
LA_QRED2 = 24576
g.c("---- partial q: rows 48gi + 6w + 2i + r, both batches")
g("v_lshrrev_b32 v3, 5, %s" % v(VL))
g("v_and_b32 v4, 31, %s" % v(VL))
g("s_mul_i32 %s, %s, 6" % (s(S_T0), s(S_B)))
g("s_add_u32 %s, %s, %s" % (s(S_T0), s(S_T0), s(S_SPLIT)))
g("s_mul_i32 %s, %s, 48" % (s(S_T1), s(S_T0)))
g("s_mul_i32 %s, %s, 6" % (s(S_T2), s(S_WAVE)))
g("s_add_u32 %s, %s, %s" % (s(S_T1), s(S_T1), s(S_T2)))
g("v_add_u32 v5, %s, v3" % s(S_T1))
g("v_lshlrev_b32 v6, 1, v5")
for bb in range(2):
    for i in range(3):
        g("global_load_ushort %s, v6, %s offset:%d" % (v(SS + bb * 3 + i), sp(P_AX), bb * 1152 + 4 * i))
g("v_lshlrev_b32 v5, 13, v5")
g("v_lshl_add_u32 v5, v4, 4, v5")
g("s_lshl_b32 %s, %s, 9" % (s(S_T2), s(S_KVH)))
g("v_add_u32 v5, %s, v5" % s(S_T2))
for i in range(3):
    g("v_add_u32 v6, %d, v5" % (2 * i * 8192))
    g("global_load_dwordx4 %s, v6, %s%s" % (v(BUF0 + 4 * i, 4), sp(P_WQ), NT))
g.c("---- partial q_B: head = pair, rows 96split + 12w + 4i + r")
QB_X = 42
QB_W = BUF0 + 16
QB_ACC = BUF1
g("v_lshrrev_b32 v7, 4, %s" % v(VL))
g("v_and_b32 v8, 15, %s" % v(VL))
g("s_mul_i32 %s, %s, 96" % (s(S_T1), s(S_SPLIT)))
g("s_mul_i32 %s, %s, 12" % (s(S_T2), s(S_WAVE)))
g("s_add_u32 %s, %s, %s" % (s(S_T1), s(S_T1), s(S_T2)))
g("v_add_u32 v5, %s, v7" % s(S_T1))
g("v_lshlrev_b32 v6, 1, v5")
for bb in range(2):
    for i in range(3):
        g("global_load_ushort %s, v6, %s offset:%d" % (v(QB_X + bb * 3 + i), sp(P_AX), bb * 1152 + 8 * i))
g("v_lshlrev_b32 v5, 13, v5")
g("v_lshl_add_u32 v5, v8, 4, v5")
g("s_lshl_b32 %s, %s, 8" % (s(S_T2), s(S_PAIR)))
g("v_add_u32 v5, %s, v5" % s(S_T2))
for i in range(3):
    g("v_add_u32 v6, %d, v5" % (4 * i * 8192))
    g("global_load_dwordx4 %s, v6, %s%s" % (v(QB_W + 4 * i, 4), sp(P_BWQ), NT))
for e in range(16):
    g("v_mov_b32 %s, 0" % v(QF + e))
    g("v_mov_b32 %s, 0" % v(QB_ACC + e))
g.c("---- K/V per-lane base offsets")
g("s_lshl_b32 %s, %s, 12" % (s(S_T0), s(S_PAIR)))
g("s_lshl_b32 %s, %s, 4" % (s(S_T1), s(S_START)))
g("s_add_u32 %s, %s, %s" % (s(S_T0), s(S_T0), s(S_T1)))
g("s_lshl_b32 %s, %s, 8" % (s(S_T0), s(S_T0)))
g("v_and_b32 v9, 15, %s" % v(VL))
g("v_lshrrev_b32 v10, 4, %s" % v(VL))
g("v_lshlrev_b32 v11, 8, v9")
g("v_lshl_add_u32 v11, v10, 4, v11")
g("v_add_u32 v11, %s, v11" % s(S_T0))
g("v_lshlrev_b32 v60, 8, v10")
g("v_lshl_add_u32 v60, v9, 4, v60")
g("v_add_u32 v60, %s, v60" % s(S_T0))
g("s_lshl_b32 %s, %s, 12" % (s(S_U5), s(S_U5)))
g("v_add_u32 v61, %s, v60" % s(S_U5))
g("s_waitcnt vmcnt(0)")
for bb in range(2):
    for i in range(3):
        g("v_lshlrev_b32 %s, 16, %s" % (v(SS + bb * 3 + i), v(SS + bb * 3 + i)))
for i in range(3):
    for e in range(4):
        g("v_lshlrev_b32 v7, 16, %s" % v(BUF0 + 4 * i + e))
        g("v_and_b32 v8, 0xffff0000, %s" % v(BUF0 + 4 * i + e))
        for bb in range(2):
            g("v_fmac_f32 %s, %s, v7" % (v(QF + bb * 8 + 2 * e), v(SS + bb * 3 + i)))
            g("v_fmac_f32 %s, %s, v8" % (v(QF + bb * 8 + 2 * e + 1), v(SS + bb * 3 + i)))
for bb in range(2):
    for i in range(3):
        g("v_lshlrev_b32 %s, 16, %s" % (v(QB_X + bb * 3 + i), v(QB_X + bb * 3 + i)))
for i in range(3):
    for e in range(4):
        g("v_lshlrev_b32 v7, 16, %s" % v(QB_W + 4 * i + e))
        g("v_and_b32 v8, 0xffff0000, %s" % v(QB_W + 4 * i + e))
        for bb in range(2):
            g("v_fmac_f32 %s, %s, v7" % (v(QB_ACC + bb * 8 + 2 * e), v(QB_X + bb * 3 + i)))
            g("v_fmac_f32 %s, %s, v8" % (v(QB_ACC + bb * 8 + 2 * e + 1), v(QB_X + bb * 3 + i)))
LA_QBRED = 65536
g("s_lshl_b32 %s, %s, 12" % (s(S_T0), s(S_WAVE)))
g("s_add_u32 %s, %s, %d" % (s(S_T0), s(S_T0), LA_QBRED))
g("v_lshlrev_b32 v5, 10, v10")
g("v_lshl_add_u32 v5, v9, 5, v5")
g("v_add_u32 v5, %s, v5" % s(S_T0))
for bb in range(2):
    g("ds_write_b128 v5, %s offset:%d" % (v(QB_ACC + bb * 8, 4), bb * 512))
    g("ds_write_b128 v5, %s offset:%d" % (v(QB_ACC + bb * 8 + 4, 4), bb * 512 + 16))
g("s_lshl_b32 %s, %s, 12" % (s(S_T0), s(S_WAVE)))
g("v_lshlrev_b32 v5, 11, v3")
g("v_lshl_add_u32 v5, v4, 5, v5")
g("v_add_u32 v5, %s, v5" % s(S_T0))
for bb in range(2):
    g("ds_write_b128 v5, %s offset:%d" % (v(QF + bb * 8, 4), LA_QRED2 + bb * 1024))
    g("ds_write_b128 v5, %s offset:%d" % (v(QF + bb * 8 + 4, 4), LA_QRED2 + bb * 1024 + 16))
barrier()


PACE = {"n": 0}


def pace():
    if PACE["n"] >= WIN:
        g("s_waitcnt vmcnt(%d)" % (WIN - 1))
    PACE["n"] += 1


def k_issue(u):
    if u < 5:
        g("v_add_u32 v6, %d, v11" % (u * 4096))
    else:
        g("v_add_u32 v6, %s, v11" % s(S_U5))
    for j in range(4):
        pace()
        g("global_load_dwordx4 %s, v6, %s offset:%d%s" % (v(BUF1 + (u * 4 + j) * 4, 4), sp(P_K), j * 64, NT))


def v_issue(u):
    for i in range(4 * u, 4 * u + 4):
        if u < 5:
            g("v_add_u32 v6, %d, v60" % (i * 1024))
        else:
            g("v_add_u32 v6, %d, v61" % ((i - 20) * 1024))
        pace()
        g("global_load_dwordx4 %s, v6, %s%s" % (v(BUF0 + i * 4, 4), sp(P_V), NT))


NV_PRE = 2


NPRE = int(os.environ.get("NPRE", "0"))


def k_stage(lo=0, hi=6 + NV_PRE):
    if lo == 0:
        PACE["n"] = 0
    for u in range(lo, hi):
        if u < 6:
            k_issue(u)
        else:
            v_issue(u - 6)


lw0 = g.newlabel("AW0")
lwj = g.newlabel("AWJ")
g("s_cmp_eq_u32 %s, 0" % s(S_WAVE))
g("s_cbranch_scc1 %s" % lw0)
WS_QBPART = 0x680000
WS_FQB = 0x383000
lw1 = g.newlabel("AW1")
g("s_cmp_lg_u32 %s, 1" % s(S_WAVE))
g("s_cbranch_scc1 %s" % lw1)
get_nonce(6, 7, S_T1)
g("v_lshlrev_b32 v5, 4, %s" % v(VL))
g("v_add_u32 v5, %d, v5" % LA_QBRED)
for i in range(32):
    g("ds_read_b128 %s, v5 offset:%d" % (v(BUF0 + i * 4, 4), i * 1024))
g("s_waitcnt lgkmcnt(0)")
for st in (16, 8, 4, 2, 1):
    for i in range(st):
        for k in range(4):
            g("v_add_f32 %s, %s, %s" % (v(BUF0 + i * 4 + k), v(BUF0 + i * 4 + k), v(BUF0 + (i + st) * 4 + k)))
g("s_mul_i32 %s, %s, 6" % (s(S_T0), s(S_PAIR)))
g("s_add_u32 %s, %s, %s" % (s(S_T0), s(S_T0), s(S_SPLIT)))
g("s_lshl_b32 %s, %s, 11" % (s(S_T0), s(S_T0)))
g("s_add_u32 %s, %s, 0x%x" % (s(S_T0), s(S_T0), WS_QBPART))
g("v_lshl_add_u32 v6, %s, 5, %s" % (v(VL), s(S_T0)))
g("v_mov_b32 %s, %s" % (v(BUF0 + 10), v(BUF0 + 3)))
g("v_mov_b32 %s, %s" % (v(BUF0 + 8), v(BUF0 + 2)))
g("v_mov_b32 %s, %s" % (v(BUF0 + 6), v(BUF0 + 1)))
g("v_mov_b32 %s, %s" % (v(BUF0 + 4), v(BUF0)))
for k in (5, 7, 9, 11):
    g("v_mov_b32 %s, %s" % (v(BUF0 + k), s(S_NONCE)))
g("global_store_dwordx4 v6, %s, %s sc1" % (v(BUF0 + 4, 4), sp(P_WS)))
g("global_store_dwordx4 v6, %s, %s offset:16 sc1" % (v(BUF0 + 8, 4), sp(P_WS)))
g("s_nop 1")
g.label(lw1)
stamp(7)
k_stage(0, NPRE)
stamp(8)
g("s_barrier")
stamp(9)
k_stage(NPRE)
g("s_branch %s" % lwj)
g.label(lw0)
g.c("wave 0: sum partial q, publish, gather")
get_nonce(6, 7, S_T1)
g("v_mov_b32 v6, 0")
g("v_mov_b32 v7, %s" % s(S_NONCE))
g("ds_write_b32 v6, v7 offset:20736")
g("v_lshlrev_b32 v5, 4, %s" % v(VL))
for i in range(16):
    for bb in range(2):
        g("ds_read_b128 %s, v5 offset:%d" % (v(BUF0 + (i * 2 + bb) * 4, 4), LA_QRED2 + i * 2048 + bb * 1024))
g("s_waitcnt lgkmcnt(0)")
for st in (8, 4, 2, 1):
    for i in range(st):
        for k in range(8):
            g("v_add_f32 %s, %s, %s" % (v(BUF0 + i * 8 + k), v(BUF0 + i * 8 + k), v(BUF0 + (i + st) * 8 + k)))
g("s_mul_i32 %s, %s, 6" % (s(S_T0), s(S_B)))
g("s_add_u32 %s, %s, %s" % (s(S_T0), s(S_T0), s(S_SPLIT)))
g("s_mul_i32 %s, %s, 12" % (s(S_T1), s(S_KVH)))
g("s_add_u32 %s, %s, %s" % (s(S_T0), s(S_T0), s(S_T1)))
g("s_lshl_b32 %s, %s, 11" % (s(S_T0), s(S_T0)))
g("s_add_u32 %s, %s, 0x%x" % (s(S_T0), s(S_T0), WS_QPART))
g("v_add_u32 v6, %s, v5" % s(S_T0))
g("global_store_dwordx4 v6, %s, %s sc1" % (v(BUF0, 4), sp(P_WS)))
g("global_store_dwordx4 v6, %s, %s offset:1024 sc1" % (v(BUF0 + 4, 4), sp(P_WS)))
g("s_waitcnt vmcnt(0)")
g("s_mul_i32 %s, %s, 6" % (s(S_T0), s(S_B)))
g("s_add_u32 %s, %s, %s" % (s(S_T0), s(S_T0), s(S_SPLIT)))
g("s_lshl_b32 %s, %s, 2" % (s(S_T0), s(S_T0)))
g("s_lshl_b32 %s, %s, 7" % (s(S_T1), s(S_KVH)))
g("s_add_u32 %s, %s, 0x%x" % (s(S_T1), s(S_T1), WS_FA1))
g("s_add_u32 %s, %s, %s" % (s(S_T0), s(S_T0), s(S_T1)))
g("v_mov_b32 v6, %s" % s(S_T0))
set_ws(6, 7, 1)
stamp(7)
g("v_lshl_add_u32 v6, %s, 2, %s" % (v(VL), s(S_T1)))
poll_ws(6, 7, 12, S_T1)
stamp(8)
g("s_mul_i32 %s, %s, %d" % (s(S_T0), s(S_KVH), 12 * 2048))
g("s_lshl_b32 %s, %s, 10" % (s(S_T1), s(S_B)))
g("s_add_u32 %s, %s, %s" % (s(S_T0), s(S_T0), s(S_T1)))
g("s_add_u32 %s, %s, 0x%x" % (s(S_T0), s(S_T0), WS_QPART))
g("v_add_u32 v6, %s, v5" % s(S_T0))
for i in range(12):
    g("v_add_u32 v7, %d, v6" % (2048 * i))
    g("global_load_dwordx4 %s, v7, %s sc1" % (v(BUF1 + 4 * i, 4), sp(P_WS)))
g("s_waitcnt vmcnt(0)")
for i in range(1, 12):
    for k in range(4):
        g("v_add_f32 %s, %s, %s" % (v(BUF1 + k), v(BUF1 + k), v(BUF1 + 4 * i + k)))
g("v_cvt_pk_bf16_f32 v6, %s, %s" % (v(BUF1), v(BUF1 + 1)))
g("v_cvt_pk_bf16_f32 v7, %s, %s" % (v(BUF1 + 2), v(BUF1 + 3)))
g("v_lshlrev_b32 v5, 3, %s" % v(VL))
g("ds_write_b64 v5, v[6:7] offset:%d" % LA_QBF)
barrier()
stamp(9)
k_stage()
g.label(lwj)
g("v_mov_b32 v6, 0")
g("ds_read_b32 v7, v6 offset:20736")
g("s_waitcnt lgkmcnt(0)")
g("v_readfirstlane_b32 %s, v7" % s(S_NONCE))
g.c("---- q frags (A operand): row = l&15 (<2), slab = l>>4")
for i in range(16):
    g("v_mov_b32 %s, 0" % v(QF + i))
g("v_lshlrev_b32 v5, 8, v9")
g("v_lshl_add_u32 v5, v10, 4, v5")
g("v_cmp_gt_u32 vcc, 2, v9")
g("s_and_saveexec_b64 %s, vcc" % sp(58))
for j in range(4):
    g("ds_read_b128 %s, v5 offset:%d" % (v(QF + 4 * j, 4), LA_QBF + 64 * j))
g("s_mov_b64 exec, %s" % sp(58))
v_issue(2)
g("s_waitcnt lgkmcnt(0)")
stamp(1)
g.c("---- QK")
g("s_waitcnt vmcnt(12)")
for u in range(6):
    for j in range(4):
        cc = "0" if j == 0 else v(SS + 4 * u, 4)
        g("v_mfma_f32_16x16x32_bf16 %s, %s, %s, %s" % (v(SS + 4 * u, 4), v(QF + 4 * j, 4), v(BUF1 + (u * 4 + j) * 4, 4), cc))
v_issue(3)
g("s_nop 7")
g.c("---- softmax (lanes 0..15 valid)")
stamp(2)
g("v_add_f32 %s, %s, %s" % (v(SS + 20), s(S_MASK5), v(SS + 20)))
g("v_add_f32 %s, %s, %s" % (v(SS + 21), s(S_MASK5), v(SS + 21)))
VM0, VM1, VL0, VL1 = 3, 4, 7, 8
for h in range(2):
    m = VM0 + h
    g("v_max3_f32 %s, %s, %s, %s" % (v(m), v(SS + h), v(SS + 4 + h), v(SS + 8 + h)))
    g("v_max3_f32 %s, %s, %s, %s" % (v(m), v(m), v(SS + 12 + h), v(SS + 16 + h)))
    g("v_max_f32 %s, %s, %s" % (v(m), v(m), v(SS + 20 + h)))
    allreduce16("v_max_f32", m)
g("v_mul_f32 v5, %s, %s" % (s(S_CEXP), v(VM0)))
g("v_mul_f32 v6, %s, %s" % (s(S_CEXP), v(VM1)))
for u in range(6):
    g("v_fma_f32 %s, %s, %s, -v5" % (v(SS + 4 * u), v(SS + 4 * u), s(S_CEXP)))
    g("v_fma_f32 %s, %s, %s, -v6" % (v(SS + 4 * u + 1), v(SS + 4 * u + 1), s(S_CEXP)))
for u in range(6):
    g("v_exp_f32 %s, %s" % (v(SS + 4 * u), v(SS + 4 * u)))
    g("v_exp_f32 %s, %s" % (v(SS + 4 * u + 1), v(SS + 4 * u + 1)))
v_issue(4)
for u in range(6):
    g("v_cvt_pk_bf16_f32 %s, %s, %s" % (v(SS + 4 * u + 2), v(SS + 4 * u), v(SS + 4 * u + 1)))
for h in range(2):
    l = VL0 + h
    g("v_add_f32 %s, %s, %s" % (v(l), v(SS + h), v(SS + 4 + h)))
    for u in range(2, 6):
        g("v_add_f32 %s, %s, %s" % (v(l), v(l), v(SS + 4 * u + h)))
    allreduce16("v_add_f32", l)
g("s_mul_i32 %s, %s, 384" % (s(S_T0), s(S_WAVE)))
g("v_and_b32 v5, 3, v9")
g("v_mul_u32_u24 v5, 48, v5")
g("v_lshrrev_b32 v6, 2, v9")
g("v_lshl_add_u32 v5, v6, 1, v5")
g("v_add_u32 v5, %s, v5" % s(S_T0))
g("s_mov_b64 exec, 0xffff")
for u in range(6):
    g("ds_write_b16 v5, %s offset:%d" % (v(SS + 4 * u + 2), LA_PBUF + 8 * u))
    g("ds_write_b16_d16_hi v5, %s offset:%d" % (v(SS + 4 * u + 2), LA_PBUF + 192 + 8 * u))
g("s_mov_b64 exec, -1")
v_issue(5)
g.c("---- wo slice prefetch into BUF1 (8 x dwordx3)")
g("s_lshl_b32 %s, %s, 8" % (s(S_T0), s(S_KVH)))
g("s_lshl_b32 %s, %s, 5" % (s(S_T1), s(S_WAVE)))
g("s_add_u32 %s, %s, %s" % (s(S_T0), s(S_T0), s(S_T1)))
g("s_mul_i32 %s, %s, 1152" % (s(S_T0), s(S_T0)))
g("s_mul_i32 %s, %s, 192" % (s(S_T1), s(S_SPLIT)))
g("s_add_u32 %s, %s, %s" % (s(S_T0), s(S_T0), s(S_T1)))
g("v_mul_u32_u24 v5, 2304, v10")
g("v_mul_u32_u24 v6, 12, v9")
g("v_add3_u32 v5, v5, v6, %s" % s(S_T0))
for jj in range(4):
    for t in range(2):
        g("v_add_u32 v6, %d, v5" % ((8 * jj + t) * 1152))
        g("global_load_dwordx3 %s, v6, %s" % (v(BUF1 + (jj * 2 + t) * 4, 3), sp(P_WO)))
g("s_mov_b64 exec, 1")
g("v_mov_b32 v60, %s" % v(VM0))
g("v_mov_b32 v61, %s" % v(VL0))
g("v_mov_b32 v62, %s" % v(VM1))
g("v_mov_b32 v63, %s" % v(VL1))
g("s_lshl_b32 %s, %s, 4" % (s(S_T0), s(S_WAVE)))
g("v_mov_b32 v3, %s" % s(S_T0))
g("ds_write_b128 v3, v[60:63] offset:%d" % LA_STAT)
g("s_mov_b64 exec, -1")
g("s_waitcnt lgkmcnt(0)")
g("s_mul_i32 %s, %s, 384" % (s(S_T0), s(S_WAVE)))
g("v_mul_u32_u24 v5, 48, v10")
g("v_add_u32 v5, %s, v5" % s(S_T0))
P2 = SS
for h in range(2):
    for q in range(3):
        g("ds_read_b128 %s, v5 offset:%d" % (v(P2 + h * 12 + q * 4, 4), LA_PBUF + h * 192 + q * 16))
OA = QF
for i in range(16):
    g("v_mov_b32 %s, 0" % v(OA + i))
g("s_waitcnt lgkmcnt(0)")
g.c("---- PV")
for j in range(12):
    g("s_waitcnt vmcnt(%d)" % (24 - 2 * (j + 1) + 8))
    r0 = BUF0 + (2 * j) * 4
    r1 = r0 + 4
    for e in range(4):
        g("v_perm_b32 v7, %s, %s, %s" % (v(r1 + e), v(r0 + e), s(S_SELLO)))
        g("v_perm_b32 v8, %s, %s, %s" % (v(r1 + e), v(r0 + e), s(S_SELHI)))
        for h in range(2):
            g("v_dot2_f32_bf16 %s, v7, %s, %s" % (v(OA + h * 8 + 2 * e), v(P2 + h * 12 + j), v(OA + h * 8 + 2 * e)))
            g("v_dot2_f32_bf16 %s, v8, %s, %s" % (v(OA + h * 8 + 2 * e + 1), v(P2 + h * 12 + j), v(OA + h * 8 + 2 * e + 1)))
stamp(3)
g.c("---- WG reduce of o")
g("s_lshl_b32 %s, %s, 12" % (s(S_T0), s(S_WAVE)))
g("v_lshlrev_b32 v5, 10, v10")
g("v_lshl_add_u32 v5, v9, 5, v5")
g("v_add_u32 v5, %s, v5" % s(S_T0))
for h in range(2):
    g("ds_write_b128 v5, %s offset:%d" % (v(OA + h * 8, 4), LA_ORED + h * 512))
    g("ds_write_b128 v5, %s offset:%d" % (v(OA + h * 8 + 4, 4), LA_ORED + h * 512 + 16))
barrier()
la1 = g.newlabel("ARED")
g("s_cmp_ge_u32 %s, 4" % s(S_WAVE))
g("s_cbranch_scc1 %s" % la1)
g("v_lshrrev_b32 v3, 7, v0")
g("v_lshlrev_b32 v4, 3, v3")
for w in range(8):
    g("ds_read_b64 %s, v4 offset:%d" % (v(SS + 2 * w, 2), LA_STAT + 16 * w))
g("v_lshlrev_b32 v5, 2, v0")
for i in range(32):
    g("ds_read_b32 %s, v5 offset:%d" % (v(BUF0 + i), LA_ORED + i * 1024))
g("s_waitcnt lgkmcnt(0)")
g("v_max3_f32 v6, %s, %s, %s" % (v(SS), v(SS + 2), v(SS + 4)))
g("v_max3_f32 v6, v6, %s, %s" % (v(SS + 6), v(SS + 8)))
g("v_max3_f32 v6, v6, %s, %s" % (v(SS + 10), v(SS + 12)))
g("v_max_f32 v6, v6, %s" % v(SS + 14))
for w in range(8):
    g("v_sub_f32 %s, %s, v6" % (v(SS + 2 * w), v(SS + 2 * w)))
    g("v_mul_f32 %s, %s, %s" % (v(SS + 2 * w), s(S_CEXP), v(SS + 2 * w)))
    g("v_exp_f32 %s, %s" % (v(SS + 2 * w), v(SS + 2 * w)))
g("v_mov_b32 v7, 0")
g("v_mov_b32 v8, 0")
for w in range(8):
    g("v_fmac_f32 v7, %s, %s" % (v(SS + 2 * w), v(SS + 2 * w + 1)))
    g("v_add_f32 %s, %s, %s" % (v(BUF0 + 4 * w), v(BUF0 + 4 * w), v(BUF0 + 4 * w + 1)))
    g("v_add_f32 %s, %s, %s" % (v(BUF0 + 4 * w + 2), v(BUF0 + 4 * w + 2), v(BUF0 + 4 * w + 3)))
    g("v_add_f32 %s, %s, %s" % (v(BUF0 + 4 * w), v(BUF0 + 4 * w), v(BUF0 + 4 * w + 2)))
    g("v_fmac_f32 v8, %s, %s" % (v(SS + 2 * w), v(BUF0 + 4 * w)))
g("s_mul_i32 %s, %s, 6" % (s(S_T0), s(S_PAIR)))
g("s_add_u32 %s, %s, %s" % (s(S_T0), s(S_T0), s(S_SPLIT)))
g("s_lshl_b32 %s, %s, 11" % (s(S_T1), s(S_T0)))
g("s_add_u32 %s, %s, 0x%x" % (s(S_T1), s(S_T1), WS_APART2))
g("v_lshl_add_u32 v5, v0, 3, %s" % s(S_T1))
g("v_mov_b32 v9, %s" % s(S_NONCE))
g("global_store_dwordx2 v5, v[8:9], %s sc1" % sp(P_WS))
g("s_lshl_b32 %s, %s, 5" % (s(S_T1), s(S_T0)))
g("s_add_u32 %s, %s, 0x%x" % (s(S_T1), s(S_T1), WS_ASTAT2))
g("v_lshl_add_u32 v4, v3, 4, %s" % s(S_T1))
g("v_mov_b32 %s, v6" % v(SS))
g("v_mov_b32 %s, %s" % (v(SS + 1), s(S_NONCE)))
g("v_mov_b32 %s, v7" % v(SS + 2))
g("v_mov_b32 %s, %s" % (v(SS + 3), s(S_NONCE)))
g("v_and_b32 v3, 127, v0")
g("v_cmp_eq_u32 vcc, 0, v3")
g("s_and_saveexec_b64 %s, vcc" % sp(58))
lz = g.newlabel("ASTZ")
g("s_cbranch_execz %s" % lz)
g("global_store_dwordx4 v4, %s, %s sc1" % (v(SS, 4), sp(P_WS)))
g.label(lz)
g("s_mov_b64 exec, %s" % sp(58))
g("v_and_b32 v9, 15, %s" % v(VL))
g.label(la1)
stamp(4)
g.c("---- combine")
la2 = g.newlabel("ACMB")
g("s_cmp_ge_u32 %s, 4" % s(S_WAVE))
g("s_cbranch_scc1 %s" % la2)
g("s_mul_i32 %s, %s, 6" % (s(S_T0), s(S_PAIR)))
g("s_lshl_b32 %s, %s, 11" % (s(S_T1), s(S_T0)))
g("s_add_u32 %s, %s, 0x%x" % (s(S_T1), s(S_T1), WS_APART2))
g("v_lshl_add_u32 v5, v0, 3, %s" % s(S_T1))
g("s_lshl_b32 %s, %s, 5" % (s(S_T1), s(S_T0)))
g("s_add_u32 %s, %s, 0x%x" % (s(S_T1), s(S_T1), WS_ASTAT2))
g("v_lshrrev_b32 v3, 7, v0")
g("v_lshl_add_u32 v4, v3, 4, %s" % s(S_T1))
lp = tag_retry_begin(S_T2)
for i in range(6):
    g("v_add_u32 v6, %d, v5" % (2048 * i))
    g("global_load_dwordx2 %s, v6, %s sc1" % (v(BUF0 + 2 * i, 2), sp(P_WS)))
for i in range(6):
    g("global_load_dwordx4 %s, v4, %s offset:%d sc1" % (v(BUF0 + 16 + 4 * i, 4), sp(P_WS), 32 * i))
g("s_waitcnt vmcnt(0)")
g("v_xor_b32 v6, %s, %s" % (s(S_NONCE), v(BUF0 + 1)))
for i in range(1, 6):
    g("v_xor_b32 v7, %s, %s" % (s(S_NONCE), v(BUF0 + 2 * i + 1)))
    g("v_or_b32 v6, v6, v7")
for i in range(6):
    for k in (1, 3):
        g("v_xor_b32 v7, %s, %s" % (s(S_NONCE), v(BUF0 + 16 + 4 * i + k)))
        g("v_or_b32 v6, v6, v7")
tag_retry_end(lp, 6, S_T2)
for i in range(6):
    g("v_mov_b32 %s, %s" % (v(SS + 2 * i), v(BUF0 + 16 + 4 * i)))
    g("v_mov_b32 %s, %s" % (v(SS + 2 * i + 1), v(BUF0 + 16 + 4 * i + 2)))
    g("v_mov_b32 %s, %s" % (v(SS + 12 + i), v(BUF0 + 2 * i)))
g("v_max3_f32 v6, %s, %s, %s" % (v(SS), v(SS + 2), v(SS + 4)))
g("v_max3_f32 v6, v6, %s, %s" % (v(SS + 6), v(SS + 8)))
g("v_max_f32 v6, v6, %s" % v(SS + 10))
for i in range(6):
    g("v_sub_f32 %s, %s, v6" % (v(SS + 2 * i), v(SS + 2 * i)))
    g("v_mul_f32 %s, %s, %s" % (v(SS + 2 * i), s(S_CEXP), v(SS + 2 * i)))
    g("v_exp_f32 %s, %s" % (v(SS + 2 * i), v(SS + 2 * i)))
g("v_mov_b32 v7, 0")
g("v_mov_b32 v8, 0")
for i in range(6):
    g("v_fmac_f32 v7, %s, %s" % (v(SS + 2 * i), v(SS + 2 * i + 1)))
    g("v_fmac_f32 v8, %s, %s" % (v(SS + 2 * i), v(SS + 12 + i)))
g("v_rcp_f32 v7, v7")
g("s_nop 0")
g("v_mul_f32 v8, v8, v7")
g("v_cvt_pk_bf16_f32 v6, v8, v8")
g("v_lshlrev_b32 v5, 1, v0")
g("ds_write_b16 v5, v6 offset:%d" % LA_OBF)
g.label(la2)
barrier()
g("s_waitcnt vmcnt(0)")
g.c("---- wo projection: wave rows 32w + 8jj + 2r + t")
g("s_lshl_b32 %s, %s, 6" % (s(S_T0), s(S_WAVE)))
g("v_lshl_add_u32 v5, v10, 2, %s" % s(S_T0))
for jj in range(4):
    g("ds_read_b32 %s, v5 offset:%d" % (v(SS + jj), LA_OBF + 16 * jj))
for e in range(6):
    g("v_mov_b32 %s, 0" % v(QF + e))
g("s_waitcnt lgkmcnt(0)")
for jj in range(4):
    r0 = BUF1 + (jj * 2) * 4
    r1 = r0 + 4
    for e in range(3):
        g("v_perm_b32 v7, %s, %s, %s" % (v(r1 + e), v(r0 + e), s(S_SELLO)))
        g("v_perm_b32 v8, %s, %s, %s" % (v(r1 + e), v(r0 + e), s(S_SELHI)))
        g("v_dot2_f32_bf16 %s, v7, %s, %s" % (v(QF + 2 * e), v(SS + jj), v(QF + 2 * e)))
        g("v_dot2_f32_bf16 %s, v8, %s, %s" % (v(QF + 2 * e + 1), v(SS + jj), v(QF + 2 * e + 1)))
g("s_mul_i32 %s, %s, 1536" % (s(S_T0), s(S_WAVE)))
g("v_mul_u32_u24 v5, 384, v10")
g("v_mul_u32_u24 v6, 24, v9")
g("v_add3_u32 v5, v5, v6, %s" % s(S_T0))
for e in range(3):
    g("ds_write_b64 v5, %s offset:%d" % (v(QF + 2 * e, 2), LA_YRED + 8 * e))
barrier()
la3 = g.newlabel("AY")
g("v_cmp_gt_u32 vcc, 96, v0")
g("s_and_saveexec_b64 %s, vcc" % sp(58))
g("s_cbranch_execz %s" % la3)
g("v_lshlrev_b32 v5, 2, v0")
for i in range(32):
    g("ds_read_b32 %s, v5 offset:%d" % (v(BUF0 + i), LA_YRED + i * 384))
g("s_waitcnt lgkmcnt(0)")
for st in (16, 8, 4, 2, 1):
    for i in range(st):
        g("v_add_f32 %s, %s, %s" % (v(BUF0 + i), v(BUF0 + i), v(BUF0 + i + st)))
g("s_mul_i32 %s, %s, 4608" % (s(S_T0), s(S_PAIR)))
g("s_mul_i32 %s, %s, 768" % (s(S_T1), s(S_SPLIT)))
g("s_add_u32 %s, %s, %s" % (s(S_T0), s(S_T0), s(S_T1)))
g("s_add_u32 %s, %s, 0x%x" % (s(S_T0), s(S_T0), WS_YA2))
g("v_lshl_add_u32 v5, v0, 3, %s" % s(S_T0))
g("v_mov_b32 %s, %s" % (v(BUF0 + 1), s(S_NONCE)))
g("global_store_dwordx2 v5, %s, %s sc1" % (v(BUF0, 2), sp(P_WS)))
g.label(la3)
g("s_mov_b64 exec, %s" % sp(58))
stamp(5)
g.c("---- finalizer: kvh == 0")
g("s_cmp_lg_u32 %s, 0" % s(S_KVH))
g("s_cbranch_scc1 L_A_END")
lfin = g.newlabel("FIN")
g("s_cmp_lg_u32 %s, 0" % s(S_WAVE))
g("s_cbranch_scc1 %s" % lfin)
g.c("gate: wave 0 computes g for batch b")
g("s_mul_i32 %s, %s, 1152" % (s(S_T0), s(S_B)))
g("v_lshl_add_u32 v5, %s, 1, %s" % (v(VL), s(S_T0)))
g("v_lshlrev_b32 v6, 1, %s" % v(VL))
for i in range(9):
    g("global_load_ushort %s, v5, %s offset:%d" % (v(SS + i), sp(P_AX), 128 * i))
    g("global_load_ushort %s, v6, %s offset:%d" % (v(SS + 9 + i), sp(P_GW), 128 * i))
g("s_waitcnt vmcnt(0)")
g("v_mov_b32 v7, 0")
for i in range(9):
    g("v_lshlrev_b32 %s, 16, %s" % (v(SS + i), v(SS + i)))
    g("v_lshlrev_b32 %s, 16, %s" % (v(SS + 9 + i), v(SS + 9 + i)))
    g("v_mul_f32 %s, %s, %s" % (v(SS + i), v(SS + i), v(SS + 9 + i)))
    g("v_cvt_pk_bf16_f32 %s, %s, %s" % (v(SS + i), v(SS + i), v(SS + i)))
    g("v_lshlrev_b32 %s, 16, %s" % (v(SS + i), v(SS + i)))
    g("v_add_f32 v7, v7, %s" % v(SS + i))
allreduce16("v_add_f32", 7)
g("s_nop 1")
xreduce_16_32("v_add_f32", 7, 8)
g("v_cvt_pk_bf16_f32 v7, v7, v7")
g("v_lshlrev_b32 v7, 16, v7")
g("v_mul_f32 v7, %s, v7" % f32hex(-math.log2(math.e)))
g("v_exp_f32 v7, v7")
g("s_nop 0")
g("v_add_f32 v7, 1.0, v7")
g("v_rcp_f32 v7, v7")
g("s_nop 0")
g("v_cvt_pk_bf16_f32 v7, v7, v7")
g("v_lshlrev_b32 v7, 16, v7")
g("v_mov_b32 v5, 0")
g("ds_write_b32 v5, v7 offset:%d" % LA_G)
g.label(lfin)
barrier()
lf3 = g.newlabel("FIN2")
g("v_cmp_gt_u32 vcc, 480, v0")
g("s_and_saveexec_b64 %s, vcc" % sp(58))
g("s_cbranch_execz %s" % lf3)
g("v_mul_u32_u24 v3, 683, v0")
g("v_lshrrev_b32 v3, 16, v3")
g("v_mul_u32_u24 v4, 96, v3")
g("v_sub_u32 v4, v0, v4")
g("s_mul_i32 %s, %s, %d" % (s(S_T0), s(S_B), 16 * 4608))
g("s_add_u32 %s, %s, 0x%x" % (s(S_T0), s(S_T0), WS_YA2))
g("s_mul_i32 %s, %s, %d" % (s(S_T1), s(S_B), 64 * 4608))
g("s_add_u32 %s, %s, 0x%x" % (s(S_T1), s(S_T1), WS_YB2 - 16 * 4608))
g("v_mul_u32_u24 v5, %d, v3" % (16 * 4608))
g("v_add_u32 v5, %s, v5" % s(S_T1))
g("v_mov_b32 v6, %s" % s(S_T0))
g("v_cmp_eq_u32 vcc, 0, v3")
g("s_nop 1")
g("v_cndmask_b32 v5, v5, v6, vcc")
g("s_mul_i32 %s, %s, 768" % (s(S_T2), s(S_SPLIT)))
g("v_lshl_add_u32 v5, v4, 3, v5")
g("v_add_u32 v5, %s, v5" % s(S_T2))
lp = tag_retry_begin(S_T1)
for i in range(16):
    g("v_add_u32 v6, %d, v5" % (4608 * i))
    g("global_load_dwordx2 %s, v6, %s sc1" % (v(BUF1 + 2 * i, 2), sp(P_WS)))
g("s_waitcnt vmcnt(0)")
g("v_xor_b32 v6, %s, %s" % (s(S_NONCE), v(BUF1 + 1)))
for i in range(1, 16):
    g("v_xor_b32 v7, %s, %s" % (s(S_NONCE), v(BUF1 + 2 * i + 1)))
    g("v_or_b32 v6, v6, v7")
tag_retry_end(lp, 6, S_T1)
for i in range(16):
    g("v_mov_b32 %s, %s" % (v(BUF0 + i), v(BUF1 + 2 * i)))
for st in (8, 4, 2, 1):
    for i in range(st):
        g("v_add_f32 %s, %s, %s" % (v(BUF0 + i), v(BUF0 + i), v(BUF0 + i + st)))
g("v_lshlrev_b32 v5, 2, v0")
g("ds_write_b32 v5, %s offset:%d" % (v(BUF0), LA_FIN))
g.label(lf3)
g("s_mov_b64 exec, %s" % sp(58))
barrier()
g("v_cmp_gt_u32 vcc, 96, v0")
g("s_and_saveexec_b64 %s, vcc" % sp(58))
g("s_cbranch_execz L_A_END")
g("v_lshlrev_b32 v5, 2, v0")
for i in range(5):
    g("ds_read_b32 %s, v5 offset:%d" % (v(SS + i), LA_FIN + 384 * i))
g("v_mov_b32 v6, 0")
g("ds_read_b32 v7, v6 offset:%d" % LA_G)
g("s_waitcnt lgkmcnt(0)")
g("v_add_f32 %s, %s, %s" % (v(SS + 1), v(SS + 1), v(SS + 2)))
g("v_add_f32 %s, %s, %s" % (v(SS + 3), v(SS + 3), v(SS + 4)))
g("v_add_f32 %s, %s, %s" % (v(SS + 1), v(SS + 1), v(SS + 3)))
g("v_cvt_pk_bf16_f32 v8, %s, %s" % (v(SS), v(SS + 1)))
g("v_lshlrev_b32 %s, 16, v8" % v(SS))
g("v_and_b32 %s, 0xffff0000, v8" % v(SS + 1))
g("v_sub_f32 v8, 1.0, v7")
g("v_mul_f32 %s, v7, %s" % (v(SS), v(SS)))
g("v_cvt_pk_bf16_f32 v8, v8, v8")
g("v_lshlrev_b32 v8, 16, v8")
g("v_mul_f32 %s, v8, %s" % (v(SS + 1), v(SS + 1)))
g("v_cvt_pk_bf16_f32 v8, %s, %s" % (v(SS), v(SS + 1)))
g("v_lshlrev_b32 %s, 16, v8" % v(SS))
g("v_and_b32 %s, 0xffff0000, v8" % v(SS + 1))
g("v_add_f32 v8, %s, %s" % (v(SS), v(SS + 1)))
g("v_cvt_pk_bf16_f32 v8, v8, v8")
g("s_mul_i32 %s, %s, 1152" % (s(S_T0), s(S_B)))
g("s_mul_i32 %s, %s, 192" % (s(S_T1), s(S_SPLIT)))
g("s_add_u32 %s, %s, %s" % (s(S_T0), s(S_T0), s(S_T1)))
g("v_lshl_add_u32 v5, v0, 1, %s" % s(S_T0))
g("global_store_short v5, v8, %s" % sp(P_OUT))
g.label("L_A_END")
g("s_mov_b64 exec, -1")
stamp(6)
dump_stamps(10)
g("s_branch L_END")

S_H, S_HALF, S_B2, S_SP2 = 44, 45, 46, 47
LB_U = 131072
LB_WO = 65536
LB_CRED = 139264
LB_CBF = 155648
LB_XRED = 157696
LB_XBF = 161792
def b_prefetch():
    g.c("---- prefetch w_uv / w_o tiles into v176..v243")
    LB_WO = 65536
    LB_CRED = 139264
    LB_CBF = 155648
    LB_XRED = 157696
    LB_XBF = 161792
    g("v_lshrrev_b32 v3, 3, %s" % v(VL))
    g("v_and_b32 v4, 7, %s" % v(VL))
    g("v_lshrrev_b32 v5, 1, v3")
    g("v_and_b32 v5, 3, v5")
    g("v_lshlrev_b32 v5, 1, v5")
    g("v_xor_b32 v4, v4, v5")
    g("v_lshlrev_b32 v4, 4, v4")
    g("v_lshl_add_u32 v4, v3, 13, v4")
    g("s_lshl_b32 %s, %s, 8" % (s(S_T0), s(S_H)))
    g("s_lshl_b32 %s, %s, 7" % (s(S_T1), s(S_HALF)))
    g("s_add_u32 %s, %s, %s" % (s(S_T0), s(S_T0), s(S_T1)))
    g("s_lshl_b32 %s, %s, 19" % (s(S_T1), s(S_WAVE)))
    g("s_add_u32 %s, %s, %s" % (s(S_T0), s(S_T0), s(S_T1)))
    g("v_add_u32 v4, %s, v4" % s(S_T0))
    g("s_lshl_b32 %s, %s, 13" % (s(S_T1), s(S_WAVE)))
    for i in range(8):
        g("v_add_u32 v6, 0x%x, v4" % (i * 8 * 8192))
        g("global_load_dwordx4 %s, v6, %s%s" % (v(176 + 4 * i, 4), sp(P_WUV), NT))
    g("s_lshl_b32 %s, %s, 7" % (s(S_T0), s(S_H)))
    g("s_lshl_b32 %s, %s, 6" % (s(S_T1), s(S_HALF)))
    g("s_add_u32 %s, %s, %s" % (s(S_T0), s(S_T0), s(S_T1)))
    g("s_mul_i32 %s, %s, 1152" % (s(S_T0), s(S_T0)))
    g("s_mul_i32 %s, %s, 576" % (s(S_T1), s(S_WAVE)))
    g("s_mov_b32 %s, 58255" % s(S_T3))
    for i in range(9):
        g("v_add_u32 v3, %s, %s" % (s(S_T1), v(VL)))
        g("v_add_u32 v3, %d, v3" % (64 * i))
        g("v_mul_lo_u32 v4, v3, %s" % s(S_T3))
        g("v_lshrrev_b32 v4, 22, v4")
        g("v_mul_u32_u24 v5, 72, v4")
        g("v_sub_u32 v5, v3, v5")
        g("v_lshrrev_b32 v6, 1, v4")
        g("v_and_b32 v6, 3, v6")
        g("v_lshlrev_b32 v6, 1, v6")
        g("v_xor_b32 v5, v5, v6")
        g("v_mul_u32_u24 v4, 1152, v4")
        g("v_lshl_add_u32 v4, v5, 4, v4")
        g("v_add_u32 v4, %s, v4" % s(S_T0))
        g("global_load_dwordx4 %s, v4, %s%s" % (v(208 + 4 * i, 4), sp(P_BWO), NT))


g.label("L_ROLE_B")
g.c("---- role B setup")
stamp(0)
g("s_and_b32 %s, s2, 7" % s(S_T0))
g("s_lshr_b32 %s, s2, 3" % s(S_T1))
g("s_lshl_b32 %s, %s, 2" % (s(S_H), s(S_T0)))
g("s_lshr_b32 %s, %s, 1" % (s(S_T2), s(S_T1)))
g("s_add_u32 %s, %s, %s" % (s(S_H), s(S_H), s(S_T2)))
g("s_and_b32 %s, %s, 1" % (s(S_HALF), s(S_T1)))
g("s_lshr_b32 %s, s2, 5" % s(S_B2))
g("s_and_b32 %s, s2, 31" % s(S_SP2))
g("v_and_b32 v9, 15, %s" % v(VL))
g("v_lshrrev_b32 v10, 4, %s" % v(VL))
XP = 12
BACC = 30
WQB = 64
WUKR = 136
g("s_lshl_b32 %s, %s, 8" % (s(S_T1), s(S_H)))
g("s_lshl_b32 %s, %s, 8" % (s(S_T0), s(S_HALF)))
g("s_lshl_b32 %s, %s, 5" % (s(S_T2), s(S_WAVE)))
g("s_add_u32 %s, %s, %s" % (s(S_T0), s(S_T0), s(S_T2)))
g("s_lshl_b32 %s, %s, 13" % (s(S_T2), s(S_T0)))
g("s_add_u32 %s, %s, %s" % (s(S_T2), s(S_T2), s(S_T1)))
g("v_lshlrev_b32 v5, 13, v9")
g("v_lshl_add_u32 v5, v10, 4, v5")
g("v_add_u32 v5, %s, v5" % s(S_T2))
for gq in range(2):
    g("v_add_u32 v6, 0x%x, v5" % (gq * 16 * 8192))
    for st in range(4):
        g("global_load_dwordx4 %s, v6, %s offset:%d%s" % (v(WUKR + (gq * 4 + st) * 4, 4), sp(P_WUK), st * 64, NT))
g.c("C tile -> registers v168..v231 (rows 16w + i)")
CT = 168
g("s_lshl_b32 %s, %s, 12" % (s(S_T0), s(S_B2)))
g("s_lshl_b32 %s, %s, 7" % (s(S_T1), s(S_SP2)))
g("s_add_u32 %s, %s, %s" % (s(S_T0), s(S_T0), s(S_T1)))
g("s_lshl_b32 %s, %s, 4" % (s(S_T1), s(S_WAVE)))
g("s_add_u32 %s, %s, %s" % (s(S_T0), s(S_T0), s(S_T1)))
g("s_lshl_b32 %s, %s, 10" % (s(S_T0), s(S_T0)))
g("v_lshl_add_u32 v5, %s, 4, %s" % (v(VL), s(S_T0)))
for i in range(16):
    if i % 4 == 0 and i:
        g("v_add_u32 v5, 4096, v5")
    g("global_load_dwordx4 %s, v5, %s offset:%d%s" % (v(CT + 4 * i, 4), sp(P_CKV), (i % 4) * 1024, NT))
g.c("wave 0: wait for 6 q_B partial flags of head h")
lbq = g.newlabel("BQ")
g("s_cmp_lg_u32 %s, 0" % s(S_WAVE))
g("s_cbranch_scc1 %s" % lbq)
get_nonce(5, 6, S_T1)
g.c("gather: lane -> 4 values; 6 partials (tagged)")
g("s_mul_i32 %s, %s, 12288" % (s(S_T0), s(S_H)))
g("s_add_u32 %s, %s, 0x%x" % (s(S_T0), s(S_T0), WS_QBPART))
g("v_lshl_add_u32 v5, %s, 5, %s" % (v(VL), s(S_T0)))
lp = tag_retry_begin(S_T1)
for i in range(6):
    g("v_add_u32 v6, %d, v5" % (2048 * i))
    g("global_load_dwordx4 %s, v6, %s sc1" % (v(WQB + 8 + 8 * i, 4), sp(P_WS)))
    g("global_load_dwordx4 %s, v6, %s offset:16 sc1" % (v(WQB + 12 + 8 * i, 4), sp(P_WS)))
g("s_waitcnt vmcnt(0)")
g("v_mov_b32 v6, 0")
for i in range(6):
    for k in (1, 3, 5, 7):
        g("v_xor_b32 v7, %s, %s" % (s(S_NONCE), v(WQB + 8 + 8 * i + k)))
        g("v_or_b32 v6, v6, v7")
tag_retry_end(lp, 6, S_T1)
for k in range(4):
    g("v_add_f32 %s, %s, %s" % (v(WQB + k), v(WQB + 8 + 2 * k), v(WQB + 16 + 2 * k)))
for i in range(2, 6):
    for k in range(4):
        g("v_add_f32 %s, %s, %s" % (v(WQB + k), v(WQB + k), v(WQB + 8 + 8 * i + 2 * k)))
g("v_cvt_pk_bf16_f32 v6, %s, %s" % (v(WQB), v(WQB + 1)))
g("v_cvt_pk_bf16_f32 v7, %s, %s" % (v(WQB + 2), v(WQB + 3)))
g("v_lshlrev_b32 v5, 3, %s" % v(VL))
g("v_add_u32 v5, %d, v5" % LB_U)
g("ds_write_b64 v5, v[6:7]")
g("v_mov_b32 v5, %d" % (LB_U + 640))
g("v_mov_b32 v6, %s" % s(S_NONCE))
g("ds_write_b32 v5, v6")
g.label(lbq)
barrier()
g("v_mov_b32 v5, %d" % (LB_U + 640))
g("ds_read_b32 v6, v5")
g("s_waitcnt lgkmcnt(0)")
g("v_readfirstlane_b32 %s, v6" % s(S_NONCE))
g.c("q frags (B operand): col n<2 = batch ; slab g")
QFB = 48
for i in range(16):
    g("v_mov_b32 %s, 0" % v(QFB + i))
g("v_lshlrev_b32 v5, 8, v9")
g("v_lshl_add_u32 v5, v10, 4, v5")
g("v_add_u32 v5, %d, v5" % LB_U)
g("v_cmp_gt_u32 vcc, 2, v9")
g("s_and_saveexec_b64 %s, vcc" % sp(58))
for j in range(4):
    g("ds_read_b128 %s, v5 offset:%d" % (v(QFB + 4 * j, 4), 64 * j))
g("s_mov_b64 exec, %s" % sp(58))
g("s_waitcnt vmcnt(16) lgkmcnt(0)")
DQ = 12
for gq in range(2):
    for st in range(4):
        cc = "0" if st == 0 else v(DQ + 4 * gq, 4)
        g("v_mfma_f32_16x16x32_bf16 %s, %s, %s, %s" % (v(DQ + 4 * gq, 4), v(WUKR + (gq * 4 + st) * 4, 4), v(QFB + 4 * st, 4), cc))
g("s_nop 7")
g("s_nop 1")
WS_QABS2 = 0x700000
g("s_lshl_b32 %s, %s, 8" % (s(S_T0), s(S_HALF)))
g("s_lshl_b32 %s, %s, 5" % (s(S_T2), s(S_WAVE)))
g("s_add_u32 %s, %s, %s" % (s(S_T0), s(S_T0), s(S_T2)))
g("s_lshl_b32 %s, %s, 2" % (s(S_T0), s(S_T0)))
g("s_lshl_b32 %s, %s, 11" % (s(S_T1), s(S_H)))
g("s_add_u32 %s, %s, %s" % (s(S_T0), s(S_T0), s(S_T1)))
g("s_add_u32 %s, %s, 0x%x" % (s(S_T0), s(S_T0), WS_QABS2))
g("v_lshlrev_b32 v5, 16, v9")
g("v_lshl_add_u32 v5, v10, 4, v5")
g("v_add_u32 v5, %s, v5" % s(S_T0))
for gq in range(2):
    g("v_cvt_pk_bf16_f32 %s, %s, %s" % (v(20 + 4 * gq), v(DQ + 4 * gq), v(DQ + 4 * gq + 1)))
    g("v_mov_b32 %s, %s" % (v(21 + 4 * gq), s(S_NONCE)))
    g("v_cvt_pk_bf16_f32 %s, %s, %s" % (v(22 + 4 * gq), v(DQ + 4 * gq + 2), v(DQ + 4 * gq + 3)))
    g("v_mov_b32 %s, %s" % (v(23 + 4 * gq), s(S_NONCE)))
g("v_cmp_gt_u32 vcc, 2, v9")
g("s_and_saveexec_b64 %s, vcc" % sp(58))
for gq in range(2):
    g("global_store_dwordx4 v5, %s, %s offset:%d sc1" % (v(20 + 4 * gq, 4), sp(P_WS), 64 * gq))
g("s_mov_b64 exec, %s" % sp(58))
stamp(1)
g("s_lshl_b32 %s, %s, 14" % (s(S_T1), s(S_WAVE)))
for k in range(8):
    g("v_xor_b32 %s, %d, %s" % (v(32 + k), 2 * k, v(VL)))
    g("v_lshl_add_u32 %s, %s, 4, %s" % (v(32 + k), v(32 + k), s(S_T1)))
g("s_waitcnt vmcnt(2)")
for i in range(16):
    g("ds_write_b128 %s, %s offset:%d" % (v(32 + (i & 7)), v(CT + 4 * i, 4), i * 1024))
g("s_waitcnt lgkmcnt(0)")
g("s_barrier")
g("s_barrier")
stamp(2)
g.c("---- B2: load q_abs[b2] (tagged) -> LDS U (swizzled)")
g("s_lshl_b32 %s, %s, 16" % (s(S_T0), s(S_B2)))
g("s_lshl_b32 %s, %s, 13" % (s(S_T1), s(S_WAVE)))
g("s_add_u32 %s, %s, %s" % (s(S_T0), s(S_T0), s(S_T1)))
g("s_add_u32 %s, %s, 0x%x" % (s(S_T0), s(S_T0), WS_QABS2))
g("v_lshlrev_b32 v5, 10, %s" % v(VL))
g("v_add_u32 v5, %s, v5" % s(S_T0))
g("s_mov_b64 exec, 0xff")
lp = tag_retry_begin(S_T2)
g("global_load_dword v6, v5, %s offset:1020 sc1" % sp(P_WS))
g("s_waitcnt vmcnt(0)")
g("v_xor_b32 v6, %s, v6" % s(S_NONCE))
tag_retry_end(lp, 6, S_T2)
g("s_mov_b64 exec, -1")
g("v_lshl_add_u32 v5, %s, 4, %s" % (v(VL), s(S_T0)))
lp = tag_retry_begin(S_T2)
for i in range(8):
    if i == 4:
        g("v_add_u32 v5, 4096, v5")
    g("global_load_dwordx4 %s, v5, %s offset:%d sc1" % (v(64 + 4 * i, 4), sp(P_WS), 1024 * (i % 4)))
g("v_add_u32 v5, -4096, v5") if False else g("v_subrev_u32 v5, 4096, v5")
g("s_waitcnt vmcnt(0)")
g("v_mov_b32 v6, 0")
for i in range(8):
    for k in (1, 3):
        g("v_xor_b32 v7, %s, %s" % (s(S_NONCE), v(64 + 4 * i + k)))
        g("v_or_b32 v6, v6, v7")
tag_retry_end(lp, 6, S_T2)
g("s_and_b32 %s, %s, 1" % (s(S_T2), s(S_WAVE)))
g("s_lshl_b32 %s, %s, 3" % (s(S_T2), s(S_T2)))
g("s_lshl_b32 %s, %s, 12" % (s(S_T1), s(S_WAVE)))
g("s_add_u32 %s, %s, %d" % (s(S_T1), s(S_T1), LB_U))
g("v_lshrrev_b32 v3, 1, %s" % v(VL))
g("v_and_b32 v4, 1, %s" % v(VL))
g("v_lshlrev_b32 v4, 3, v4")
g("v_add_u32 v4, %s, v4" % s(S_T1))
for j in range(4):
    g("s_add_u32 %s, %s, %d" % (s(S_T3), s(S_T2), 2 * j))
    g("v_xor_b32 v7, %s, v3" % s(S_T3))
    g("v_lshl_add_u32 v7, v7, 4, v4")
    for hh in range(2):
        r = 64 + 4 * (2 * j + hh)
        g("v_mov_b32 %s, %s" % (v(r + 1), v(r + 2)))
        g("ds_write_b64 v7, %s offset:%d" % (v(r, 2), j * 1024 + hh * 512))
b_prefetch()
barrier()
stamp(6)
g.c("QK^T: S^T[hg] (keys x heads)")
g("v_and_b32 v5, 7, v9")
g("v_lshlrev_b32 v5, 1, v5")
g("v_xor_b32 v5, v5, v10")
g("v_lshlrev_b32 v5, 4, v5")
g("s_lshl_b32 %s, %s, 14" % (s(S_T0), s(S_WAVE)))
g("v_lshlrev_b32 v6, 10, v9")
g("v_add_u32 v7, %s, v6" % s(S_T0))
g("v_add_u32 v8, %d, v6" % LB_U)
SQ = 12
FR = 64
nb = 4
for bt in range(4):
    base = FR + (bt & 1) * 48
    for k in range(4):
        st = bt * 4 + k
        g("v_xor_b32 v3, %d, v5" % (st * 64))
        g("v_add_u32 v4, v3, v7")
        g("v_add_u32 v3, v3, v8")
        g("ds_read_b128 %s, v4" % v(base + k * 12, 4))
        g("ds_read_b128 %s, v3" % v(base + k * 12 + 4, 4))
        g("ds_read_b128 %s, v3 offset:16384" % v(base + k * 12 + 8, 4))
    if bt > 0:
        g("s_waitcnt lgkmcnt(12)")
        pb = FR + ((bt - 1) & 1) * 48
        for k in range(4):
            st = (bt - 1) * 4 + k
            for hg in range(2):
                cc = "0" if st == 0 else v(SQ + 4 * hg, 4)
                g("v_mfma_f32_16x16x32_bf16 %s, %s, %s, %s" % (v(SQ + 4 * hg, 4), v(pb + k * 12, 4), v(pb + k * 12 + 4 + 4 * hg, 4), cc))
g("s_waitcnt lgkmcnt(0)")
pb = FR + 48
for k in range(4):
    for hg in range(2):
        g("v_mfma_f32_16x16x32_bf16 %s, %s, %s, %s" % (v(SQ + 4 * hg, 4), v(pb + k * 12, 4), v(pb + k * 12 + 4 + 4 * hg, 4), v(SQ + 4 * hg, 4)))
g("s_nop 7")
g("s_nop 1")
stamp(7)
MW = 20
for hg in range(2):
    g("v_max3_f32 %s, %s, %s, %s" % (v(MW + hg), v(SQ + 4 * hg), v(SQ + 4 * hg + 1), v(SQ + 4 * hg + 2)))
    g("v_max_f32 %s, %s, %s" % (v(MW + hg), v(MW + hg), v(SQ + 4 * hg + 3)))
    xreduce_16_32("v_max_f32", MW + hg, 3)
g("s_barrier")
LB_WM = LB_U
LB_WL = LB_U + 1024
LB_P = LB_U + 2048
PSTR = 288
g("s_lshl_b32 %s, %s, 7" % (s(S_T0), s(S_WAVE)))
g("v_lshl_add_u32 v3, v9, 2, %s" % s(S_T0))
g("v_add_u32 v3, %d, v3" % LB_U)
g("s_mov_b64 exec, 0xffff")
g("ds_write_b32 v3, %s" % v(MW))
g("ds_write_b32 v3, %s offset:64" % v(MW + 1))
g("s_mov_b64 exec, -1")
barrier()
g("v_lshlrev_b32 v4, 2, v9")
g("v_add_u32 v4, %d, v4" % LB_U)
for hg in range(2):
    for w in range(8):
        g("ds_read_b32 %s, v4 offset:%d" % (v(64 + hg * 8 + w), w * 128 + hg * 64))
g("s_waitcnt lgkmcnt(0)")
MG = 22
for hg in range(2):
    b0 = 64 + hg * 8
    g("v_max3_f32 %s, %s, %s, %s" % (v(MG + hg), v(b0), v(b0 + 1), v(b0 + 2)))
    g("v_max3_f32 %s, %s, %s, %s" % (v(MG + hg), v(MG + hg), v(b0 + 3), v(b0 + 4)))
    g("v_max3_f32 %s, %s, %s, %s" % (v(MG + hg), v(MG + hg), v(b0 + 5), v(b0 + 6)))
    g("v_max_f32 %s, %s, %s" % (v(MG + hg), v(MG + hg), v(b0 + 7)))
    g("v_mul_f32 v3, %s, %s" % (s(S_CEXP), v(MG + hg)))
    for r in range(4):
        g("v_fma_f32 %s, %s, %s, -v3" % (v(SQ + 4 * hg + r), v(SQ + 4 * hg + r), s(S_CEXP)))
    for r in range(4):
        g("v_exp_f32 %s, %s" % (v(SQ + 4 * hg + r), v(SQ + 4 * hg + r)))
LW = 24
for hg in range(2):
    g("v_add_f32 %s, %s, %s" % (v(LW + hg), v(SQ + 4 * hg), v(SQ + 4 * hg + 1)))
    g("v_add_f32 v3, %s, %s" % (v(SQ + 4 * hg + 2), v(SQ + 4 * hg + 3)))
    g("v_add_f32 %s, %s, v3" % (v(LW + hg), v(LW + hg)))
    xreduce_16_32("v_add_f32", LW + hg, 3)
g("s_lshl_b32 %s, %s, 5" % (s(S_T0), s(S_WAVE)))
g("v_mul_u32_u24 v4, %d, v9" % PSTR)
g("v_lshl_add_u32 v4, v10, 3, v4")
g("v_add_u32 v4, %s, v4" % s(S_T0))
g("v_add_u32 v4, %d, v4" % LB_P)
for hg in range(2):
    g("v_cvt_pk_bf16_f32 %s, %s, %s" % (v(26 + 2 * hg), v(SQ + 4 * hg), v(SQ + 4 * hg + 1)))
    g("v_cvt_pk_bf16_f32 %s, %s, %s" % (v(27 + 2 * hg), v(SQ + 4 * hg + 2), v(SQ + 4 * hg + 3)))
    g("ds_write_b64 v4, %s offset:%d" % (v(26 + 2 * hg, 2), hg * 16 * PSTR))
g("s_lshl_b32 %s, %s, 7" % (s(S_T0), s(S_WAVE)))
g("v_lshl_add_u32 v3, v9, 2, %s" % s(S_T0))
g("v_add_u32 v3, %d, v3" % LB_WL)
g("s_mov_b64 exec, 0xffff")
g("ds_write_b32 v3, %s" % v(LW))
g("ds_write_b32 v3, %s offset:64" % v(LW + 1))
g("s_mov_b64 exec, -1")
barrier()
g.c("stats by wave 0: lanes 0..15 for hg 0,1")
lb4 = g.newlabel("B2S")
g("s_cmp_lg_u32 %s, 0" % s(S_WAVE))
g("s_cbranch_scc1 %s" % lb4)
g("v_lshlrev_b32 v4, 2, v9")
g("v_add_u32 v4, %d, v4" % LB_WL)
for hg in range(2):
    for w in range(8):
        g("ds_read_b32 %s, v4 offset:%d" % (v(64 + hg * 8 + w), w * 128 + hg * 64))
g("s_waitcnt lgkmcnt(0)")
for hg in range(2):
    b0 = 64 + hg * 8
    for st in (4, 2, 1):
        for i in range(st):
            g("v_add_f32 %s, %s, %s" % (v(b0 + i), v(b0 + i), v(b0 + i + st)))
g("s_lshl_b32 %s, s2, 8" % s(S_T0))
g("s_add_u32 %s, %s, 0x%x" % (s(S_T0), s(S_T0), WS_BSTAT))
g("v_lshl_add_u32 v4, v9, 3, %s" % s(S_T0))
g("s_mov_b64 exec, 0xffff")
for hg in range(2):
    g("v_mov_b32 v6, %s" % v(MG + hg))
    g("v_mov_b32 v7, %s" % v(64 + hg * 8))
    g("global_store_dwordx2 v4, v[6:7], %s offset:%d sc1" % (sp(P_WS), hg * 128))
    g("s_nop 1")
g("s_mov_b64 exec, -1")
g.label(lb4)
stamp(8)
g.c("PV: D[hg][cg] = C^T x P^T")
g("v_lshrrev_b32 v3, 2, v9")
g("v_lshl_add_u32 v3, v10, 2, v3")
g("v_and_b32 v4, 7, v3")
g("v_lshlrev_b32 v4, 1, v4")
g("v_lshlrev_b32 v3, 10, v3")
g("v_and_b32 v5, 3, v9")
g("v_lshrrev_b32 v6, 1, v5")
g("v_and_b32 v5, 1, v5")
g("v_lshl_add_u32 v3, v5, 3, v3")
g("s_lshl_b32 %s, %s, 3" % (s(S_T0), s(S_WAVE)))
g("v_add_u32 v6, %s, v6" % s(S_T0))
AD = 32
for cg in range(4):
    g("v_add_u32 v7, %d, v6" % (2 * cg))
    g("v_xor_b32 v7, v7, v4")
    g("v_lshl_add_u32 %s, v7, 4, v3" % v(AD + cg))
    g("v_add_u32 %s, 0x10000, %s" % (v(AD + 4 + cg), v(AD + cg)))
g("v_mul_u32_u24 v7, %d, v9" % PSTR)
g("v_lshl_add_u32 v7, v10, 3, v7")
g("v_add_u32 v7, %d, v7" % LB_P)
PF = 40
g("v_add_u32 v8, %d, v7" % (16 * PSTR))
for hg in range(2):
    for ks in range(4):
        g("ds_read2_b64 %s, %s offset0:%d offset1:%d" % (v(PF + (hg * 4 + ks) * 4, 4), "v7" if hg == 0 else "v8", ks * 8, ks * 8 + 4))
CF = 80
for cg in range(4):
    for ks in range(4):
        a = AD + cg + (4 if ks >= 2 else 0)
        off = (ks & 1) * 32768
        g("ds_read_b64_tr_b16 %s, %s offset:%d" % (v(CF + (cg * 4 + ks) * 4, 2), v(a), off))
        g("ds_read_b64_tr_b16 %s, %s offset:%d" % (v(CF + (cg * 4 + ks) * 4 + 2, 2), v(a), off + 16384))
g("s_waitcnt lgkmcnt(0)")
DA = 144
for ks in range(4):
    for hg in range(2):
        for cg in range(4):
            d = DA + (hg * 4 + cg) * 4
            cc = "0" if ks == 0 else v(d, 4)
            g("v_mfma_f32_16x16x32_bf16 %s, %s, %s, %s" % (v(d, 4), v(CF + (cg * 4 + ks) * 4, 4), v(PF + (hg * 4 + ks) * 4, 4), cc))
g("s_nop 7")
g("s_nop 1")
stamp(9)
g("s_lshl_b32 %s, s2, 15" % s(S_T0))
g("s_lshl_b32 %s, %s, 7" % (s(S_T1), s(S_WAVE)))
g("s_add_u32 %s, %s, %s" % (s(S_T0), s(S_T0), s(S_T1)))
g("s_add_u32 %s, %s, 0x%x" % (s(S_T0), s(S_T0), WS_BPART))
g("v_lshlrev_b32 v3, 10, v9")
g("v_lshl_add_u32 v3, v10, 5, v3")
g("v_add_u32 v3, %s, v3" % s(S_T0))
for hg in range(2):
    for cg in range(4):
        d = DA + (hg * 4 + cg) * 4
        o = 64 + hg * 8 + cg * 2
        g("v_cvt_pk_bf16_f32 %s, %s, %s" % (v(o), v(d), v(d + 1)))
        g("v_cvt_pk_bf16_f32 %s, %s, %s" % (v(o + 1), v(d + 2), v(d + 3)))
g("v_add_u32 v4, 16384, v3")
g("global_store_dwordx4 v3, %s, %s sc1" % (v(64, 4), sp(P_WS)))
g("global_store_dwordx4 v3, %s, %s offset:16 sc1" % (v(68, 4), sp(P_WS)))
g("global_store_dwordx4 v4, %s, %s sc1" % (v(72, 4), sp(P_WS)))
g("global_store_dwordx4 v4, %s, %s offset:16 sc1" % (v(76, 4), sp(P_WS)))
g("s_waitcnt vmcnt(0)")
g("s_barrier")
lb5 = g.newlabel("B2F")
g("s_cmp_lg_u32 %s, 0" % s(S_WAVE))
g("s_cbranch_scc1 %s" % lb5)
g("s_lshl_b32 %s, s2, 2" % s(S_T0))
g("s_add_u32 %s, %s, 0x%x" % (s(S_T0), s(S_T0), WS_FB2))
g("v_lshl_add_u32 v5, %s, 8, %s" % (v(VL), s(S_T0)))
set_ws(5, 6, 8)
g.label(lb5)
stamp(3)
lb6 = g.newlabel("B3P")
g("s_cmp_lg_u32 %s, 0" % s(S_WAVE))
g("s_cbranch_scc1 %s" % lb6)
g("s_and_b32 %s, s2, 7" % s(S_T0))
g("s_lshl_b32 %s, %s, 8" % (s(S_T0), s(S_T0)))
g("s_add_u32 %s, %s, 0x%x" % (s(S_T0), s(S_T0), WS_FB2))
g("v_lshl_add_u32 v5, %s, 2, %s" % (v(VL), s(S_T0)))
poll_ws(5, 6, 64, S_T1)
g.label(lb6)
g.c("---- B3: write prefetched tiles to LDS")
g("s_lshl_b32 %s, %s, 13" % (s(S_T1), s(S_WAVE)))
g("v_lshl_add_u32 v3, %s, 4, %s" % (v(VL), s(S_T1)))
for i in range(8):
    g("ds_write_b128 v3, %s offset:%d" % (v(176 + 4 * i, 4), i * 1024))
g("s_mul_i32 %s, %s, %d" % (s(S_T1), s(S_WAVE), 576 * 16))
g("s_add_u32 %s, %s, %d" % (s(S_T1), s(S_T1), LB_WO))
g("v_lshl_add_u32 v3, %s, 4, %s" % (v(VL), s(S_T1)))
for i in range(9):
    g("ds_write_b128 v3, %s offset:%d" % (v(208 + 4 * i, 4), i * 1024))
g("s_barrier")
stamp(4)
g.c("combine partials: wave w: b = w>>2 ; splits 8(w&3)+i")
g("s_lshr_b32 %s, %s, 2" % (s(S_T0), s(S_WAVE)))
g("s_and_b32 %s, %s, 3" % (s(S_T1), s(S_WAVE)))
g("s_lshl_b32 %s, %s, 3" % (s(S_T1), s(S_T1)))
g("s_lshl_b32 %s, %s, 5" % (s(S_T2), s(S_T0)))
g("s_add_u32 %s, %s, %s" % (s(S_T2), s(S_T2), s(S_T1)))
g("s_lshl_b32 %s, %s, 15" % (s(S_T2), s(S_T2)))
g("s_lshl_b32 %s, %s, 10" % (s(S_T3), s(S_H)))
g("s_add_u32 %s, %s, %s" % (s(S_T2), s(S_T2), s(S_T3)))
g("s_add_u32 %s, %s, 0x%x" % (s(S_T2), s(S_T2), WS_BPART))
g("v_lshl_add_u32 v3, %s, 4, %s" % (v(VL), s(S_T2)))
for i in range(8):
    g("v_add_u32 v4, 0x%x, v3" % (i * 32768))
    g("global_load_dwordx4 %s, v4, %s sc1" % (v(64 + 4 * i, 4), sp(P_WS)))
g("s_lshl_b32 %s, %s, 13" % (s(S_T2), s(S_T0)))
g("s_lshl_b32 %s, %s, 3" % (s(S_T3), s(S_H)))
g("s_add_u32 %s, %s, %s" % (s(S_T2), s(S_T2), s(S_T3)))
g("s_add_u32 %s, %s, 0x%x" % (s(S_T2), s(S_T2), WS_BSTAT))
g("v_and_b32 v4, 31, %s" % v(VL))
g("v_lshl_add_u32 v4, v4, 8, %s" % s(S_T2))
g("global_load_dwordx2 v[6:7], v4, %s sc1" % sp(P_WS))
g("s_waitcnt vmcnt(0)")
g("v_mov_b32 v5, v6")
allreduce16("v_max_f32", 5)
g("v_mov_b32 v3, v5")
g("s_nop 1")
g("v_permlane16_swap_b32 v5, v3")
g("s_nop 1")
g("v_max_f32 v5, v5, v3")
g("v_sub_f32 v6, v6, v5")
g("v_mul_f32 v6, %s, v6" % s(S_CEXP))
g("v_exp_f32 v6, v6")
g("s_nop 0")
g("v_mul_f32 v7, v6, v7")
allreduce16("v_add_f32", 7)
g("v_mov_b32 v3, v7")
g("s_nop 1")
g("v_permlane16_swap_b32 v7, v3")
g("s_nop 1")
g("v_add_f32 v7, v7, v3")
g("v_rcp_f32 v7, v7")
g("s_nop 0")
g("v_mul_f32 v6, v6, v7")
g("s_nop 0")
for i in range(8):
    g("s_add_u32 %s, %s, %d" % (s(S_T3), s(S_T1), i))
    g("v_readlane_b32 %s, v6, %s" % (s(60 + i), s(S_T3)))
CA = 12
for e in range(8):
    g("v_mov_b32 %s, 0" % v(CA + e))
g("s_nop 1")
for i in range(8):
    for e in range(4):
        g("v_lshlrev_b32 v3, 16, %s" % v(64 + 4 * i + e))
        g("v_and_b32 v4, 0xffff0000, %s" % v(64 + 4 * i + e))
        g("v_fmac_f32 %s, %s, v3" % (v(CA + 2 * e), s(60 + i)))
        g("v_fmac_f32 %s, %s, v4" % (v(CA + 2 * e + 1), s(60 + i)))
g("v_lshrrev_b32 v3, 3, %s" % v(VL))
g("v_bfe_u32 v4, %s, 1, 2" % v(VL))
g("v_and_b32 v5, 1, %s" % v(VL))
g("v_lshlrev_b32 v3, 8, v3")
g("v_lshl_add_u32 v3, v5, 7, v3")
g("v_lshl_add_u32 v3, v4, 4, v3")
g("s_lshl_b32 %s, %s, 11" % (s(S_T2), s(S_WAVE)))
g("v_add_u32 v3, %s, v3" % s(S_T2))
g("v_add_u32 v3, %d, v3" % LB_CRED)
g("ds_write_b128 v3, %s" % v(CA, 4))
g("ds_write_b128 v3, %s offset:64" % v(CA + 4, 4))
barrier()
g("v_lshrrev_b32 v3, 8, v0")
g("v_and_b32 v4, 255, v0")
g("v_lshlrev_b32 v5, 13, v3")
g("v_lshl_add_u32 v5, v4, 3, v5")
g("v_add_u32 v5, %d, v5" % LB_CRED)
for i in range(4):
    g("ds_read_b64 %s, v5 offset:%d" % (v(CA + 2 * i, 2), 2048 * i))
g("s_waitcnt lgkmcnt(0)")
for k in range(2):
    g("v_add_f32 %s, %s, %s" % (v(CA + k), v(CA + k), v(CA + 2 + k)))
    g("v_add_f32 %s, %s, %s" % (v(CA + 4 + k), v(CA + 4 + k), v(CA + 6 + k)))
    g("v_add_f32 %s, %s, %s" % (v(CA + k), v(CA + k), v(CA + 4 + k)))
g("v_cvt_pk_bf16_f32 v6, %s, %s" % (v(CA), v(CA + 1)))
g("v_lshlrev_b32 v5, 2, v0")
g("v_add_u32 v5, %d, v5" % LB_CBF)
g("ds_write_b32 v5, v6")
g("s_waitcnt vmcnt(0)")
barrier()
g.c("MFMA1: ctx[b][64d] partial over c in [64w, 64w+64)")
AF = 12
for i in range(8):
    g("v_mov_b32 %s, 0" % v(AF + i))
g("s_lshl_b32 %s, %s, 7" % (s(S_T0), s(S_WAVE)))
g("v_lshlrev_b32 v3, 10, v9")
g("v_lshl_add_u32 v3, v10, 3, v3")
g("v_add_u32 v3, %s, v3" % s(S_T0))
g("v_add_u32 v3, %d, v3" % LB_CBF)
g("v_cmp_gt_u32 vcc, 2, v9")
g("s_and_saveexec_b64 %s, vcc" % sp(58))
for ks in range(2):
    g("ds_read2_b64 %s, v3 offset0:%d offset1:%d" % (v(AF + 4 * ks, 4), ks * 8, ks * 8 + 4))
g("s_mov_b64 exec, %s" % sp(58))
g("v_lshrrev_b32 v3, 2, v9")
g("v_lshl_add_u32 v3, v10, 2, v3")
g("v_lshrrev_b32 v4, 1, v3")
g("v_and_b32 v4, 3, v4")
g("v_lshlrev_b32 v4, 1, v4")
g("v_lshlrev_b32 v3, 7, v3")
g("v_and_b32 v5, 1, v9")
g("v_lshl_add_u32 v3, v5, 3, v3")
g("s_lshl_b32 %s, %s, 13" % (s(S_T0), s(S_WAVE)))
g("v_add_u32 v3, %s, v3" % s(S_T0))
g("v_bfe_u32 v5, v9, 1, 1")
BFR = 64
for cg in range(4):
    g("v_add_u32 v6, %d, v5" % (2 * cg))
    g("v_xor_b32 v6, v6, v4")
    g("v_lshl_add_u32 v6, v6, 4, v3")
    for ks in range(2):
        g("ds_read_b64_tr_b16 %s, v6 offset:%d" % (v(BFR + (cg * 2 + ks) * 4, 2), ks * 4096))
        g("ds_read_b64_tr_b16 %s, v6 offset:%d" % (v(BFR + (cg * 2 + ks) * 4 + 2, 2), ks * 4096 + 2048))
g("s_waitcnt lgkmcnt(0)")
DX = 28
for ks in range(2):
    for cg in range(4):
        cc = "0" if ks == 0 else v(DX + 4 * cg, 4)
        g("v_mfma_f32_16x16x32_bf16 %s, %s, %s, %s" % (v(DX + 4 * cg, 4), v(AF + 4 * ks, 4), v(BFR + (cg * 2 + ks) * 4, 4), cc))
g("s_nop 7")
g("s_nop 1")
g("s_lshl_b32 %s, %s, 9" % (s(S_T0), s(S_WAVE)))
g("v_lshl_add_u32 v3, v9, 2, %s" % s(S_T0))
g("v_add_u32 v3, %d, v3" % LB_XRED)
g("s_mov_b64 exec, 0xffff")
for cg in range(4):
    g("ds_write_b32 v3, %s offset:%d" % (v(DX + 4 * cg), 64 * cg))
    g("ds_write_b32 v3, %s offset:%d" % (v(DX + 4 * cg + 1), 256 + 64 * cg))
g("s_mov_b64 exec, -1")
barrier()
lb7 = g.newlabel("B3X")
g("s_cmp_ge_u32 %s, 2" % s(S_WAVE))
g("s_cbranch_scc1 %s" % lb7)
g("v_lshlrev_b32 v3, 2, v0")
g("v_add_u32 v3, %d, v3" % LB_XRED)
for w in range(8):
    g("ds_read_b32 %s, v3 offset:%d" % (v(64 + w), 512 * w))
g("s_waitcnt lgkmcnt(0)")
for st in (4, 2, 1):
    for i in range(st):
        g("v_add_f32 %s, %s, %s" % (v(64 + i), v(64 + i), v(64 + i + st)))
g("v_cvt_pk_bf16_f32 v6, v64, v64")
g("v_lshlrev_b32 v3, 1, v0")
g("v_add_u32 v3, %d, v3" % LB_XBF)
g("ds_write_b16 v3, v6")
g.label(lb7)
barrier()
g.c("MFMA2: out partial = ctx[b][64] x w_o tile")
for i in range(8):
    g("v_mov_b32 %s, 0" % v(AF + i))
g("v_lshlrev_b32 v3, 7, v9")
g("v_lshl_add_u32 v3, v10, 3, v3")
g("v_add_u32 v3, %d, v3" % LB_XBF)
g("v_cmp_gt_u32 vcc, 2, v9")
g("s_and_saveexec_b64 %s, vcc" % sp(58))
for ks in range(2):
    g("ds_read2_b64 %s, v3 offset0:%d offset1:%d" % (v(AF + 4 * ks, 4), ks * 8, ks * 8 + 4))
g("s_mov_b64 exec, %s" % sp(58))
g("v_lshrrev_b32 v3, 2, v9")
g("v_lshl_add_u32 v3, v10, 2, v3")
g("v_lshrrev_b32 v4, 1, v3")
g("v_and_b32 v4, 3, v4")
g("v_lshlrev_b32 v4, 1, v4")
g("v_mul_u32_u24 v3, 1152, v3")
g("v_and_b32 v5, 1, v9")
g("v_lshl_add_u32 v3, v5, 3, v3")
g("v_add_u32 v3, %d, v3" % LB_WO)
g("v_bfe_u32 v5, v9, 1, 1")
g("s_lshl_b32 %s, %s, 1" % (s(S_T0), s(S_WAVE)))
g("v_add_u32 v5, %s, v5" % s(S_T0))
g("s_mul_i32 %s, s2, 4608" % s(S_T1))
g("s_add_u32 %s, %s, 0x%x" % (s(S_T1), s(S_T1), WS_YB2))
g("s_lshl_b32 %s, %s, 7" % (s(S_T2), s(S_WAVE)))
g("s_add_u32 %s, %s, %s" % (s(S_T1), s(S_T1), s(S_T2)))
g("v_lshl_add_u32 v7, v9, 3, %s" % s(S_T1))
g("v_mov_b32 v41, %s" % s(S_NONCE))
g("v_mov_b32 v43, %s" % s(S_NONCE))
for i in range(5):
    lskip = None
    if i == 4:
        lskip = g.newlabel("B3K")
        g("s_cmp_ge_u32 %s, 4" % s(S_WAVE))
        g("s_cbranch_scc1 %s" % lskip)
    g("v_add_u32 v6, %d, v5" % (16 * i))
    g("v_xor_b32 v6, v6, v4")
    g("v_lshl_add_u32 v6, v6, 4, v3")
    for ks in range(2):
        g("ds_read_b64_tr_b16 %s, v6 offset:%d" % (v(BFR + ks * 4, 2), ks * 32 * 1152))
        g("ds_read_b64_tr_b16 %s, v6 offset:%d" % (v(BFR + ks * 4 + 2, 2), ks * 32 * 1152 + 16 * 1152))
    g("s_waitcnt lgkmcnt(0)")
    g("v_mfma_f32_16x16x32_bf16 %s, %s, %s, 0" % (v(DX, 4), v(AF, 4), v(BFR, 4)))
    g("v_mfma_f32_16x16x32_bf16 %s, %s, %s, %s" % (v(DX, 4), v(AF + 4, 4), v(BFR + 4, 4), v(DX, 4)))
    g("s_nop 7")
    g("s_nop 1")
    g("s_mov_b64 exec, 0xffff")
    g("v_add_u32 v8, %d, v7" % (1024 * i))
    g("v_mov_b32 v40, %s" % v(DX))
    g("v_mov_b32 v42, %s" % v(DX + 1))
    g("global_store_dwordx2 v8, v[40:41], %s sc1" % sp(P_WS))
    g("v_add_u32 v8, %d, v8" % (64 * 4608))
    g("global_store_dwordx2 v8, v[42:43], %s sc1" % sp(P_WS))
    g("s_mov_b64 exec, -1")
    g("s_nop 1")
    if lskip:
        g.label(lskip)
g.label("L_B_END")
stamp(5)
dump_stamps(10)
g("s_waitcnt vmcnt(0)")
g.label("L_END")
g("s_endpgm")
g.L.append('.section .rodata,"a"')
g.L.append(".p2align 6")
g.L.append(".amdhsa_kernel %s" % NAME)
g.L.append("  .amdhsa_next_free_vgpr 256")
g.L.append("  .amdhsa_next_free_sgpr 102")
g.L.append("  .amdhsa_accum_offset 256")
g.L.append("  .amdhsa_group_segment_fixed_size 0")
g.L.append("  .amdhsa_kernarg_size 120")
g.L.append("  .amdhsa_user_sgpr_count 2")
g.L.append("  .amdhsa_user_sgpr_kernarg_segment_ptr 1")
g.L.append("  .amdhsa_system_sgpr_workgroup_id_x 1")
g.L.append(".end_amdhsa_kernel")

out = sys.argv[1] if len(sys.argv) > 1 else "gated_mix__gqa_block_cached__compressed_kv_cla__decode.s"
open(out, "w").write("\n".join(g.L) + "\n")
print("wrote", out, len(g.L), "lines")
```

```python
import sys, math

NAME = "gated_mix__gqa_block_cached__compressed_kv_cla__decode_kernel"

WS_QABS = 0x0
WS_BSTAT = 0x10000
WS_ASTAT = 0x14000
WS_APART = 0x18000
WS_YA = 0x48000
WS_YB = 0x60000
WS_BPART = 0x100000

CEXP = (128 ** -0.5) * math.log2(math.e)
SPIN_LIMIT = 1 << 20

P_AX, P_K, P_V, P_WQ, P_WO, P_BX, P_CKV, P_BWQ, P_WUK, P_WUV, P_BWO, P_GW, P_OUT, P_DBG, P_WS = [8 + 2 * i for i in range(15)]


def f32hex(x):
    import struct
    return "0x%08x" % struct.unpack("<I", struct.pack("<f", x))[0]


class G:
    def __init__(self):
        self.L = []
        self.nlabel = 0

    def __call__(self, s):
        self.L.append("    " + s)

    def label(self, name):
        self.L.append(name + ":")

    def newlabel(self, p="L"):
        self.nlabel += 1
        return "%s_%d" % (p, self.nlabel)

    def c(self, s):
        self.L.append("    ; " + s)


def v(n, cnt=1):
    return "v%d" % n if cnt == 1 else "v[%d:%d]" % (n, n + cnt - 1)


def s(n, cnt=1):
    return "s%d" % n if cnt == 1 else "s[%d:%d]" % (n, n + cnt - 1)


def sp(n):
    return s(n, 2)


g = G()
import os
STAMPS = os.environ.get("STAMPS", "0") == "1"
WS_TS = 0x400000
def stamp(i):
    if STAMPS:
        g("s_memrealtime %s" % sp(70 + 2 * i))
        g("s_waitcnt lgkmcnt(0)")
def dump_stamps(n):
    if STAMPS:
        lx = g.newlabel("TS")
        g("s_add_u32 s69, %s, 1" % s(S_WAVE))
        g("s_and_b32 s69, s69, 7")
        g("s_cmp_gt_u32 s69, 1")
        g("s_cbranch_scc1 %s" % lx)
        g("s_lshl_b32 s68, s2, 8")
        g("s_xor_b32 s69, s69, 1")
        g("s_lshl_b32 s69, s69, 7")
        g("s_add_u32 s68, s68, s69")
        g("s_add_u32 s68, s68, 0x%x" % WS_TS)
        g("v_mov_b32 v5, s68")
        for i in range(n):
            g("v_mov_b32 v6, %s" % s(70 + 2 * i))
            g("v_mov_b32 v7, %s" % s(71 + 2 * i))
            g("global_store_dwordx2 v5, v[6:7], %s offset:%d" % (sp(P_WS), 8 * i))
            g("s_nop 1")
        g.label(lx)

NT = " nt"


def barrier():
    g("s_waitcnt lgkmcnt(0)")
    g("s_barrier")


def allreduce16(op, reg, tmp=None):
    for r in (8, 4, 2, 1):
        g("s_nop 1")
        g("%s_dpp %s, %s, %s row_ror:%d row_mask:0xf bank_mask:0xf" % (op, v(reg), v(reg), v(reg), r))


def xreduce_16_32(op, reg, tmp):
    for ins in ("v_permlane16_swap_b32", "v_permlane32_swap_b32"):
        g("v_mov_b32 %s, %s" % (v(tmp), v(reg)))
        g("s_nop 1")
        g("%s %s, %s" % (ins, v(reg), v(tmp)))
        g("s_nop 1")
        g("%s %s, %s, %s" % (op, v(reg), v(reg), v(tmp)))


WS_FA1 = 0x380000
WS_FA2 = 0x381000
WS_FA3 = 0x382000
WS_FB1 = 0x384000
WS_FB2 = 0x385000
WS_FB3 = 0x386000
S_NONCE = 92
SLEEP = 2


def poll_ws(vaddr, vtmp, nlanes, scnt):
    lp = g.newlabel("POLL")
    le = g.newlabel("POLLX")
    g("s_mov_b32 %s, 0" % s(scnt))
    if nlanes < 64:
        g("s_mov_b64 exec, 0x%x" % ((1 << nlanes) - 1))
    g.label(lp)
    g("global_load_dword %s, %s, %s sc1" % (v(vtmp), v(vaddr), sp(P_WS)))
    g("s_waitcnt vmcnt(0)")
    g("v_cmp_ne_u32 vcc, %s, %s" % (s(S_NONCE), v(vtmp)))
    g("s_nop 1")
    g("s_cmp_eq_u64 vcc, 0")
    g("s_cbranch_scc1 %s" % le)
    g("s_add_u32 %s, %s, 1" % (s(scnt), s(scnt)))
    g("s_cmp_gt_u32 %s, %d" % (s(scnt), SPIN_LIMIT))
    g("s_cbranch_scc1 %s" % le)
    g("s_sleep %d" % SLEEP)
    g("s_branch %s" % lp)
    g.label(le)
    g("s_mov_b64 exec, -1")


def set_ws(vaddr, vt1, nlanes):
    g("v_mov_b32 %s, %s" % (v(vt1), s(S_NONCE)))
    g("s_mov_b64 exec, 0x%x" % ((1 << nlanes) - 1))
    g("global_store_dword %s, %s, %s sc1" % (v(vaddr), v(vt1), sp(P_WS)))
    g("s_mov_b64 exec, -1")


def make_nonce():
    le = g.newlabel("NMX")
    g("s_cmp_lg_u32 s2, 0")
    g("s_cbranch_scc1 %s" % le)
    g("s_cmp_lg_u32 %s, 0" % s(S_WAVE))
    g("s_cbranch_scc1 %s" % le)
    g("s_memrealtime %s" % sp(S_NONCE))
    g("s_waitcnt lgkmcnt(0)")
    g("s_or_b32 %s, %s, 1" % (s(S_NONCE), s(S_NONCE)))
    g("v_mov_b32 v3, 0")
    g("v_mov_b32 v4, %s" % s(S_NONCE))
    g("s_mov_b64 exec, 1")
    g("global_store_dword v3, v4, %s sc1" % sp(P_DBG))
    g("s_mov_b64 exec, -1")
    g.label(le)


def get_nonce(vt0, vt1, scnt):
    le = g.newlabel("NX")
    g("s_cmp_eq_u32 s2, 0")
    g("s_cbranch_scc1 %s" % le)
    g("v_mov_b32 %s, 0" % v(vt0))
    g("s_mov_b32 %s, 0" % s(scnt))
    lq = g.newlabel("NL")
    g.label(lq)
    g("global_load_dword %s, %s, %s sc1" % (v(vt1), v(vt0), sp(P_DBG)))
    g("s_waitcnt vmcnt(0)")
    g("v_readfirstlane_b32 %s, %s" % (s(S_NONCE), v(vt1)))
    g("s_nop 3")
    g("s_cmp_lg_u32 %s, 0" % s(S_NONCE))
    g("s_cbranch_scc1 %s" % le)
    g("s_add_u32 %s, %s, 1" % (s(scnt), s(scnt)))
    g("s_cmp_gt_u32 %s, %d" % (s(scnt), SPIN_LIMIT))
    g("s_cbranch_scc1 %s" % le)
    g("s_sleep 4")
    g("s_branch %s" % lq)
    g.label(le)


g.L.append("; @launch grid=(256,1,1) block=(512,1,1) lds=163840")
g.L.append('.amdgcn_target "amdgcn-amd-amdhsa--gfx950"')
g.L.append(".text")
g.L.append(".globl %s" % NAME)
g.L.append(".p2align 8")
g.L.append(".type %s,@function" % NAME)
g.label(NAME)
g("s_cmp_ge_u32 s2, 256")
g("s_cbranch_scc1 L_END")
g("s_load_dwordx16 s[8:23], s[0:1], 0")
g("s_load_dwordx8 s[24:31], s[0:1], 64")
g("s_load_dwordx4 s[32:35], s[0:1], 96")
g("s_load_dwordx2 s[36:37], s[0:1], 112")
S_WAVE = 40
S_SELLO, S_SELHI = 41, 42
S_CEXP = 43
g("v_lshrrev_b32 v1, 6, v0")
g("v_and_b32 v2, 63, v0")
g("s_nop 0")
g("v_readfirstlane_b32 %s, v1" % s(S_WAVE))
g("s_mov_b32 %s, 0x05040100" % s(S_SELLO))
g("s_mov_b32 %s, 0x07060302" % s(S_SELHI))
g("s_mov_b32 %s, %s" % (s(S_CEXP), f32hex(CEXP)))
g("s_waitcnt lgkmcnt(0)")
make_nonce()
g("s_cmp_lt_u32 s2, 64")
g("s_cbranch_scc1 L_ROLE_B")

VL = 2

S_KVH, S_B, S_SPLIT, S_PAIR, S_START, S_CNT = 44, 45, 46, 47, 48, 49
S_T0, S_T1, S_T2, S_T3 = 50, 51, 52, 53
S_MASK5 = 54
S_U5 = 55
S_FLAGB = 56
BUF0, BUF1 = 64, 160
QF = 12
QACC = 28
SS = 36

LA_QRED = 0
LA_QBF = 16384
LA_PBUF = 17408
LA_STAT = 20480
LA_ORED = 24576
LA_OBF = 57344
LA_YRED = 0
LA_FIN = 12288
LA_G = 14336

g.c("---- role A setup")
stamp(0)
g("s_sub_u32 %s, s2, 64" % s(S_T0))
g("s_and_b32 %s, %s, 7" % (s(S_T1), s(S_T0)))
g("s_lshr_b32 %s, %s, 3" % (s(S_T2), s(S_T0)))
g("s_and_b32 %s, %s, 1" % (s(S_T3), s(S_T2)))
g("s_lshl_b32 %s, %s, 1" % (s(S_KVH), s(S_T1)))
g("s_add_u32 %s, %s, %s" % (s(S_KVH), s(S_KVH), s(S_T3)))
g("s_lshr_b32 %s, %s, 1" % (s(S_T2), s(S_T2)))
g("s_cmp_ge_u32 %s, 6" % s(S_T2))
g("s_cselect_b32 %s, 1, 0" % s(S_B))
g("s_mul_i32 %s, %s, 6" % (s(S_T3), s(S_B)))
g("s_sub_u32 %s, %s, %s" % (s(S_SPLIT), s(S_T2), s(S_T3)))
g("s_lshl_b32 %s, %s, 4" % (s(S_PAIR), s(S_B)))
g("s_add_u32 %s, %s, %s" % (s(S_PAIR), s(S_PAIR), s(S_KVH)))
g("s_mul_i32 %s, %s, 6" % (s(S_FLAGB), s(S_PAIR)))
g("s_add_u32 %s, %s, %s" % (s(S_FLAGB), s(S_FLAGB), s(S_SPLIT)))
g("s_add_u32 %s, %s, 64" % (s(S_FLAGB), s(S_FLAGB)))
g("s_add_u32 %s, %s, 7" % (s(S_T0), s(S_WAVE)))
g("s_and_b32 %s, %s, 7" % (s(S_T0), s(S_T0)))
g("s_mul_i32 %s, %s, 6" % (s(S_T0), s(S_T0)))
g("s_add_u32 %s, %s, %s" % (s(S_T0), s(S_T0), s(S_SPLIT)))
g("s_mul_i32 %s, %s, 6" % (s(S_T1), s(S_T0)))
g("s_mul_i32 %s, %s, 5" % (s(S_T2), s(S_T0)))
g("s_add_u32 %s, %s, 16" % (s(S_T2), s(S_T2)))
g("s_cmp_lt_u32 %s, 16" % s(S_T0))
g("s_cselect_b32 %s, %s, %s" % (s(S_START), s(S_T1), s(S_T2)))
g("s_cselect_b32 %s, 5, 4" % s(S_U5))
g("s_cselect_b32 %s, 0, 0xff800000" % s(S_MASK5))

WIN = int(os.environ.get("WIN", "8"))
WS_QPART = 0x300000
LA_QRED2 = 24576
g.c("---- partial q: rows 48gi + 6w + 2i + r, both batches")
g("v_lshrrev_b32 v3, 5, %s" % v(VL))
g("v_and_b32 v4, 31, %s" % v(VL))
g("s_mul_i32 %s, %s, 6" % (s(S_T0), s(S_B)))
g("s_add_u32 %s, %s, %s" % (s(S_T0), s(S_T0), s(S_SPLIT)))
g("s_mul_i32 %s, %s, 48" % (s(S_T1), s(S_T0)))
g("s_mul_i32 %s, %s, 6" % (s(S_T2), s(S_WAVE)))
g("s_add_u32 %s, %s, %s" % (s(S_T1), s(S_T1), s(S_T2)))
g("v_add_u32 v5, %s, v3" % s(S_T1))
g("v_lshlrev_b32 v6, 1, v5")
for bb in range(2):
    for i in range(3):
        g("global_load_ushort %s, v6, %s offset:%d" % (v(SS + bb * 3 + i), sp(P_AX), bb * 1152 + 4 * i))
g("v_lshlrev_b32 v5, 13, v5")
g("v_lshl_add_u32 v5, v4, 4, v5")
g("s_lshl_b32 %s, %s, 9" % (s(S_T2), s(S_KVH)))
g("v_add_u32 v5, %s, v5" % s(S_T2))
for i in range(3):
    g("v_add_u32 v6, %d, v5" % (2 * i * 8192))
    g("global_load_dwordx4 %s, v6, %s%s" % (v(BUF0 + 4 * i, 4), sp(P_WQ), NT))
g.c("---- partial q_B: head = pair, rows 96split + 12w + 4i + r")
QB_X = 42
QB_W = BUF0 + 16
QB_ACC = BUF1
g("v_lshrrev_b32 v7, 4, %s" % v(VL))
g("v_and_b32 v8, 15, %s" % v(VL))
g("s_mul_i32 %s, %s, 96" % (s(S_T1), s(S_SPLIT)))
g("s_mul_i32 %s, %s, 12" % (s(S_T2), s(S_WAVE)))
g("s_add_u32 %s, %s, %s" % (s(S_T1), s(S_T1), s(S_T2)))
g("v_add_u32 v5, %s, v7" % s(S_T1))
g("v_lshlrev_b32 v6, 1, v5")
for bb in range(2):
    for i in range(3):
        g("global_load_ushort %s, v6, %s offset:%d" % (v(QB_X + bb * 3 + i), sp(P_AX), bb * 1152 + 8 * i))
g("v_lshlrev_b32 v5, 13, v5")
g("v_lshl_add_u32 v5, v8, 4, v5")
g("s_lshl_b32 %s, %s, 8" % (s(S_T2), s(S_PAIR)))
g("v_add_u32 v5, %s, v5" % s(S_T2))
for i in range(3):
    g("v_add_u32 v6, %d, v5" % (4 * i * 8192))
    g("global_load_dwordx4 %s, v6, %s%s" % (v(QB_W + 4 * i, 4), sp(P_BWQ), NT))
for e in range(16):
    g("v_mov_b32 %s, 0" % v(QF + e))
    g("v_mov_b32 %s, 0" % v(QB_ACC + e))
g.c("---- K/V per-lane base offsets")
g("s_lshl_b32 %s, %s, 12" % (s(S_T0), s(S_PAIR)))
g("s_lshl_b32 %s, %s, 4" % (s(S_T1), s(S_START)))
g("s_add_u32 %s, %s, %s" % (s(S_T0), s(S_T0), s(S_T1)))
g("s_lshl_b32 %s, %s, 8" % (s(S_T0), s(S_T0)))
g("v_and_b32 v9, 15, %s" % v(VL))
g("v_lshrrev_b32 v10, 4, %s" % v(VL))
g("v_lshlrev_b32 v11, 8, v9")
g("v_lshl_add_u32 v11, v10, 4, v11")
g("v_add_u32 v11, %s, v11" % s(S_T0))
g("v_lshlrev_b32 v60, 8, v10")
g("v_lshl_add_u32 v60, v9, 4, v60")
g("v_add_u32 v60, %s, v60" % s(S_T0))
g("s_lshl_b32 %s, %s, 12" % (s(S_U5), s(S_U5)))
g("v_add_u32 v61, %s, v60" % s(S_U5))
g("s_waitcnt vmcnt(0)")
for bb in range(2):
    for i in range(3):
        g("v_lshlrev_b32 %s, 16, %s" % (v(SS + bb * 3 + i), v(SS + bb * 3 + i)))
for i in range(3):
    for e in range(4):
        g("v_lshlrev_b32 v7, 16, %s" % v(BUF0 + 4 * i + e))
        g("v_and_b32 v8, 0xffff0000, %s" % v(BUF0 + 4 * i + e))
        for bb in range(2):
            g("v_fmac_f32 %s, %s, v7" % (v(QF + bb * 8 + 2 * e), v(SS + bb * 3 + i)))
            g("v_fmac_f32 %s, %s, v8" % (v(QF + bb * 8 + 2 * e + 1), v(SS + bb * 3 + i)))
for bb in range(2):
    for i in range(3):
        g("v_lshlrev_b32 %s, 16, %s" % (v(QB_X + bb * 3 + i), v(QB_X + bb * 3 + i)))
for i in range(3):
    for e in range(4):
        g("v_lshlrev_b32 v7, 16, %s" % v(QB_W + 4 * i + e))
        g("v_and_b32 v8, 0xffff0000, %s" % v(QB_W + 4 * i + e))
        for bb in range(2):
            g("v_fmac_f32 %s, %s, v7" % (v(QB_ACC + bb * 8 + 2 * e), v(QB_X + bb * 3 + i)))
            g("v_fmac_f32 %s, %s, v8" % (v(QB_ACC + bb * 8 + 2 * e + 1), v(QB_X + bb * 3 + i)))
LA_QBRED = 65536
g("s_lshl_b32 %s, %s, 12" % (s(S_T0), s(S_WAVE)))
g("s_add_u32 %s, %s, %d" % (s(S_T0), s(S_T0), LA_QBRED))
g("v_lshlrev_b32 v5, 10, v10")
g("v_lshl_add_u32 v5, v9, 5, v5")
g("v_add_u32 v5, %s, v5" % s(S_T0))
for bb in range(2):
    g("ds_write_b128 v5, %s offset:%d" % (v(QB_ACC + bb * 8, 4), bb * 512))
    g("ds_write_b128 v5, %s offset:%d" % (v(QB_ACC + bb * 8 + 4, 4), bb * 512 + 16))
g("s_lshl_b32 %s, %s, 12" % (s(S_T0), s(S_WAVE)))
g("v_lshlrev_b32 v5, 11, v3")
g("v_lshl_add_u32 v5, v4, 5, v5")
g("v_add_u32 v5, %s, v5" % s(S_T0))
for bb in range(2):
    g("ds_write_b128 v5, %s offset:%d" % (v(QF + bb * 8, 4), LA_QRED2 + bb * 1024))
    g("ds_write_b128 v5, %s offset:%d" % (v(QF + bb * 8 + 4, 4), LA_QRED2 + bb * 1024 + 16))
barrier()


PACE = {"n": 0}


def pace():
    if PACE["n"] >= WIN:
        g("s_waitcnt vmcnt(%d)" % (WIN - 1))
    PACE["n"] += 1


def k_issue(u):
    if u < 5:
        g("v_add_u32 v6, %d, v11" % (u * 4096))
    else:
        g("v_add_u32 v6, %s, v11" % s(S_U5))
    for j in range(4):
        pace()
        g("global_load_dwordx4 %s, v6, %s offset:%d%s" % (v(BUF1 + (u * 4 + j) * 4, 4), sp(P_K), j * 64, NT))


def v_issue(u):
    for i in range(4 * u, 4 * u + 4):
        if u < 5:
            g("v_add_u32 v6, %d, v60" % (i * 1024))
        else:
            g("v_add_u32 v6, %d, v61" % ((i - 20) * 1024))
        pace()
        g("global_load_dwordx4 %s, v6, %s%s" % (v(BUF0 + i * 4, 4), sp(P_V), NT))


NV_PRE = 2


NPRE = int(os.environ.get("NPRE", "0"))


def k_stage(lo=0, hi=6 + NV_PRE):
    if lo == 0:
        PACE["n"] = 0
    for u in range(lo, hi):
        if u < 6:
            k_issue(u)
        else:
            v_issue(u - 6)


lw0 = g.newlabel("AW0")
lwj = g.newlabel("AWJ")
g("s_cmp_eq_u32 %s, 0" % s(S_WAVE))
g("s_cbranch_scc1 %s" % lw0)
WS_QBPART = 0x3A0000
WS_FQB = 0x383000
lw1 = g.newlabel("AW1")
g("s_cmp_lg_u32 %s, 1" % s(S_WAVE))
g("s_cbranch_scc1 %s" % lw1)
get_nonce(6, 7, S_T1)
g("v_lshlrev_b32 v5, 4, %s" % v(VL))
g("v_add_u32 v5, %d, v5" % LA_QBRED)
for i in range(32):
    g("ds_read_b128 %s, v5 offset:%d" % (v(BUF0 + i * 4, 4), i * 1024))
g("s_waitcnt lgkmcnt(0)")
for st in (16, 8, 4, 2, 1):
    for i in range(st):
        for k in range(4):
            g("v_add_f32 %s, %s, %s" % (v(BUF0 + i * 4 + k), v(BUF0 + i * 4 + k), v(BUF0 + (i + st) * 4 + k)))
g("s_mul_i32 %s, %s, 6" % (s(S_T0), s(S_PAIR)))
g("s_add_u32 %s, %s, %s" % (s(S_T0), s(S_T0), s(S_SPLIT)))
g("s_lshl_b32 %s, %s, 10" % (s(S_T0), s(S_T0)))
g("s_add_u32 %s, %s, 0x%x" % (s(S_T0), s(S_T0), WS_QBPART))
g("v_lshl_add_u32 v6, %s, 4, %s" % (v(VL), s(S_T0)))
g("global_store_dwordx4 v6, %s, %s sc1" % (v(BUF0, 4), sp(P_WS)))
g("s_waitcnt vmcnt(0)")
g("s_lshl_b32 %s, %s, 7" % (s(S_T0), s(S_PAIR)))
g("s_lshl_b32 %s, %s, 2" % (s(S_T1), s(S_SPLIT)))
g("s_add_u32 %s, %s, %s" % (s(S_T0), s(S_T0), s(S_T1)))
g("s_add_u32 %s, %s, 0x%x" % (s(S_T0), s(S_T0), WS_FQB))
g("v_mov_b32 v6, %s" % s(S_T0))
set_ws(6, 7, 1)
g.label(lw1)
stamp(7)
k_stage(0, NPRE)
stamp(8)
g("s_barrier")
stamp(9)
k_stage(NPRE)
g("s_branch %s" % lwj)
g.label(lw0)
g.c("wave 0: sum partial q, publish, gather")
get_nonce(6, 7, S_T1)
g("v_lshlrev_b32 v5, 4, %s" % v(VL))
for i in range(16):
    for bb in range(2):
        g("ds_read_b128 %s, v5 offset:%d" % (v(BUF0 + (i * 2 + bb) * 4, 4), LA_QRED2 + i * 2048 + bb * 1024))
g("s_waitcnt lgkmcnt(0)")
for st in (8, 4, 2, 1):
    for i in range(st):
        for k in range(8):
            g("v_add_f32 %s, %s, %s" % (v(BUF0 + i * 8 + k), v(BUF0 + i * 8 + k), v(BUF0 + (i + st) * 8 + k)))
g("s_mul_i32 %s, %s, 6" % (s(S_T0), s(S_B)))
g("s_add_u32 %s, %s, %s" % (s(S_T0), s(S_T0), s(S_SPLIT)))
g("s_mul_i32 %s, %s, 12" % (s(S_T1), s(S_KVH)))
g("s_add_u32 %s, %s, %s" % (s(S_T0), s(S_T0), s(S_T1)))
g("s_lshl_b32 %s, %s, 11" % (s(S_T0), s(S_T0)))
g("s_add_u32 %s, %s, 0x%x" % (s(S_T0), s(S_T0), WS_QPART))
g("v_add_u32 v6, %s, v5" % s(S_T0))
g("global_store_dwordx4 v6, %s, %s sc1" % (v(BUF0, 4), sp(P_WS)))
g("global_store_dwordx4 v6, %s, %s offset:1024 sc1" % (v(BUF0 + 4, 4), sp(P_WS)))
g("s_waitcnt vmcnt(0)")
g("s_mul_i32 %s, %s, 6" % (s(S_T0), s(S_B)))
g("s_add_u32 %s, %s, %s" % (s(S_T0), s(S_T0), s(S_SPLIT)))
g("s_lshl_b32 %s, %s, 2" % (s(S_T0), s(S_T0)))
g("s_lshl_b32 %s, %s, 7" % (s(S_T1), s(S_KVH)))
g("s_add_u32 %s, %s, 0x%x" % (s(S_T1), s(S_T1), WS_FA1))
g("s_add_u32 %s, %s, %s" % (s(S_T0), s(S_T0), s(S_T1)))
g("v_mov_b32 v6, %s" % s(S_T0))
set_ws(6, 7, 1)
stamp(7)
g("v_lshl_add_u32 v6, %s, 2, %s" % (v(VL), s(S_T1)))
poll_ws(6, 7, 12, S_T1)
stamp(8)
g("s_mul_i32 %s, %s, %d" % (s(S_T0), s(S_KVH), 12 * 2048))
g("s_lshl_b32 %s, %s, 10" % (s(S_T1), s(S_B)))
g("s_add_u32 %s, %s, %s" % (s(S_T0), s(S_T0), s(S_T1)))
g("s_add_u32 %s, %s, 0x%x" % (s(S_T0), s(S_T0), WS_QPART))
g("v_add_u32 v6, %s, v5" % s(S_T0))
for i in range(12):
    g("v_add_u32 v7, %d, v6" % (2048 * i))
    g("global_load_dwordx4 %s, v7, %s sc1" % (v(BUF1 + 4 * i, 4), sp(P_WS)))
g("s_waitcnt vmcnt(0)")
for i in range(1, 12):
    for k in range(4):
        g("v_add_f32 %s, %s, %s" % (v(BUF1 + k), v(BUF1 + k), v(BUF1 + 4 * i + k)))
g("v_cvt_pk_bf16_f32 v6, %s, %s" % (v(BUF1), v(BUF1 + 1)))
g("v_cvt_pk_bf16_f32 v7, %s, %s" % (v(BUF1 + 2), v(BUF1 + 3)))
g("v_lshlrev_b32 v5, 3, %s" % v(VL))
g("ds_write_b64 v5, v[6:7] offset:%d" % LA_QBF)
barrier()
stamp(9)
k_stage()
g.label(lwj)
g.c("---- q frags (A operand): row = l&15 (<2), slab = l>>4")
for i in range(16):
    g("v_mov_b32 %s, 0" % v(QF + i))
g("v_lshlrev_b32 v5, 8, v9")
g("v_lshl_add_u32 v5, v10, 4, v5")
g("v_cmp_gt_u32 vcc, 2, v9")
g("s_and_saveexec_b64 %s, vcc" % sp(58))
for j in range(4):
    g("ds_read_b128 %s, v5 offset:%d" % (v(QF + 4 * j, 4), LA_QBF + 64 * j))
g("s_mov_b64 exec, %s" % sp(58))
v_issue(2)
g("s_waitcnt lgkmcnt(0)")
stamp(1)
g.c("---- QK")
g("s_waitcnt vmcnt(12)")
for u in range(6):
    for j in range(4):
        cc = "0" if j == 0 else v(SS + 4 * u, 4)
        g("v_mfma_f32_16x16x32_bf16 %s, %s, %s, %s" % (v(SS + 4 * u, 4), v(QF + 4 * j, 4), v(BUF1 + (u * 4 + j) * 4, 4), cc))
v_issue(3)
g("s_nop 7")
g.c("---- softmax (lanes 0..15 valid)")
stamp(2)
g("v_add_f32 %s, %s, %s" % (v(SS + 20), s(S_MASK5), v(SS + 20)))
g("v_add_f32 %s, %s, %s" % (v(SS + 21), s(S_MASK5), v(SS + 21)))
VM0, VM1, VL0, VL1 = 3, 4, 7, 8
for h in range(2):
    m = VM0 + h
    g("v_max3_f32 %s, %s, %s, %s" % (v(m), v(SS + h), v(SS + 4 + h), v(SS + 8 + h)))
    g("v_max3_f32 %s, %s, %s, %s" % (v(m), v(m), v(SS + 12 + h), v(SS + 16 + h)))
    g("v_max_f32 %s, %s, %s" % (v(m), v(m), v(SS + 20 + h)))
    allreduce16("v_max_f32", m)
g("v_mul_f32 v5, %s, %s" % (s(S_CEXP), v(VM0)))
g("v_mul_f32 v6, %s, %s" % (s(S_CEXP), v(VM1)))
for u in range(6):
    g("v_fma_f32 %s, %s, %s, -v5" % (v(SS + 4 * u), v(SS + 4 * u), s(S_CEXP)))
    g("v_fma_f32 %s, %s, %s, -v6" % (v(SS + 4 * u + 1), v(SS + 4 * u + 1), s(S_CEXP)))
for u in range(6):
    g("v_exp_f32 %s, %s" % (v(SS + 4 * u), v(SS + 4 * u)))
    g("v_exp_f32 %s, %s" % (v(SS + 4 * u + 1), v(SS + 4 * u + 1)))
v_issue(4)
for u in range(6):
    g("v_cvt_pk_bf16_f32 %s, %s, %s" % (v(SS + 4 * u + 2), v(SS + 4 * u), v(SS + 4 * u + 1)))
for h in range(2):
    l = VL0 + h
    g("v_add_f32 %s, %s, %s" % (v(l), v(SS + h), v(SS + 4 + h)))
    for u in range(2, 6):
        g("v_add_f32 %s, %s, %s" % (v(l), v(l), v(SS + 4 * u + h)))
    allreduce16("v_add_f32", l)
g("s_mul_i32 %s, %s, 384" % (s(S_T0), s(S_WAVE)))
g("v_and_b32 v5, 3, v9")
g("v_mul_u32_u24 v5, 48, v5")
g("v_lshrrev_b32 v6, 2, v9")
g("v_lshl_add_u32 v5, v6, 1, v5")
g("v_add_u32 v5, %s, v5" % s(S_T0))
g("s_mov_b64 exec, 0xffff")
for u in range(6):
    g("ds_write_b16 v5, %s offset:%d" % (v(SS + 4 * u + 2), LA_PBUF + 8 * u))
    g("ds_write_b16_d16_hi v5, %s offset:%d" % (v(SS + 4 * u + 2), LA_PBUF + 192 + 8 * u))
g("s_mov_b64 exec, -1")
v_issue(5)
g.c("---- wo slice prefetch into BUF1 (8 x dwordx3)")
g("s_lshl_b32 %s, %s, 8" % (s(S_T0), s(S_KVH)))
g("s_lshl_b32 %s, %s, 5" % (s(S_T1), s(S_WAVE)))
g("s_add_u32 %s, %s, %s" % (s(S_T0), s(S_T0), s(S_T1)))
g("s_mul_i32 %s, %s, 1152" % (s(S_T0), s(S_T0)))
g("s_mul_i32 %s, %s, 192" % (s(S_T1), s(S_SPLIT)))
g("s_add_u32 %s, %s, %s" % (s(S_T0), s(S_T0), s(S_T1)))
g("v_mul_u32_u24 v5, 2304, v10")
g("v_mul_u32_u24 v6, 12, v9")
g("v_add3_u32 v5, v5, v6, %s" % s(S_T0))
for jj in range(4):
    for t in range(2):
        g("v_add_u32 v6, %d, v5" % ((8 * jj + t) * 1152))
        g("global_load_dwordx3 %s, v6, %s" % (v(BUF1 + (jj * 2 + t) * 4, 3), sp(P_WO)))
g("s_mov_b64 exec, 1")
g("v_mov_b32 v60, %s" % v(VM0))
g("v_mov_b32 v61, %s" % v(VL0))
g("v_mov_b32 v62, %s" % v(VM1))
g("v_mov_b32 v63, %s" % v(VL1))
g("s_lshl_b32 %s, %s, 4" % (s(S_T0), s(S_WAVE)))
g("v_mov_b32 v3, %s" % s(S_T0))
g("ds_write_b128 v3, v[60:63] offset:%d" % LA_STAT)
g("s_mov_b64 exec, -1")
g("s_waitcnt lgkmcnt(0)")
g("s_mul_i32 %s, %s, 384" % (s(S_T0), s(S_WAVE)))
g("v_mul_u32_u24 v5, 48, v10")
g("v_add_u32 v5, %s, v5" % s(S_T0))
P2 = SS
for h in range(2):
    for q in range(3):
        g("ds_read_b128 %s, v5 offset:%d" % (v(P2 + h * 12 + q * 4, 4), LA_PBUF + h * 192 + q * 16))
OA = QF
for i in range(16):
    g("v_mov_b32 %s, 0" % v(OA + i))
g("s_waitcnt lgkmcnt(0)")
g.c("---- PV")
for j in range(12):
    g("s_waitcnt vmcnt(%d)" % (24 - 2 * (j + 1) + 8))
    r0 = BUF0 + (2 * j) * 4
    r1 = r0 + 4
    for e in range(4):
        g("v_perm_b32 v7, %s, %s, %s" % (v(r1 + e), v(r0 + e), s(S_SELLO)))
        g("v_perm_b32 v8, %s, %s, %s" % (v(r1 + e), v(r0 + e), s(S_SELHI)))
        for h in range(2):
            g("v_dot2_f32_bf16 %s, v7, %s, %s" % (v(OA + h * 8 + 2 * e), v(P2 + h * 12 + j), v(OA + h * 8 + 2 * e)))
            g("v_dot2_f32_bf16 %s, v8, %s, %s" % (v(OA + h * 8 + 2 * e + 1), v(P2 + h * 12 + j), v(OA + h * 8 + 2 * e + 1)))
stamp(3)
g.c("---- WG reduce of o")
g("s_lshl_b32 %s, %s, 12" % (s(S_T0), s(S_WAVE)))
g("v_lshlrev_b32 v5, 10, v10")
g("v_lshl_add_u32 v5, v9, 5, v5")
g("v_add_u32 v5, %s, v5" % s(S_T0))
for h in range(2):
    g("ds_write_b128 v5, %s offset:%d" % (v(OA + h * 8, 4), LA_ORED + h * 512))
    g("ds_write_b128 v5, %s offset:%d" % (v(OA + h * 8 + 4, 4), LA_ORED + h * 512 + 16))
barrier()
la1 = g.newlabel("ARED")
g("s_cmp_ge_u32 %s, 4" % s(S_WAVE))
g("s_cbranch_scc1 %s" % la1)
g("v_lshrrev_b32 v3, 7, v0")
g("v_lshlrev_b32 v4, 3, v3")
for w in range(8):
    g("ds_read_b64 %s, v4 offset:%d" % (v(SS + 2 * w, 2), LA_STAT + 16 * w))
g("v_lshlrev_b32 v5, 2, v0")
for i in range(32):
    g("ds_read_b32 %s, v5 offset:%d" % (v(BUF0 + i), LA_ORED + i * 1024))
g("s_waitcnt lgkmcnt(0)")
g("v_max3_f32 v6, %s, %s, %s" % (v(SS), v(SS + 2), v(SS + 4)))
g("v_max3_f32 v6, v6, %s, %s" % (v(SS + 6), v(SS + 8)))
g("v_max3_f32 v6, v6, %s, %s" % (v(SS + 10), v(SS + 12)))
g("v_max_f32 v6, v6, %s" % v(SS + 14))
for w in range(8):
    g("v_sub_f32 %s, %s, v6" % (v(SS + 2 * w), v(SS + 2 * w)))
    g("v_mul_f32 %s, %s, %s" % (v(SS + 2 * w), s(S_CEXP), v(SS + 2 * w)))
    g("v_exp_f32 %s, %s" % (v(SS + 2 * w), v(SS + 2 * w)))
g("v_mov_b32 v7, 0")
g("v_mov_b32 v8, 0")
for w in range(8):
    g("v_fmac_f32 v7, %s, %s" % (v(SS + 2 * w), v(SS + 2 * w + 1)))
    g("v_add_f32 %s, %s, %s" % (v(BUF0 + 4 * w), v(BUF0 + 4 * w), v(BUF0 + 4 * w + 1)))
    g("v_add_f32 %s, %s, %s" % (v(BUF0 + 4 * w + 2), v(BUF0 + 4 * w + 2), v(BUF0 + 4 * w + 3)))
    g("v_add_f32 %s, %s, %s" % (v(BUF0 + 4 * w), v(BUF0 + 4 * w), v(BUF0 + 4 * w + 2)))
    g("v_fmac_f32 v8, %s, %s" % (v(SS + 2 * w), v(BUF0 + 4 * w)))
g("s_mul_i32 %s, %s, 6" % (s(S_T0), s(S_PAIR)))
g("s_add_u32 %s, %s, %s" % (s(S_T0), s(S_T0), s(S_SPLIT)))
g("s_lshl_b32 %s, %s, 10" % (s(S_T1), s(S_T0)))
g("s_add_u32 %s, %s, 0x%x" % (s(S_T1), s(S_T1), WS_APART))
g("v_add_u32 v5, %s, v5" % s(S_T1))
g("global_store_dword v5, v8, %s sc1" % sp(P_WS))
g("s_lshl_b32 %s, %s, 4" % (s(S_T1), s(S_T0)))
g("s_add_u32 %s, %s, 0x%x" % (s(S_T1), s(S_T1), WS_ASTAT))
g("v_add_u32 v4, %s, v4" % s(S_T1))
g("v_and_b32 v3, 127, v0")
g("v_cmp_eq_u32 vcc, 0, v3")
g("s_and_saveexec_b64 %s, vcc" % sp(58))
lz = g.newlabel("ASTZ")
g("s_cbranch_execz %s" % lz)
g("global_store_dwordx2 v4, v[6:7], %s sc1" % sp(P_WS))
g.label(lz)
g("s_mov_b64 exec, %s" % sp(58))
g.label(la1)
g("s_waitcnt vmcnt(0)")
g("s_barrier")
lf = g.newlabel("AFL")
g("s_cmp_lg_u32 %s, 0" % s(S_WAVE))
g("s_cbranch_scc1 %s" % lf)
g("s_lshl_b32 %s, %s, 7" % (s(S_T1), s(S_PAIR)))
g("s_add_u32 %s, %s, 0x%x" % (s(S_T1), s(S_T1), WS_FA2))
g("s_lshl_b32 %s, %s, 2" % (s(S_T0), s(S_SPLIT)))
g("s_add_u32 %s, %s, %s" % (s(S_T0), s(S_T0), s(S_T1)))
g("v_mov_b32 v5, %s" % s(S_T0))
set_ws(5, 6, 1)
g("v_lshl_add_u32 v5, %s, 2, %s" % (v(VL), s(S_T1)))
poll_ws(5, 6, 6, S_T1)
g.label(lf)
g("s_barrier")
stamp(4)
g.c("---- combine")
la2 = g.newlabel("ACMB")
g("s_cmp_ge_u32 %s, 4" % s(S_WAVE))
g("s_cbranch_scc1 %s" % la2)
g("s_mul_i32 %s, %s, 6" % (s(S_T0), s(S_PAIR)))
g("s_lshl_b32 %s, %s, 10" % (s(S_T1), s(S_T0)))
g("s_add_u32 %s, %s, 0x%x" % (s(S_T1), s(S_T1), WS_APART))
g("v_lshl_add_u32 v5, v0, 2, %s" % s(S_T1))
for i in range(6):
    g("v_add_u32 v6, %d, v5" % (1024 * i))
    g("global_load_dword %s, v6, %s sc1" % (v(SS + 12 + i), sp(P_WS)))
g("s_lshl_b32 %s, %s, 4" % (s(S_T1), s(S_T0)))
g("s_add_u32 %s, %s, 0x%x" % (s(S_T1), s(S_T1), WS_ASTAT))
g("v_lshrrev_b32 v3, 7, v0")
g("v_lshl_add_u32 v4, v3, 3, %s" % s(S_T1))
for i in range(6):
    g("global_load_dwordx2 %s, v4, %s offset:%d sc1" % (v(SS + 2 * i, 2), sp(P_WS), 16 * i))
g("s_waitcnt vmcnt(0)")
g("v_max3_f32 v6, %s, %s, %s" % (v(SS), v(SS + 2), v(SS + 4)))
g("v_max3_f32 v6, v6, %s, %s" % (v(SS + 6), v(SS + 8)))
g("v_max_f32 v6, v6, %s" % v(SS + 10))
for i in range(6):
    g("v_sub_f32 %s, %s, v6" % (v(SS + 2 * i), v(SS + 2 * i)))
    g("v_mul_f32 %s, %s, %s" % (v(SS + 2 * i), s(S_CEXP), v(SS + 2 * i)))
    g("v_exp_f32 %s, %s" % (v(SS + 2 * i), v(SS + 2 * i)))
g("v_mov_b32 v7, 0")
g("v_mov_b32 v8, 0")
for i in range(6):
    g("v_fmac_f32 v7, %s, %s" % (v(SS + 2 * i), v(SS + 2 * i + 1)))
    g("v_fmac_f32 v8, %s, %s" % (v(SS + 2 * i), v(SS + 12 + i)))
g("v_rcp_f32 v7, v7")
g("s_nop 0")
g("v_mul_f32 v8, v8, v7")
g("v_cvt_pk_bf16_f32 v6, v8, v8")
g("v_lshlrev_b32 v5, 1, v0")
g("ds_write_b16 v5, v6 offset:%d" % LA_OBF)
g.label(la2)
barrier()
g.c("---- wo projection: wave rows 32w + 8jj + 2r + t")
g("s_lshl_b32 %s, %s, 6" % (s(S_T0), s(S_WAVE)))
g("v_lshl_add_u32 v5, v10, 2, %s" % s(S_T0))
for jj in range(4):
    g("ds_read_b32 %s, v5 offset:%d" % (v(SS + jj), LA_OBF + 16 * jj))
for e in range(6):
    g("v_mov_b32 %s, 0" % v(QF + e))
g("s_waitcnt lgkmcnt(0)")
for jj in range(4):
    r0 = BUF1 + (jj * 2) * 4
    r1 = r0 + 4
    for e in range(3):
        g("v_perm_b32 v7, %s, %s, %s" % (v(r1 + e), v(r0 + e), s(S_SELLO)))
        g("v_perm_b32 v8, %s, %s, %s" % (v(r1 + e), v(r0 + e), s(S_SELHI)))
        g("v_dot2_f32_bf16 %s, v7, %s, %s" % (v(QF + 2 * e), v(SS + jj), v(QF + 2 * e)))
        g("v_dot2_f32_bf16 %s, v8, %s, %s" % (v(QF + 2 * e + 1), v(SS + jj), v(QF + 2 * e + 1)))
g("s_mul_i32 %s, %s, 1536" % (s(S_T0), s(S_WAVE)))
g("v_mul_u32_u24 v5, 384, v10")
g("v_mul_u32_u24 v6, 24, v9")
g("v_add3_u32 v5, v5, v6, %s" % s(S_T0))
for e in range(3):
    g("ds_write_b64 v5, %s offset:%d" % (v(QF + 2 * e, 2), LA_YRED + 8 * e))
barrier()
la3 = g.newlabel("AY")
g("v_cmp_gt_u32 vcc, 96, v0")
g("s_and_saveexec_b64 %s, vcc" % sp(58))
g("s_cbranch_execz %s" % la3)
g("v_lshlrev_b32 v5, 2, v0")
for i in range(32):
    g("ds_read_b32 %s, v5 offset:%d" % (v(BUF0 + i), LA_YRED + i * 384))
g("s_waitcnt lgkmcnt(0)")
for st in (16, 8, 4, 2, 1):
    for i in range(st):
        g("v_add_f32 %s, %s, %s" % (v(BUF0 + i), v(BUF0 + i), v(BUF0 + i + st)))
g("s_mul_i32 %s, %s, 2304" % (s(S_T0), s(S_PAIR)))
g("s_mul_i32 %s, %s, 384" % (s(S_T1), s(S_SPLIT)))
g("s_add_u32 %s, %s, %s" % (s(S_T0), s(S_T0), s(S_T1)))
g("s_add_u32 %s, %s, 0x%x" % (s(S_T0), s(S_T0), WS_YA))
g("v_add_u32 v5, %s, v5" % s(S_T0))
g("global_store_dword v5, %s, %s sc1" % (v(BUF0), sp(P_WS)))
g.label(la3)
g("s_mov_b64 exec, %s" % sp(58))
g("s_waitcnt vmcnt(0)")
g("s_barrier")
lf2 = g.newlabel("AFL2")
g("s_cmp_lg_u32 %s, 0" % s(S_WAVE))
g("s_cbranch_scc1 %s" % lf2)
g("s_mul_i32 %s, %s, 6" % (s(S_T0), s(S_B)))
g("s_add_u32 %s, %s, %s" % (s(S_T0), s(S_T0), s(S_SPLIT)))
g("s_lshl_b32 %s, %s, 7" % (s(S_T0), s(S_T0)))
g("s_lshl_b32 %s, %s, 2" % (s(S_T1), s(S_KVH)))
g("s_add_u32 %s, %s, %s" % (s(S_T0), s(S_T0), s(S_T1)))
g("s_add_u32 %s, %s, 0x%x" % (s(S_T0), s(S_T0), WS_FA3))
g("v_mov_b32 v5, %s" % s(S_T0))
set_ws(5, 6, 1)
g.label(lf2)
stamp(5)
g.c("---- finalizer: kvh == 0")
g("s_cmp_lg_u32 %s, 0" % s(S_KVH))
g("s_cbranch_scc1 L_A_END")
lfin = g.newlabel("FIN")
g("s_cmp_lg_u32 %s, 0" % s(S_WAVE))
g("s_cbranch_scc1 %s" % lfin)
g.c("gate: wave 0 computes g for batch b")
g("s_mul_i32 %s, %s, 1152" % (s(S_T0), s(S_B)))
g("v_lshl_add_u32 v5, %s, 1, %s" % (v(VL), s(S_T0)))
g("v_lshlrev_b32 v6, 1, %s" % v(VL))
for i in range(9):
    g("global_load_ushort %s, v5, %s offset:%d" % (v(SS + i), sp(P_AX), 128 * i))
    g("global_load_ushort %s, v6, %s offset:%d" % (v(SS + 9 + i), sp(P_GW), 128 * i))
g("s_waitcnt vmcnt(0)")
g("v_mov_b32 v7, 0")
for i in range(9):
    g("v_lshlrev_b32 %s, 16, %s" % (v(SS + i), v(SS + i)))
    g("v_lshlrev_b32 %s, 16, %s" % (v(SS + 9 + i), v(SS + 9 + i)))
    g("v_mul_f32 %s, %s, %s" % (v(SS + i), v(SS + i), v(SS + 9 + i)))
    g("v_cvt_pk_bf16_f32 %s, %s, %s" % (v(SS + i), v(SS + i), v(SS + i)))
    g("v_lshlrev_b32 %s, 16, %s" % (v(SS + i), v(SS + i)))
    g("v_add_f32 v7, v7, %s" % v(SS + i))
allreduce16("v_add_f32", 7)
g("s_nop 1")
xreduce_16_32("v_add_f32", 7, 8)
g("v_cvt_pk_bf16_f32 v7, v7, v7")
g("v_lshlrev_b32 v7, 16, v7")
g("v_mul_f32 v7, %s, v7" % f32hex(-math.log2(math.e)))
g("v_exp_f32 v7, v7")
g("s_nop 0")
g("v_add_f32 v7, 1.0, v7")
g("v_rcp_f32 v7, v7")
g("s_nop 0")
g("v_cvt_pk_bf16_f32 v7, v7, v7")
g("v_lshlrev_b32 v7, 16, v7")
g("v_mov_b32 v5, 0")
g("ds_write_b32 v5, v7 offset:%d" % LA_G)
g.c("poll A flags (16 kvh) and B flags (64)")
g("s_mul_i32 %s, %s, 6" % (s(S_T0), s(S_B)))
g("s_add_u32 %s, %s, %s" % (s(S_T0), s(S_T0), s(S_SPLIT)))
g("s_lshl_b32 %s, %s, 7" % (s(S_T2), s(S_T0)))
g("s_add_u32 %s, %s, 0x%x" % (s(S_T2), s(S_T2), WS_FA3))
g("v_lshl_add_u32 v5, %s, 2, %s" % (v(VL), s(S_T2)))
poll_ws(5, 6, 16, S_T1)
g("s_lshl_b32 %s, %s, 8" % (s(S_T2), s(S_T0)))
g("s_add_u32 %s, %s, 0x%x" % (s(S_T2), s(S_T2), WS_FB3))
g("v_lshl_add_u32 v5, %s, 2, %s" % (v(VL), s(S_T2)))
poll_ws(5, 6, 64, S_T1)
g.label(lfin)
barrier()
lf3 = g.newlabel("FIN2")
g("v_cmp_gt_u32 vcc, 480, v0")
g("s_and_saveexec_b64 %s, vcc" % sp(58))
g("s_cbranch_execz %s" % lf3)
g("v_mul_u32_u24 v3, 683, v0")
g("v_lshrrev_b32 v3, 16, v3")
g("v_mul_u32_u24 v4, 96, v3")
g("v_sub_u32 v4, v0, v4")
g("s_mul_i32 %s, %s, %d" % (s(S_T0), s(S_B), 16 * 2304))
g("s_add_u32 %s, %s, 0x%x" % (s(S_T0), s(S_T0), WS_YA))
g("s_mul_i32 %s, %s, %d" % (s(S_T1), s(S_B), 64 * 2304))
g("s_add_u32 %s, %s, 0x%x" % (s(S_T1), s(S_T1), WS_YB - 16 * 2304))
g("v_mul_u32_u24 v5, %d, v3" % (16 * 2304))
g("v_add_u32 v5, %s, v5" % s(S_T1))
g("v_mov_b32 v6, %s" % s(S_T0))
g("v_cmp_eq_u32 vcc, 0, v3")
g("s_nop 1")
g("v_cndmask_b32 v5, v5, v6, vcc")
g("s_mul_i32 %s, %s, 384" % (s(S_T2), s(S_SPLIT)))
g("v_lshl_add_u32 v5, v4, 2, v5")
g("v_add_u32 v5, %s, v5" % s(S_T2))
for i in range(16):
    g("v_add_u32 v6, %d, v5" % (2304 * i))
    g("global_load_dword %s, v6, %s sc1" % (v(BUF0 + i), sp(P_WS)))
g("s_waitcnt vmcnt(0)")
for st in (8, 4, 2, 1):
    for i in range(st):
        g("v_add_f32 %s, %s, %s" % (v(BUF0 + i), v(BUF0 + i), v(BUF0 + i + st)))
g("v_lshlrev_b32 v5, 2, v0")
g("ds_write_b32 v5, %s offset:%d" % (v(BUF0), LA_FIN))
g.label(lf3)
g("s_mov_b64 exec, %s" % sp(58))
barrier()
g("v_cmp_gt_u32 vcc, 96, v0")
g("s_and_saveexec_b64 %s, vcc" % sp(58))
g("s_cbranch_execz L_A_END")
g("v_lshlrev_b32 v5, 2, v0")
for i in range(5):
    g("ds_read_b32 %s, v5 offset:%d" % (v(SS + i), LA_FIN + 384 * i))
g("v_mov_b32 v6, 0")
g("ds_read_b32 v7, v6 offset:%d" % LA_G)
g("s_waitcnt lgkmcnt(0)")
g("v_add_f32 %s, %s, %s" % (v(SS + 1), v(SS + 1), v(SS + 2)))
g("v_add_f32 %s, %s, %s" % (v(SS + 3), v(SS + 3), v(SS + 4)))
g("v_add_f32 %s, %s, %s" % (v(SS + 1), v(SS + 1), v(SS + 3)))
g("v_cvt_pk_bf16_f32 v8, %s, %s" % (v(SS), v(SS + 1)))
g("v_lshlrev_b32 %s, 16, v8" % v(SS))
g("v_and_b32 %s, 0xffff0000, v8" % v(SS + 1))
g("v_sub_f32 v8, 1.0, v7")
g("v_mul_f32 %s, v7, %s" % (v(SS), v(SS)))
g("v_cvt_pk_bf16_f32 v8, v8, v8")
g("v_lshlrev_b32 v8, 16, v8")
g("v_mul_f32 %s, v8, %s" % (v(SS + 1), v(SS + 1)))
g("v_cvt_pk_bf16_f32 v8, %s, %s" % (v(SS), v(SS + 1)))
g("v_lshlrev_b32 %s, 16, v8" % v(SS))
g("v_and_b32 %s, 0xffff0000, v8" % v(SS + 1))
g("v_add_f32 v8, %s, %s" % (v(SS), v(SS + 1)))
g("v_cvt_pk_bf16_f32 v8, v8, v8")
g("s_mul_i32 %s, %s, 1152" % (s(S_T0), s(S_B)))
g("s_mul_i32 %s, %s, 192" % (s(S_T1), s(S_SPLIT)))
g("s_add_u32 %s, %s, %s" % (s(S_T0), s(S_T0), s(S_T1)))
g("v_lshl_add_u32 v5, v0, 1, %s" % s(S_T0))
g("global_store_short v5, v8, %s" % sp(P_OUT))
g.label("L_A_END")
g("s_mov_b64 exec, -1")
stamp(6)
dump_stamps(10)
g("s_branch L_END")

S_H, S_HALF, S_B2, S_SP2 = 44, 45, 46, 47
LB_U = 131072
LB_WO = 65536
LB_CRED = 139264
LB_CBF = 155648
LB_XRED = 157696
LB_XBF = 161792
def b_prefetch():
    g.c("---- prefetch w_uv / w_o tiles into v176..v243")
    LB_WO = 65536
    LB_CRED = 139264
    LB_CBF = 155648
    LB_XRED = 157696
    LB_XBF = 161792
    g("v_lshrrev_b32 v3, 3, %s" % v(VL))
    g("v_and_b32 v4, 7, %s" % v(VL))
    g("v_lshrrev_b32 v5, 1, v3")
    g("v_and_b32 v5, 3, v5")
    g("v_lshlrev_b32 v5, 1, v5")
    g("v_xor_b32 v4, v4, v5")
    g("v_lshlrev_b32 v4, 4, v4")
    g("v_lshl_add_u32 v4, v3, 13, v4")
    g("s_lshl_b32 %s, %s, 8" % (s(S_T0), s(S_H)))
    g("s_lshl_b32 %s, %s, 7" % (s(S_T1), s(S_HALF)))
    g("s_add_u32 %s, %s, %s" % (s(S_T0), s(S_T0), s(S_T1)))
    g("s_lshl_b32 %s, %s, 19" % (s(S_T1), s(S_WAVE)))
    g("s_add_u32 %s, %s, %s" % (s(S_T0), s(S_T0), s(S_T1)))
    g("v_add_u32 v4, %s, v4" % s(S_T0))
    g("s_lshl_b32 %s, %s, 13" % (s(S_T1), s(S_WAVE)))
    for i in range(8):
        g("v_add_u32 v6, 0x%x, v4" % (i * 8 * 8192))
        g("global_load_dwordx4 %s, v6, %s%s" % (v(176 + 4 * i, 4), sp(P_WUV), NT))
    g("s_lshl_b32 %s, %s, 7" % (s(S_T0), s(S_H)))
    g("s_lshl_b32 %s, %s, 6" % (s(S_T1), s(S_HALF)))
    g("s_add_u32 %s, %s, %s" % (s(S_T0), s(S_T0), s(S_T1)))
    g("s_mul_i32 %s, %s, 1152" % (s(S_T0), s(S_T0)))
    g("s_mul_i32 %s, %s, 576" % (s(S_T1), s(S_WAVE)))
    g("s_mov_b32 %s, 58255" % s(S_T3))
    for i in range(9):
        g("v_add_u32 v3, %s, %s" % (s(S_T1), v(VL)))
        g("v_add_u32 v3, %d, v3" % (64 * i))
        g("v_mul_lo_u32 v4, v3, %s" % s(S_T3))
        g("v_lshrrev_b32 v4, 22, v4")
        g("v_mul_u32_u24 v5, 72, v4")
        g("v_sub_u32 v5, v3, v5")
        g("v_lshrrev_b32 v6, 1, v4")
        g("v_and_b32 v6, 3, v6")
        g("v_lshlrev_b32 v6, 1, v6")
        g("v_xor_b32 v5, v5, v6")
        g("v_mul_u32_u24 v4, 1152, v4")
        g("v_lshl_add_u32 v4, v5, 4, v4")
        g("v_add_u32 v4, %s, v4" % s(S_T0))
        g("global_load_dwordx4 %s, v4, %s%s" % (v(208 + 4 * i, 4), sp(P_BWO), NT))


g.label("L_ROLE_B")
g.c("---- role B setup")
stamp(0)
g("s_and_b32 %s, s2, 7" % s(S_T0))
g("s_lshr_b32 %s, s2, 3" % s(S_T1))
g("s_lshl_b32 %s, %s, 2" % (s(S_H), s(S_T0)))
g("s_lshr_b32 %s, %s, 1" % (s(S_T2), s(S_T1)))
g("s_add_u32 %s, %s, %s" % (s(S_H), s(S_H), s(S_T2)))
g("s_and_b32 %s, %s, 1" % (s(S_HALF), s(S_T1)))
g("s_lshr_b32 %s, s2, 5" % s(S_B2))
g("s_and_b32 %s, s2, 31" % s(S_SP2))
g("v_and_b32 v9, 15, %s" % v(VL))
g("v_lshrrev_b32 v10, 4, %s" % v(VL))
XP = 12
BACC = 30
WQB = 64
WUKR = 136
g("s_lshl_b32 %s, %s, 8" % (s(S_T1), s(S_H)))
g("s_lshl_b32 %s, %s, 8" % (s(S_T0), s(S_HALF)))
g("s_lshl_b32 %s, %s, 5" % (s(S_T2), s(S_WAVE)))
g("s_add_u32 %s, %s, %s" % (s(S_T0), s(S_T0), s(S_T2)))
g("s_lshl_b32 %s, %s, 13" % (s(S_T2), s(S_T0)))
g("s_add_u32 %s, %s, %s" % (s(S_T2), s(S_T2), s(S_T1)))
g("v_lshlrev_b32 v5, 13, v9")
g("v_lshl_add_u32 v5, v10, 4, v5")
g("v_add_u32 v5, %s, v5" % s(S_T2))
for gq in range(2):
    g("v_add_u32 v6, 0x%x, v5" % (gq * 16 * 8192))
    for st in range(4):
        g("global_load_dwordx4 %s, v6, %s offset:%d%s" % (v(WUKR + (gq * 4 + st) * 4, 4), sp(P_WUK), st * 64, NT))
g.c("C tile -> registers v168..v231 (rows 16w + i)")
CT = 168
g("s_lshl_b32 %s, %s, 12" % (s(S_T0), s(S_B2)))
g("s_lshl_b32 %s, %s, 7" % (s(S_T1), s(S_SP2)))
g("s_add_u32 %s, %s, %s" % (s(S_T0), s(S_T0), s(S_T1)))
g("s_lshl_b32 %s, %s, 4" % (s(S_T1), s(S_WAVE)))
g("s_add_u32 %s, %s, %s" % (s(S_T0), s(S_T0), s(S_T1)))
g("s_lshl_b32 %s, %s, 10" % (s(S_T0), s(S_T0)))
g("v_lshl_add_u32 v5, %s, 4, %s" % (v(VL), s(S_T0)))
for i in range(16):
    if i % 4 == 0 and i:
        g("v_add_u32 v5, 4096, v5")
    g("global_load_dwordx4 %s, v5, %s offset:%d%s" % (v(CT + 4 * i, 4), sp(P_CKV), (i % 4) * 1024, NT))
g.c("wave 0: wait for 6 q_B partial flags of head h")
lbq = g.newlabel("BQ")
g("s_cmp_lg_u32 %s, 0" % s(S_WAVE))
g("s_cbranch_scc1 %s" % lbq)
get_nonce(5, 6, S_T1)
g("s_lshl_b32 %s, %s, 7" % (s(S_T0), s(S_H)))
g("s_add_u32 %s, %s, 0x%x" % (s(S_T0), s(S_T0), 0x383000))
g("v_lshl_add_u32 v5, %s, 2, %s" % (v(VL), s(S_T0)))
poll_ws(5, 6, 6, S_T1)
g.c("gather: lane -> 4 values; 6 partials")
g("s_mul_i32 %s, %s, 6144" % (s(S_T0), s(S_H)))
g("s_add_u32 %s, %s, 0x%x" % (s(S_T0), s(S_T0), 0x3A0000))
g("v_lshl_add_u32 v5, %s, 4, %s" % (v(VL), s(S_T0)))
for i in range(6):
    g("v_add_u32 v6, %d, v5" % (1024 * i))
    g("global_load_dwordx4 %s, v6, %s sc1" % (v(WQB + 4 * i, 4), sp(P_WS)))
g("s_waitcnt vmcnt(0)")
for i in range(1, 6):
    for k in range(4):
        g("v_add_f32 %s, %s, %s" % (v(WQB + k), v(WQB + k), v(WQB + 4 * i + k)))
g("v_cvt_pk_bf16_f32 v6, %s, %s" % (v(WQB), v(WQB + 1)))
g("v_cvt_pk_bf16_f32 v7, %s, %s" % (v(WQB + 2), v(WQB + 3)))
g("v_lshlrev_b32 v5, 3, %s" % v(VL))
g("v_add_u32 v5, %d, v5" % LB_U)
g("ds_write_b64 v5, v[6:7]")
g.label(lbq)
barrier()
g.c("q frags (B operand): col n<2 = batch ; slab g")
QFB = 48
for i in range(16):
    g("v_mov_b32 %s, 0" % v(QFB + i))
g("v_lshlrev_b32 v5, 8, v9")
g("v_lshl_add_u32 v5, v10, 4, v5")
g("v_add_u32 v5, %d, v5" % LB_U)
g("v_cmp_gt_u32 vcc, 2, v9")
g("s_and_saveexec_b64 %s, vcc" % sp(58))
for j in range(4):
    g("ds_read_b128 %s, v5 offset:%d" % (v(QFB + 4 * j, 4), 64 * j))
g("s_mov_b64 exec, %s" % sp(58))
g("s_waitcnt vmcnt(16) lgkmcnt(0)")
DQ = 12
for gq in range(2):
    for st in range(4):
        cc = "0" if st == 0 else v(DQ + 4 * gq, 4)
        g("v_mfma_f32_16x16x32_bf16 %s, %s, %s, %s" % (v(DQ + 4 * gq, 4), v(WUKR + (gq * 4 + st) * 4, 4), v(QFB + 4 * st, 4), cc))
g("s_nop 7")
g("s_nop 1")
g("s_lshl_b32 %s, %s, 8" % (s(S_T0), s(S_HALF)))
g("s_lshl_b32 %s, %s, 5" % (s(S_T2), s(S_WAVE)))
g("s_add_u32 %s, %s, %s" % (s(S_T0), s(S_T0), s(S_T2)))
g("s_lshl_b32 %s, %s, 1" % (s(S_T0), s(S_T0)))
g("s_lshl_b32 %s, %s, 10" % (s(S_T1), s(S_H)))
g("s_add_u32 %s, %s, %s" % (s(S_T0), s(S_T0), s(S_T1)))
g("v_lshlrev_b32 v5, 15, v9")
g("v_lshl_add_u32 v5, v10, 3, v5")
g("v_add_u32 v5, %s, v5" % s(S_T0))
for gq in range(2):
    g("v_cvt_pk_bf16_f32 %s, %s, %s" % (v(20 + 2 * gq), v(DQ + 4 * gq), v(DQ + 4 * gq + 1)))
    g("v_cvt_pk_bf16_f32 %s, %s, %s" % (v(21 + 2 * gq), v(DQ + 4 * gq + 2), v(DQ + 4 * gq + 3)))
g("v_cmp_gt_u32 vcc, 2, v9")
g("s_and_saveexec_b64 %s, vcc" % sp(58))
for gq in range(2):
    g("global_store_dwordx2 v5, %s, %s offset:%d sc1" % (v(20 + 2 * gq, 2), sp(P_WS), WS_QABS + 32 * gq))
g("s_mov_b64 exec, %s" % sp(58))
stamp(1)
g("s_lshl_b32 %s, %s, 14" % (s(S_T1), s(S_WAVE)))
for k in range(8):
    g("v_xor_b32 %s, %d, %s" % (v(24 + k), 2 * k, v(VL)))
    g("v_lshl_add_u32 %s, %s, 4, %s" % (v(24 + k), v(24 + k), s(S_T1)))
g("s_waitcnt vmcnt(0)")
for i in range(16):
    g("ds_write_b128 %s, %s offset:%d" % (v(24 + (i & 7)), v(CT + 4 * i, 4), i * 1024))
g("s_waitcnt lgkmcnt(0)")
g("s_barrier")
lb3 = g.newlabel("B1F")
lb3b = g.newlabel("B1G")
g("s_cmp_lg_u32 %s, 0" % s(S_WAVE))
g("s_cbranch_scc1 %s" % lb3)
g("s_lshl_b32 %s, s2, 2" % s(S_T0))
g("s_add_u32 %s, %s, 0x%x" % (s(S_T0), s(S_T0), WS_FB1))
g("v_lshl_add_u32 v5, %s, 8, %s" % (v(VL), s(S_T0)))
set_ws(5, 6, 8)
g("s_and_b32 %s, s2, 7" % s(S_T0))
g("s_lshl_b32 %s, %s, 8" % (s(S_T0), s(S_T0)))
g("s_add_u32 %s, %s, 0x%x" % (s(S_T0), s(S_T0), WS_FB1))
g("v_lshl_add_u32 v5, %s, 2, %s" % (v(VL), s(S_T0)))
poll_ws(5, 6, 64, S_T1)
g("s_branch %s" % lb3b)
g.label(lb3)
b_prefetch()
g.label(lb3b)
g("s_barrier")
stamp(2)
g.c("---- B2: load q_abs[b2] -> LDS U (swizzled)")
g("s_lshl_b32 %s, %s, 15" % (s(S_T0), s(S_B2)))
g("s_lshl_b32 %s, %s, 12" % (s(S_T1), s(S_WAVE)))
g("s_add_u32 %s, %s, %s" % (s(S_T0), s(S_T0), s(S_T1)))
g("v_lshl_add_u32 v5, %s, 4, %s" % (v(VL), s(S_T0)))
for i in range(4):
    g("global_load_dwordx4 %s, v5, %s offset:%d sc1" % (v(64 + 4 * i, 4), sp(P_WS), WS_QABS + 1024 * i))
g("s_and_b32 %s, %s, 1" % (s(S_T2), s(S_WAVE)))
g("s_lshl_b32 %s, %s, 3" % (s(S_T2), s(S_T2)))
for i in range(4):
    g("s_add_u32 %s, %s, %d" % (s(S_T3), s(S_T2), 2 * i))
    g("v_xor_b32 %s, %s, %s" % (v(80 + i), s(S_T3), v(VL)))
    g("v_lshlrev_b32 %s, 4, %s" % (v(80 + i), v(80 + i)))
    g("v_add_u32 %s, %s, %s" % (v(80 + i), s(S_T1), v(80 + i)))
g("s_waitcnt vmcnt(0)")
for i in range(4):
    g("v_add_u32 %s, %d, %s" % (v(80 + i), LB_U + 1024 * i, v(80 + i)))
for i in range(4):
    g("ds_write_b128 %s, %s" % (v(80 + i), v(64 + 4 * i, 4)))
lb3c = g.newlabel("B1H")
g("s_cmp_lg_u32 %s, 0" % s(S_WAVE))
g("s_cbranch_scc1 %s" % lb3c)
b_prefetch()
g.label(lb3c)
barrier()
stamp(6)
g.c("QK^T: S^T[hg] (keys x heads)")
g("v_and_b32 v5, 7, v9")
g("v_lshlrev_b32 v5, 1, v5")
g("v_xor_b32 v5, v5, v10")
g("v_lshlrev_b32 v5, 4, v5")
g("s_lshl_b32 %s, %s, 14" % (s(S_T0), s(S_WAVE)))
g("v_lshlrev_b32 v6, 10, v9")
g("v_add_u32 v7, %s, v6" % s(S_T0))
g("v_add_u32 v8, %d, v6" % LB_U)
SQ = 12
FR = 64
nb = 4
for bt in range(4):
    base = FR + (bt & 1) * 48
    for k in range(4):
        st = bt * 4 + k
        g("v_xor_b32 v3, %d, v5" % (st * 64))
        g("v_add_u32 v4, v3, v7")
        g("v_add_u32 v3, v3, v8")
        g("ds_read_b128 %s, v4" % v(base + k * 12, 4))
        g("ds_read_b128 %s, v3" % v(base + k * 12 + 4, 4))
        g("ds_read_b128 %s, v3 offset:16384" % v(base + k * 12 + 8, 4))
    if bt > 0:
        g("s_waitcnt lgkmcnt(12)")
        pb = FR + ((bt - 1) & 1) * 48
        for k in range(4):
            st = (bt - 1) * 4 + k
            for hg in range(2):
                cc = "0" if st == 0 else v(SQ + 4 * hg, 4)
                g("v_mfma_f32_16x16x32_bf16 %s, %s, %s, %s" % (v(SQ + 4 * hg, 4), v(pb + k * 12, 4), v(pb + k * 12 + 4 + 4 * hg, 4), cc))
g("s_waitcnt lgkmcnt(0)")
pb = FR + 48
for k in range(4):
    for hg in range(2):
        g("v_mfma_f32_16x16x32_bf16 %s, %s, %s, %s" % (v(SQ + 4 * hg, 4), v(pb + k * 12, 4), v(pb + k * 12 + 4 + 4 * hg, 4), v(SQ + 4 * hg, 4)))
g("s_nop 7")
g("s_nop 1")
stamp(7)
MW = 20
for hg in range(2):
    g("v_max3_f32 %s, %s, %s, %s" % (v(MW + hg), v(SQ + 4 * hg), v(SQ + 4 * hg + 1), v(SQ + 4 * hg + 2)))
    g("v_max_f32 %s, %s, %s" % (v(MW + hg), v(MW + hg), v(SQ + 4 * hg + 3)))
    xreduce_16_32("v_max_f32", MW + hg, 3)
g("s_barrier")
LB_WM = LB_U
LB_WL = LB_U + 1024
LB_P = LB_U + 2048
PSTR = 288
g("s_lshl_b32 %s, %s, 7" % (s(S_T0), s(S_WAVE)))
g("v_lshl_add_u32 v3, v9, 2, %s" % s(S_T0))
g("v_add_u32 v3, %d, v3" % LB_U)
g("s_mov_b64 exec, 0xffff")
g("ds_write_b32 v3, %s" % v(MW))
g("ds_write_b32 v3, %s offset:64" % v(MW + 1))
g("s_mov_b64 exec, -1")
barrier()
g("v_lshlrev_b32 v4, 2, v9")
g("v_add_u32 v4, %d, v4" % LB_U)
for hg in range(2):
    for w in range(8):
        g("ds_read_b32 %s, v4 offset:%d" % (v(64 + hg * 8 + w), w * 128 + hg * 64))
g("s_waitcnt lgkmcnt(0)")
MG = 22
for hg in range(2):
    b0 = 64 + hg * 8
    g("v_max3_f32 %s, %s, %s, %s" % (v(MG + hg), v(b0), v(b0 + 1), v(b0 + 2)))
    g("v_max3_f32 %s, %s, %s, %s" % (v(MG + hg), v(MG + hg), v(b0 + 3), v(b0 + 4)))
    g("v_max3_f32 %s, %s, %s, %s" % (v(MG + hg), v(MG + hg), v(b0 + 5), v(b0 + 6)))
    g("v_max_f32 %s, %s, %s" % (v(MG + hg), v(MG + hg), v(b0 + 7)))
    g("v_mul_f32 v3, %s, %s" % (s(S_CEXP), v(MG + hg)))
    for r in range(4):
        g("v_fma_f32 %s, %s, %s, -v3" % (v(SQ + 4 * hg + r), v(SQ + 4 * hg + r), s(S_CEXP)))
    for r in range(4):
        g("v_exp_f32 %s, %s" % (v(SQ + 4 * hg + r), v(SQ + 4 * hg + r)))
LW = 24
for hg in range(2):
    g("v_add_f32 %s, %s, %s" % (v(LW + hg), v(SQ + 4 * hg), v(SQ + 4 * hg + 1)))
    g("v_add_f32 v3, %s, %s" % (v(SQ + 4 * hg + 2), v(SQ + 4 * hg + 3)))
    g("v_add_f32 %s, %s, v3" % (v(LW + hg), v(LW + hg)))
    xreduce_16_32("v_add_f32", LW + hg, 3)
g("s_lshl_b32 %s, %s, 5" % (s(S_T0), s(S_WAVE)))
g("v_mul_u32_u24 v4, %d, v9" % PSTR)
g("v_lshl_add_u32 v4, v10, 3, v4")
g("v_add_u32 v4, %s, v4" % s(S_T0))
g("v_add_u32 v4, %d, v4" % LB_P)
for hg in range(2):
    g("v_cvt_pk_bf16_f32 %s, %s, %s" % (v(26 + 2 * hg), v(SQ + 4 * hg), v(SQ + 4 * hg + 1)))
    g("v_cvt_pk_bf16_f32 %s, %s, %s" % (v(27 + 2 * hg), v(SQ + 4 * hg + 2), v(SQ + 4 * hg + 3)))
    g("ds_write_b64 v4, %s offset:%d" % (v(26 + 2 * hg, 2), hg * 16 * PSTR))
g("s_lshl_b32 %s, %s, 7" % (s(S_T0), s(S_WAVE)))
g("v_lshl_add_u32 v3, v9, 2, %s" % s(S_T0))
g("v_add_u32 v3, %d, v3" % LB_WL)
g("s_mov_b64 exec, 0xffff")
g("ds_write_b32 v3, %s" % v(LW))
g("ds_write_b32 v3, %s offset:64" % v(LW + 1))
g("s_mov_b64 exec, -1")
barrier()
g.c("stats by wave 0: lanes 0..15 for hg 0,1")
lb4 = g.newlabel("B2S")
g("s_cmp_lg_u32 %s, 0" % s(S_WAVE))
g("s_cbranch_scc1 %s" % lb4)
g("v_lshlrev_b32 v4, 2, v9")
g("v_add_u32 v4, %d, v4" % LB_WL)
for hg in range(2):
    for w in range(8):
        g("ds_read_b32 %s, v4 offset:%d" % (v(64 + hg * 8 + w), w * 128 + hg * 64))
g("s_waitcnt lgkmcnt(0)")
for hg in range(2):
    b0 = 64 + hg * 8
    for st in (4, 2, 1):
        for i in range(st):
            g("v_add_f32 %s, %s, %s" % (v(b0 + i), v(b0 + i), v(b0 + i + st)))
g("s_lshl_b32 %s, s2, 8" % s(S_T0))
g("s_add_u32 %s, %s, 0x%x" % (s(S_T0), s(S_T0), WS_BSTAT))
g("v_lshl_add_u32 v4, v9, 3, %s" % s(S_T0))
g("s_mov_b64 exec, 0xffff")
for hg in range(2):
    g("v_mov_b32 v6, %s" % v(MG + hg))
    g("v_mov_b32 v7, %s" % v(64 + hg * 8))
    g("global_store_dwordx2 v4, v[6:7], %s offset:%d sc1" % (sp(P_WS), hg * 128))
    g("s_nop 1")
g("s_mov_b64 exec, -1")
g.label(lb4)
stamp(8)
g.c("PV: D[hg][cg] = C^T x P^T")
g("v_lshrrev_b32 v3, 2, v9")
g("v_lshl_add_u32 v3, v10, 2, v3")
g("v_and_b32 v4, 7, v3")
g("v_lshlrev_b32 v4, 1, v4")
g("v_lshlrev_b32 v3, 10, v3")
g("v_and_b32 v5, 3, v9")
g("v_lshrrev_b32 v6, 1, v5")
g("v_and_b32 v5, 1, v5")
g("v_lshl_add_u32 v3, v5, 3, v3")
g("s_lshl_b32 %s, %s, 3" % (s(S_T0), s(S_WAVE)))
g("v_add_u32 v6, %s, v6" % s(S_T0))
AD = 32
for cg in range(4):
    g("v_add_u32 v7, %d, v6" % (2 * cg))
    g("v_xor_b32 v7, v7, v4")
    g("v_lshl_add_u32 %s, v7, 4, v3" % v(AD + cg))
    g("v_add_u32 %s, 0x10000, %s" % (v(AD + 4 + cg), v(AD + cg)))
g("v_mul_u32_u24 v7, %d, v9" % PSTR)
g("v_lshl_add_u32 v7, v10, 3, v7")
g("v_add_u32 v7, %d, v7" % LB_P)
PF = 40
g("v_add_u32 v8, %d, v7" % (16 * PSTR))
for hg in range(2):
    for ks in range(4):
        g("ds_read2_b64 %s, %s offset0:%d offset1:%d" % (v(PF + (hg * 4 + ks) * 4, 4), "v7" if hg == 0 else "v8", ks * 8, ks * 8 + 4))
CF = 80
for cg in range(4):
    for ks in range(4):
        a = AD + cg + (4 if ks >= 2 else 0)
        off = (ks & 1) * 32768
        g("ds_read_b64_tr_b16 %s, %s offset:%d" % (v(CF + (cg * 4 + ks) * 4, 2), v(a), off))
        g("ds_read_b64_tr_b16 %s, %s offset:%d" % (v(CF + (cg * 4 + ks) * 4 + 2, 2), v(a), off + 16384))
g("s_waitcnt lgkmcnt(0)")
DA = 144
for ks in range(4):
    for hg in range(2):
        for cg in range(4):
            d = DA + (hg * 4 + cg) * 4
            cc = "0" if ks == 0 else v(d, 4)
            g("v_mfma_f32_16x16x32_bf16 %s, %s, %s, %s" % (v(d, 4), v(CF + (cg * 4 + ks) * 4, 4), v(PF + (hg * 4 + ks) * 4, 4), cc))
g("s_nop 7")
g("s_nop 1")
stamp(9)
g("s_lshl_b32 %s, s2, 15" % s(S_T0))
g("s_lshl_b32 %s, %s, 7" % (s(S_T1), s(S_WAVE)))
g("s_add_u32 %s, %s, %s" % (s(S_T0), s(S_T0), s(S_T1)))
g("s_add_u32 %s, %s, 0x%x" % (s(S_T0), s(S_T0), WS_BPART))
g("v_lshlrev_b32 v3, 10, v9")
g("v_lshl_add_u32 v3, v10, 5, v3")
g("v_add_u32 v3, %s, v3" % s(S_T0))
for hg in range(2):
    for cg in range(4):
        d = DA + (hg * 4 + cg) * 4
        o = 64 + hg * 8 + cg * 2
        g("v_cvt_pk_bf16_f32 %s, %s, %s" % (v(o), v(d), v(d + 1)))
        g("v_cvt_pk_bf16_f32 %s, %s, %s" % (v(o + 1), v(d + 2), v(d + 3)))
g("v_add_u32 v4, 16384, v3")
g("global_store_dwordx4 v3, %s, %s sc1" % (v(64, 4), sp(P_WS)))
g("global_store_dwordx4 v3, %s, %s offset:16 sc1" % (v(68, 4), sp(P_WS)))
g("global_store_dwordx4 v4, %s, %s sc1" % (v(72, 4), sp(P_WS)))
g("global_store_dwordx4 v4, %s, %s offset:16 sc1" % (v(76, 4), sp(P_WS)))
g("s_waitcnt vmcnt(0)")
g("s_barrier")
lb5 = g.newlabel("B2F")
g("s_cmp_lg_u32 %s, 0" % s(S_WAVE))
g("s_cbranch_scc1 %s" % lb5)
g("s_lshl_b32 %s, s2, 2" % s(S_T0))
g("s_add_u32 %s, %s, 0x%x" % (s(S_T0), s(S_T0), WS_FB2))
g("v_lshl_add_u32 v5, %s, 8, %s" % (v(VL), s(S_T0)))
set_ws(5, 6, 8)
g.label(lb5)
stamp(3)
lb6 = g.newlabel("B3P")
g("s_cmp_lg_u32 %s, 0" % s(S_WAVE))
g("s_cbranch_scc1 %s" % lb6)
g("s_and_b32 %s, s2, 7" % s(S_T0))
g("s_lshl_b32 %s, %s, 8" % (s(S_T0), s(S_T0)))
g("s_add_u32 %s, %s, 0x%x" % (s(S_T0), s(S_T0), WS_FB2))
g("v_lshl_add_u32 v5, %s, 2, %s" % (v(VL), s(S_T0)))
poll_ws(5, 6, 64, S_T1)
g.label(lb6)
g.c("---- B3: write prefetched tiles to LDS")
g("s_lshl_b32 %s, %s, 13" % (s(S_T1), s(S_WAVE)))
g("v_lshl_add_u32 v3, %s, 4, %s" % (v(VL), s(S_T1)))
for i in range(8):
    g("ds_write_b128 v3, %s offset:%d" % (v(176 + 4 * i, 4), i * 1024))
g("s_mul_i32 %s, %s, %d" % (s(S_T1), s(S_WAVE), 576 * 16))
g("s_add_u32 %s, %s, %d" % (s(S_T1), s(S_T1), LB_WO))
g("v_lshl_add_u32 v3, %s, 4, %s" % (v(VL), s(S_T1)))
for i in range(9):
    g("ds_write_b128 v3, %s offset:%d" % (v(208 + 4 * i, 4), i * 1024))
g("s_barrier")
stamp(4)
g.c("combine partials: wave w: b = w>>2 ; splits 8(w&3)+i")
g("s_lshr_b32 %s, %s, 2" % (s(S_T0), s(S_WAVE)))
g("s_and_b32 %s, %s, 3" % (s(S_T1), s(S_WAVE)))
g("s_lshl_b32 %s, %s, 3" % (s(S_T1), s(S_T1)))
g("s_lshl_b32 %s, %s, 5" % (s(S_T2), s(S_T0)))
g("s_add_u32 %s, %s, %s" % (s(S_T2), s(S_T2), s(S_T1)))
g("s_lshl_b32 %s, %s, 15" % (s(S_T2), s(S_T2)))
g("s_lshl_b32 %s, %s, 10" % (s(S_T3), s(S_H)))
g("s_add_u32 %s, %s, %s" % (s(S_T2), s(S_T2), s(S_T3)))
g("s_add_u32 %s, %s, 0x%x" % (s(S_T2), s(S_T2), WS_BPART))
g("v_lshl_add_u32 v3, %s, 4, %s" % (v(VL), s(S_T2)))
for i in range(8):
    g("v_add_u32 v4, 0x%x, v3" % (i * 32768))
    g("global_load_dwordx4 %s, v4, %s sc1" % (v(64 + 4 * i, 4), sp(P_WS)))
g("s_lshl_b32 %s, %s, 13" % (s(S_T2), s(S_T0)))
g("s_lshl_b32 %s, %s, 3" % (s(S_T3), s(S_H)))
g("s_add_u32 %s, %s, %s" % (s(S_T2), s(S_T2), s(S_T3)))
g("s_add_u32 %s, %s, 0x%x" % (s(S_T2), s(S_T2), WS_BSTAT))
g("v_and_b32 v4, 31, %s" % v(VL))
g("v_lshl_add_u32 v4, v4, 8, %s" % s(S_T2))
g("global_load_dwordx2 v[6:7], v4, %s sc1" % sp(P_WS))
g("s_waitcnt vmcnt(0)")
g("v_mov_b32 v5, v6")
allreduce16("v_max_f32", 5)
g("v_mov_b32 v3, v5")
g("s_nop 1")
g("v_permlane16_swap_b32 v5, v3")
g("s_nop 1")
g("v_max_f32 v5, v5, v3")
g("v_sub_f32 v6, v6, v5")
g("v_mul_f32 v6, %s, v6" % s(S_CEXP))
g("v_exp_f32 v6, v6")
g("s_nop 0")
g("v_mul_f32 v7, v6, v7")
allreduce16("v_add_f32", 7)
g("v_mov_b32 v3, v7")
g("s_nop 1")
g("v_permlane16_swap_b32 v7, v3")
g("s_nop 1")
g("v_add_f32 v7, v7, v3")
g("v_rcp_f32 v7, v7")
g("s_nop 0")
g("v_mul_f32 v6, v6, v7")
g("s_nop 0")
for i in range(8):
    g("s_add_u32 %s, %s, %d" % (s(S_T3), s(S_T1), i))
    g("v_readlane_b32 %s, v6, %s" % (s(60 + i), s(S_T3)))
CA = 12
for e in range(8):
    g("v_mov_b32 %s, 0" % v(CA + e))
g("s_nop 1")
for i in range(8):
    for e in range(4):
        g("v_lshlrev_b32 v3, 16, %s" % v(64 + 4 * i + e))
        g("v_and_b32 v4, 0xffff0000, %s" % v(64 + 4 * i + e))
        g("v_fmac_f32 %s, %s, v3" % (v(CA + 2 * e), s(60 + i)))
        g("v_fmac_f32 %s, %s, v4" % (v(CA + 2 * e + 1), s(60 + i)))
g("v_lshrrev_b32 v3, 3, %s" % v(VL))
g("v_bfe_u32 v4, %s, 1, 2" % v(VL))
g("v_and_b32 v5, 1, %s" % v(VL))
g("v_lshlrev_b32 v3, 8, v3")
g("v_lshl_add_u32 v3, v5, 7, v3")
g("v_lshl_add_u32 v3, v4, 4, v3")
g("s_lshl_b32 %s, %s, 11" % (s(S_T2), s(S_WAVE)))
g("v_add_u32 v3, %s, v3" % s(S_T2))
g("v_add_u32 v3, %d, v3" % LB_CRED)
g("ds_write_b128 v3, %s" % v(CA, 4))
g("ds_write_b128 v3, %s offset:64" % v(CA + 4, 4))
barrier()
g("v_lshrrev_b32 v3, 8, v0")
g("v_and_b32 v4, 255, v0")
g("v_lshlrev_b32 v5, 13, v3")
g("v_lshl_add_u32 v5, v4, 3, v5")
g("v_add_u32 v5, %d, v5" % LB_CRED)
for i in range(4):
    g("ds_read_b64 %s, v5 offset:%d" % (v(CA + 2 * i, 2), 2048 * i))
g("s_waitcnt lgkmcnt(0)")
for k in range(2):
    g("v_add_f32 %s, %s, %s" % (v(CA + k), v(CA + k), v(CA + 2 + k)))
    g("v_add_f32 %s, %s, %s" % (v(CA + 4 + k), v(CA + 4 + k), v(CA + 6 + k)))
    g("v_add_f32 %s, %s, %s" % (v(CA + k), v(CA + k), v(CA + 4 + k)))
g("v_cvt_pk_bf16_f32 v6, %s, %s" % (v(CA), v(CA + 1)))
g("v_lshlrev_b32 v5, 2, v0")
g("v_add_u32 v5, %d, v5" % LB_CBF)
g("ds_write_b32 v5, v6")
g("s_waitcnt vmcnt(0)")
barrier()
g.c("MFMA1: ctx[b][64d] partial over c in [64w, 64w+64)")
AF = 12
for i in range(8):
    g("v_mov_b32 %s, 0" % v(AF + i))
g("s_lshl_b32 %s, %s, 7" % (s(S_T0), s(S_WAVE)))
g("v_lshlrev_b32 v3, 10, v9")
g("v_lshl_add_u32 v3, v10, 3, v3")
g("v_add_u32 v3, %s, v3" % s(S_T0))
g("v_add_u32 v3, %d, v3" % LB_CBF)
g("v_cmp_gt_u32 vcc, 2, v9")
g("s_and_saveexec_b64 %s, vcc" % sp(58))
for ks in range(2):
    g("ds_read2_b64 %s, v3 offset0:%d offset1:%d" % (v(AF + 4 * ks, 4), ks * 8, ks * 8 + 4))
g("s_mov_b64 exec, %s" % sp(58))
g("v_lshrrev_b32 v3, 2, v9")
g("v_lshl_add_u32 v3, v10, 2, v3")
g("v_lshrrev_b32 v4, 1, v3")
g("v_and_b32 v4, 3, v4")
g("v_lshlrev_b32 v4, 1, v4")
g("v_lshlrev_b32 v3, 7, v3")
g("v_and_b32 v5, 1, v9")
g("v_lshl_add_u32 v3, v5, 3, v3")
g("s_lshl_b32 %s, %s, 13" % (s(S_T0), s(S_WAVE)))
g("v_add_u32 v3, %s, v3" % s(S_T0))
g("v_bfe_u32 v5, v9, 1, 1")
BFR = 64
for cg in range(4):
    g("v_add_u32 v6, %d, v5" % (2 * cg))
    g("v_xor_b32 v6, v6, v4")
    g("v_lshl_add_u32 v6, v6, 4, v3")
    for ks in range(2):
        g("ds_read_b64_tr_b16 %s, v6 offset:%d" % (v(BFR + (cg * 2 + ks) * 4, 2), ks * 4096))
        g("ds_read_b64_tr_b16 %s, v6 offset:%d" % (v(BFR + (cg * 2 + ks) * 4 + 2, 2), ks * 4096 + 2048))
g("s_waitcnt lgkmcnt(0)")
DX = 28
for ks in range(2):
    for cg in range(4):
        cc = "0" if ks == 0 else v(DX + 4 * cg, 4)
        g("v_mfma_f32_16x16x32_bf16 %s, %s, %s, %s" % (v(DX + 4 * cg, 4), v(AF + 4 * ks, 4), v(BFR + (cg * 2 + ks) * 4, 4), cc))
g("s_nop 7")
g("s_nop 1")
g("s_lshl_b32 %s, %s, 9" % (s(S_T0), s(S_WAVE)))
g("v_lshl_add_u32 v3, v9, 2, %s" % s(S_T0))
g("v_add_u32 v3, %d, v3" % LB_XRED)
g("s_mov_b64 exec, 0xffff")
for cg in range(4):
    g("ds_write_b32 v3, %s offset:%d" % (v(DX + 4 * cg), 64 * cg))
    g("ds_write_b32 v3, %s offset:%d" % (v(DX + 4 * cg + 1), 256 + 64 * cg))
g("s_mov_b64 exec, -1")
barrier()
lb7 = g.newlabel("B3X")
g("s_cmp_ge_u32 %s, 2" % s(S_WAVE))
g("s_cbranch_scc1 %s" % lb7)
g("v_lshlrev_b32 v3, 2, v0")
g("v_add_u32 v3, %d, v3" % LB_XRED)
for w in range(8):
    g("ds_read_b32 %s, v3 offset:%d" % (v(64 + w), 512 * w))
g("s_waitcnt lgkmcnt(0)")
for st in (4, 2, 1):
    for i in range(st):
        g("v_add_f32 %s, %s, %s" % (v(64 + i), v(64 + i), v(64 + i + st)))
g("v_cvt_pk_bf16_f32 v6, v64, v64")
g("v_lshlrev_b32 v3, 1, v0")
g("v_add_u32 v3, %d, v3" % LB_XBF)
g("ds_write_b16 v3, v6")
g.label(lb7)
barrier()
g.c("MFMA2: out partial = ctx[b][64] x w_o tile")
for i in range(8):
    g("v_mov_b32 %s, 0" % v(AF + i))
g("v_lshlrev_b32 v3, 7, v9")
g("v_lshl_add_u32 v3, v10, 3, v3")
g("v_add_u32 v3, %d, v3" % LB_XBF)
g("v_cmp_gt_u32 vcc, 2, v9")
g("s_and_saveexec_b64 %s, vcc" % sp(58))
for ks in range(2):
    g("ds_read2_b64 %s, v3 offset0:%d offset1:%d" % (v(AF + 4 * ks, 4), ks * 8, ks * 8 + 4))
g("s_mov_b64 exec, %s" % sp(58))
g("v_lshrrev_b32 v3, 2, v9")
g("v_lshl_add_u32 v3, v10, 2, v3")
g("v_lshrrev_b32 v4, 1, v3")
g("v_and_b32 v4, 3, v4")
g("v_lshlrev_b32 v4, 1, v4")
g("v_mul_u32_u24 v3, 1152, v3")
g("v_and_b32 v5, 1, v9")
g("v_lshl_add_u32 v3, v5, 3, v3")
g("v_add_u32 v3, %d, v3" % LB_WO)
g("v_bfe_u32 v5, v9, 1, 1")
g("s_lshl_b32 %s, %s, 1" % (s(S_T0), s(S_WAVE)))
g("v_add_u32 v5, %s, v5" % s(S_T0))
g("s_mul_i32 %s, s2, 2304" % s(S_T1))
g("s_add_u32 %s, %s, 0x%x" % (s(S_T1), s(S_T1), WS_YB))
g("s_lshl_b32 %s, %s, 6" % (s(S_T2), s(S_WAVE)))
g("s_add_u32 %s, %s, %s" % (s(S_T1), s(S_T1), s(S_T2)))
g("v_lshl_add_u32 v7, v9, 2, %s" % s(S_T1))
for i in range(5):
    lskip = None
    if i == 4:
        lskip = g.newlabel("B3K")
        g("s_cmp_ge_u32 %s, 4" % s(S_WAVE))
        g("s_cbranch_scc1 %s" % lskip)
    g("v_add_u32 v6, %d, v5" % (16 * i))
    g("v_xor_b32 v6, v6, v4")
    g("v_lshl_add_u32 v6, v6, 4, v3")
    for ks in range(2):
        g("ds_read_b64_tr_b16 %s, v6 offset:%d" % (v(BFR + ks * 4, 2), ks * 32 * 1152))
        g("ds_read_b64_tr_b16 %s, v6 offset:%d" % (v(BFR + ks * 4 + 2, 2), ks * 32 * 1152 + 16 * 1152))
    g("s_waitcnt lgkmcnt(0)")
    g("v_mfma_f32_16x16x32_bf16 %s, %s, %s, 0" % (v(DX, 4), v(AF, 4), v(BFR, 4)))
    g("v_mfma_f32_16x16x32_bf16 %s, %s, %s, %s" % (v(DX, 4), v(AF + 4, 4), v(BFR + 4, 4), v(DX, 4)))
    g("s_nop 7")
    g("s_nop 1")
    g("s_mov_b64 exec, 0xffff")
    g("v_add_u32 v8, %d, v7" % (512 * i))
    g("global_store_dword v8, %s, %s sc1" % (v(DX), sp(P_WS)))
    g("v_add_u32 v8, %d, v8" % (64 * 2304))
    g("global_store_dword v8, %s, %s sc1" % (v(DX + 1), sp(P_WS)))
    g("s_mov_b64 exec, -1")
    g("s_nop 1")
    if lskip:
        g.label(lskip)
g("s_waitcnt vmcnt(0)")
g("s_barrier")
g("s_cmp_lg_u32 %s, 0" % s(S_WAVE))
g("s_cbranch_scc1 L_B_END")
g("s_lshl_b32 %s, s2, 2" % s(S_T0))
g("s_add_u32 %s, %s, 0x%x" % (s(S_T0), s(S_T0), WS_FB3))
g("v_lshl_add_u32 v5, %s, 8, %s" % (v(VL), s(S_T0)))
set_ws(5, 6, 12)
g.label("L_B_END")
stamp(5)
dump_stamps(10)
g("s_waitcnt vmcnt(0)")
g.label("L_END")
g("s_endpgm")
g.L.append('.section .rodata,"a"')
g.L.append(".p2align 6")
g.L.append(".amdhsa_kernel %s" % NAME)
g.L.append("  .amdhsa_next_free_vgpr 256")
g.L.append("  .amdhsa_next_free_sgpr 102")
g.L.append("  .amdhsa_accum_offset 256")
g.L.append("  .amdhsa_group_segment_fixed_size 0")
g.L.append("  .amdhsa_kernarg_size 120")
g.L.append("  .amdhsa_user_sgpr_count 2")
g.L.append("  .amdhsa_user_sgpr_kernarg_segment_ptr 1")
g.L.append("  .amdhsa_system_sgpr_workgroup_id_x 1")
g.L.append(".end_amdhsa_kernel")

out = sys.argv[1] if len(sys.argv) > 1 else "gated_mix__gqa_block_cached__compressed_kv_cla__decode.s"
open(out, "w").write("\n".join(g.L) + "\n")
print("wrote", out, len(g.L), "lines")
```

```python
import sys, math

NAME = "gated_mix__gqa_block_cached__compressed_kv_cla__decode_kernel"

WS_QABS = 0x0
WS_BSTAT = 0x10000
WS_ASTAT = 0x14000
WS_APART = 0x18000
WS_YA = 0x48000
WS_YB = 0x60000
WS_BPART = 0x100000

CEXP = (128 ** -0.5) * math.log2(math.e)
SPIN_LIMIT = 1 << 20

P_AX, P_K, P_V, P_WQ, P_WO, P_BX, P_CKV, P_BWQ, P_WUK, P_WUV, P_BWO, P_GW, P_OUT, P_DBG, P_WS = [8 + 2 * i for i in range(15)]


def f32hex(x):
    import struct
    return "0x%08x" % struct.unpack("<I", struct.pack("<f", x))[0]


class G:
    def __init__(self):
        self.L = []
        self.nlabel = 0

    def __call__(self, s):
        self.L.append("    " + s)

    def label(self, name):
        self.L.append(name + ":")

    def newlabel(self, p="L"):
        self.nlabel += 1
        return "%s_%d" % (p, self.nlabel)

    def c(self, s):
        self.L.append("    ; " + s)


def v(n, cnt=1):
    return "v%d" % n if cnt == 1 else "v[%d:%d]" % (n, n + cnt - 1)


def s(n, cnt=1):
    return "s%d" % n if cnt == 1 else "s[%d:%d]" % (n, n + cnt - 1)


def sp(n):
    return s(n, 2)


g = G()
import os
STAMPS = os.environ.get("STAMPS", "0") == "1"
WS_TS = 0x400000
def stamp(i):
    if STAMPS:
        g("s_memrealtime %s" % sp(70 + 2 * i))
        g("s_waitcnt lgkmcnt(0)")
def dump_stamps(n):
    if STAMPS:
        lx = g.newlabel("TS")
        g("s_add_u32 s69, %s, 1" % s(S_WAVE))
        g("s_and_b32 s69, s69, 7")
        g("s_cmp_gt_u32 s69, 1")
        g("s_cbranch_scc1 %s" % lx)
        g("s_lshl_b32 s68, s2, 8")
        g("s_xor_b32 s69, s69, 1")
        g("s_lshl_b32 s69, s69, 7")
        g("s_add_u32 s68, s68, s69")
        g("s_add_u32 s68, s68, 0x%x" % WS_TS)
        g("v_mov_b32 v5, s68")
        for i in range(n):
            g("v_mov_b32 v6, %s" % s(70 + 2 * i))
            g("v_mov_b32 v7, %s" % s(71 + 2 * i))
            g("global_store_dwordx2 v5, v[6:7], %s offset:%d" % (sp(P_WS), 8 * i))
            g("s_nop 1")
        g.label(lx)

NT = ""


def barrier():
    g("s_waitcnt lgkmcnt(0)")
    g("s_barrier")


def allreduce16(op, reg, tmp=None):
    for r in (8, 4, 2, 1):
        g("s_nop 1")
        g("%s_dpp %s, %s, %s row_ror:%d row_mask:0xf bank_mask:0xf" % (op, v(reg), v(reg), v(reg), r))


def xreduce_16_32(op, reg, tmp):
    for ins in ("v_permlane16_swap_b32", "v_permlane32_swap_b32"):
        g("v_mov_b32 %s, %s" % (v(tmp), v(reg)))
        g("s_nop 1")
        g("%s %s, %s" % (ins, v(reg), v(tmp)))
        g("s_nop 1")
        g("%s %s, %s, %s" % (op, v(reg), v(reg), v(tmp)))


WS_FA1 = 0x380000
WS_FA2 = 0x381000
WS_FA3 = 0x382000
WS_FB1 = 0x384000
WS_FB2 = 0x385000
WS_FB3 = 0x386000
S_NONCE = 92
SLEEP = 2


def poll_ws(vaddr, vtmp, nlanes, scnt):
    lp = g.newlabel("POLL")
    le = g.newlabel("POLLX")
    g("s_mov_b32 %s, 0" % s(scnt))
    if nlanes < 64:
        g("s_mov_b64 exec, 0x%x" % ((1 << nlanes) - 1))
    g.label(lp)
    g("global_load_dword %s, %s, %s sc1" % (v(vtmp), v(vaddr), sp(P_WS)))
    g("s_waitcnt vmcnt(0)")
    g("v_cmp_ne_u32 vcc, %s, %s" % (s(S_NONCE), v(vtmp)))
    g("s_nop 1")
    g("s_cmp_eq_u64 vcc, 0")
    g("s_cbranch_scc1 %s" % le)
    g("s_add_u32 %s, %s, 1" % (s(scnt), s(scnt)))
    g("s_cmp_gt_u32 %s, %d" % (s(scnt), SPIN_LIMIT))
    g("s_cbranch_scc1 %s" % le)
    g("s_sleep %d" % SLEEP)
    g("s_branch %s" % lp)
    g.label(le)
    g("s_mov_b64 exec, -1")


def set_ws(vaddr, vt1, nlanes):
    g("v_mov_b32 %s, %s" % (v(vt1), s(S_NONCE)))
    g("s_mov_b64 exec, 0x%x" % ((1 << nlanes) - 1))
    g("global_store_dword %s, %s, %s sc1" % (v(vaddr), v(vt1), sp(P_WS)))
    g("s_mov_b64 exec, -1")


def make_nonce():
    le = g.newlabel("NMX")
    g("s_cmp_lg_u32 s2, 0")
    g("s_cbranch_scc1 %s" % le)
    g("s_cmp_lg_u32 %s, 0" % s(S_WAVE))
    g("s_cbranch_scc1 %s" % le)
    g("s_memrealtime %s" % sp(S_NONCE))
    g("s_waitcnt lgkmcnt(0)")
    g("s_or_b32 %s, %s, 1" % (s(S_NONCE), s(S_NONCE)))
    g("v_mov_b32 v3, 0")
    g("v_mov_b32 v4, %s" % s(S_NONCE))
    g("s_mov_b64 exec, 1")
    g("global_store_dword v3, v4, %s sc1" % sp(P_DBG))
    g("s_mov_b64 exec, -1")
    g.label(le)


def get_nonce(vt0, vt1, scnt):
    le = g.newlabel("NX")
    g("s_cmp_eq_u32 s2, 0")
    g("s_cbranch_scc1 %s" % le)
    g("v_mov_b32 %s, 0" % v(vt0))
    g("s_mov_b32 %s, 0" % s(scnt))
    lq = g.newlabel("NL")
    g.label(lq)
    g("global_load_dword %s, %s, %s sc1" % (v(vt1), v(vt0), sp(P_DBG)))
    g("s_waitcnt vmcnt(0)")
    g("v_readfirstlane_b32 %s, %s" % (s(S_NONCE), v(vt1)))
    g("s_nop 3")
    g("s_cmp_lg_u32 %s, 0" % s(S_NONCE))
    g("s_cbranch_scc1 %s" % le)
    g("s_add_u32 %s, %s, 1" % (s(scnt), s(scnt)))
    g("s_cmp_gt_u32 %s, %d" % (s(scnt), SPIN_LIMIT))
    g("s_cbranch_scc1 %s" % le)
    g("s_sleep 4")
    g("s_branch %s" % lq)
    g.label(le)


g.L.append("; @launch grid=(256,1,1) block=(512,1,1) lds=163840")
g.L.append('.amdgcn_target "amdgcn-amd-amdhsa--gfx950"')
g.L.append(".text")
g.L.append(".globl %s" % NAME)
g.L.append(".p2align 8")
g.L.append(".type %s,@function" % NAME)
g.label(NAME)
g("s_cmp_ge_u32 s2, 256")
g("s_cbranch_scc1 L_END")
g("s_load_dwordx16 s[8:23], s[0:1], 0")
g("s_load_dwordx8 s[24:31], s[0:1], 64")
g("s_load_dwordx4 s[32:35], s[0:1], 96")
g("s_load_dwordx2 s[36:37], s[0:1], 112")
S_WAVE = 40
S_SELLO, S_SELHI = 41, 42
S_CEXP = 43
g("v_lshrrev_b32 v1, 6, v0")
g("v_and_b32 v2, 63, v0")
g("s_nop 0")
g("v_readfirstlane_b32 %s, v1" % s(S_WAVE))
g("s_mov_b32 %s, 0x05040100" % s(S_SELLO))
g("s_mov_b32 %s, 0x07060302" % s(S_SELHI))
g("s_mov_b32 %s, %s" % (s(S_CEXP), f32hex(CEXP)))
g("s_waitcnt lgkmcnt(0)")
make_nonce()
g("s_cmp_lt_u32 s2, 64")
g("s_cbranch_scc1 L_ROLE_B")

VL = 2

S_KVH, S_B, S_SPLIT, S_PAIR, S_START, S_CNT = 44, 45, 46, 47, 48, 49
S_T0, S_T1, S_T2, S_T3 = 50, 51, 52, 53
S_MASK5 = 54
S_U5 = 55
S_FLAGB = 56
BUF0, BUF1 = 64, 160
QF = 12
QACC = 28
SS = 36

LA_QRED = 0
LA_QBF = 16384
LA_PBUF = 17408
LA_STAT = 20480
LA_ORED = 24576
LA_OBF = 57344
LA_YRED = 0
LA_FIN = 12288
LA_G = 14336

g.c("---- role A setup")
stamp(0)
g("s_sub_u32 %s, s2, 64" % s(S_T0))
g("s_and_b32 %s, %s, 7" % (s(S_T1), s(S_T0)))
g("s_lshr_b32 %s, %s, 3" % (s(S_T2), s(S_T0)))
g("s_and_b32 %s, %s, 1" % (s(S_T3), s(S_T2)))
g("s_lshl_b32 %s, %s, 1" % (s(S_KVH), s(S_T1)))
g("s_add_u32 %s, %s, %s" % (s(S_KVH), s(S_KVH), s(S_T3)))
g("s_lshr_b32 %s, %s, 1" % (s(S_T2), s(S_T2)))
g("s_cmp_ge_u32 %s, 6" % s(S_T2))
g("s_cselect_b32 %s, 1, 0" % s(S_B))
g("s_mul_i32 %s, %s, 6" % (s(S_T3), s(S_B)))
g("s_sub_u32 %s, %s, %s" % (s(S_SPLIT), s(S_T2), s(S_T3)))
g("s_lshl_b32 %s, %s, 4" % (s(S_PAIR), s(S_B)))
g("s_add_u32 %s, %s, %s" % (s(S_PAIR), s(S_PAIR), s(S_KVH)))
g("s_mul_i32 %s, %s, 6" % (s(S_FLAGB), s(S_PAIR)))
g("s_add_u32 %s, %s, %s" % (s(S_FLAGB), s(S_FLAGB), s(S_SPLIT)))
g("s_add_u32 %s, %s, 64" % (s(S_FLAGB), s(S_FLAGB)))
g("s_add_u32 %s, %s, 7" % (s(S_T0), s(S_WAVE)))
g("s_and_b32 %s, %s, 7" % (s(S_T0), s(S_T0)))
g("s_mul_i32 %s, %s, 6" % (s(S_T0), s(S_T0)))
g("s_add_u32 %s, %s, %s" % (s(S_T0), s(S_T0), s(S_SPLIT)))
g("s_mul_i32 %s, %s, 6" % (s(S_T1), s(S_T0)))
g("s_mul_i32 %s, %s, 5" % (s(S_T2), s(S_T0)))
g("s_add_u32 %s, %s, 16" % (s(S_T2), s(S_T2)))
g("s_cmp_lt_u32 %s, 16" % s(S_T0))
g("s_cselect_b32 %s, %s, %s" % (s(S_START), s(S_T1), s(S_T2)))
g("s_cselect_b32 %s, 5, 4" % s(S_U5))
g("s_cselect_b32 %s, 0, 0xff800000" % s(S_MASK5))

WIN = int(os.environ.get("WIN", "8"))
WS_QPART = 0x300000
LA_QRED2 = 24576
g.c("---- partial q: rows 48gi + 6w + 2i + r, both batches")
g("v_lshrrev_b32 v3, 5, %s" % v(VL))
g("v_and_b32 v4, 31, %s" % v(VL))
g("s_mul_i32 %s, %s, 6" % (s(S_T0), s(S_B)))
g("s_add_u32 %s, %s, %s" % (s(S_T0), s(S_T0), s(S_SPLIT)))
g("s_mul_i32 %s, %s, 48" % (s(S_T1), s(S_T0)))
g("s_mul_i32 %s, %s, 6" % (s(S_T2), s(S_WAVE)))
g("s_add_u32 %s, %s, %s" % (s(S_T1), s(S_T1), s(S_T2)))
g("v_add_u32 v5, %s, v3" % s(S_T1))
g("v_lshlrev_b32 v6, 1, v5")
for bb in range(2):
    for i in range(3):
        g("global_load_ushort %s, v6, %s offset:%d" % (v(SS + bb * 3 + i), sp(P_AX), bb * 1152 + 4 * i))
g("v_lshlrev_b32 v5, 13, v5")
g("v_lshl_add_u32 v5, v4, 4, v5")
g("s_lshl_b32 %s, %s, 9" % (s(S_T2), s(S_KVH)))
g("v_add_u32 v5, %s, v5" % s(S_T2))
for i in range(3):
    g("v_add_u32 v6, %d, v5" % (2 * i * 8192))
    g("global_load_dwordx4 %s, v6, %s%s" % (v(BUF0 + 4 * i, 4), sp(P_WQ), NT))
g.c("---- partial q_B: head = pair, rows 96split + 12w + 4i + r")
QB_X = 42
QB_W = BUF0 + 16
QB_ACC = BUF1
g("v_lshrrev_b32 v7, 4, %s" % v(VL))
g("v_and_b32 v8, 15, %s" % v(VL))
g("s_mul_i32 %s, %s, 96" % (s(S_T1), s(S_SPLIT)))
g("s_mul_i32 %s, %s, 12" % (s(S_T2), s(S_WAVE)))
g("s_add_u32 %s, %s, %s" % (s(S_T1), s(S_T1), s(S_T2)))
g("v_add_u32 v5, %s, v7" % s(S_T1))
g("v_lshlrev_b32 v6, 1, v5")
for bb in range(2):
    for i in range(3):
        g("global_load_ushort %s, v6, %s offset:%d" % (v(QB_X + bb * 3 + i), sp(P_AX), bb * 1152 + 8 * i))
g("v_lshlrev_b32 v5, 13, v5")
g("v_lshl_add_u32 v5, v8, 4, v5")
g("s_lshl_b32 %s, %s, 8" % (s(S_T2), s(S_PAIR)))
g("v_add_u32 v5, %s, v5" % s(S_T2))
for i in range(3):
    g("v_add_u32 v6, %d, v5" % (4 * i * 8192))
    g("global_load_dwordx4 %s, v6, %s%s" % (v(QB_W + 4 * i, 4), sp(P_BWQ), NT))
for e in range(16):
    g("v_mov_b32 %s, 0" % v(QF + e))
    g("v_mov_b32 %s, 0" % v(QB_ACC + e))
g.c("---- K/V per-lane base offsets")
g("s_lshl_b32 %s, %s, 12" % (s(S_T0), s(S_PAIR)))
g("s_lshl_b32 %s, %s, 4" % (s(S_T1), s(S_START)))
g("s_add_u32 %s, %s, %s" % (s(S_T0), s(S_T0), s(S_T1)))
g("s_lshl_b32 %s, %s, 8" % (s(S_T0), s(S_T0)))
g("v_and_b32 v9, 15, %s" % v(VL))
g("v_lshrrev_b32 v10, 4, %s" % v(VL))
g("v_lshlrev_b32 v11, 8, v9")
g("v_lshl_add_u32 v11, v10, 4, v11")
g("v_add_u32 v11, %s, v11" % s(S_T0))
g("v_lshlrev_b32 v60, 8, v10")
g("v_lshl_add_u32 v60, v9, 4, v60")
g("v_add_u32 v60, %s, v60" % s(S_T0))
g("s_lshl_b32 %s, %s, 12" % (s(S_U5), s(S_U5)))
g("v_add_u32 v61, %s, v60" % s(S_U5))
g("s_waitcnt vmcnt(0)")
for bb in range(2):
    for i in range(3):
        g("v_lshlrev_b32 %s, 16, %s" % (v(SS + bb * 3 + i), v(SS + bb * 3 + i)))
for i in range(3):
    for e in range(4):
        g("v_lshlrev_b32 v7, 16, %s" % v(BUF0 + 4 * i + e))
        g("v_and_b32 v8, 0xffff0000, %s" % v(BUF0 + 4 * i + e))
        for bb in range(2):
            g("v_fmac_f32 %s, %s, v7" % (v(QF + bb * 8 + 2 * e), v(SS + bb * 3 + i)))
            g("v_fmac_f32 %s, %s, v8" % (v(QF + bb * 8 + 2 * e + 1), v(SS + bb * 3 + i)))
for bb in range(2):
    for i in range(3):
        g("v_lshlrev_b32 %s, 16, %s" % (v(QB_X + bb * 3 + i), v(QB_X + bb * 3 + i)))
for i in range(3):
    for e in range(4):
        g("v_lshlrev_b32 v7, 16, %s" % v(QB_W + 4 * i + e))
        g("v_and_b32 v8, 0xffff0000, %s" % v(QB_W + 4 * i + e))
        for bb in range(2):
            g("v_fmac_f32 %s, %s, v7" % (v(QB_ACC + bb * 8 + 2 * e), v(QB_X + bb * 3 + i)))
            g("v_fmac_f32 %s, %s, v8" % (v(QB_ACC + bb * 8 + 2 * e + 1), v(QB_X + bb * 3 + i)))
LA_QBRED = 65536
g("s_lshl_b32 %s, %s, 12" % (s(S_T0), s(S_WAVE)))
g("s_add_u32 %s, %s, %d" % (s(S_T0), s(S_T0), LA_QBRED))
g("v_lshlrev_b32 v5, 10, v10")
g("v_lshl_add_u32 v5, v9, 5, v5")
g("v_add_u32 v5, %s, v5" % s(S_T0))
for bb in range(2):
    g("ds_write_b128 v5, %s offset:%d" % (v(QB_ACC + bb * 8, 4), bb * 512))
    g("ds_write_b128 v5, %s offset:%d" % (v(QB_ACC + bb * 8 + 4, 4), bb * 512 + 16))
g("s_lshl_b32 %s, %s, 12" % (s(S_T0), s(S_WAVE)))
g("v_lshlrev_b32 v5, 11, v3")
g("v_lshl_add_u32 v5, v4, 5, v5")
g("v_add_u32 v5, %s, v5" % s(S_T0))
for bb in range(2):
    g("ds_write_b128 v5, %s offset:%d" % (v(QF + bb * 8, 4), LA_QRED2 + bb * 1024))
    g("ds_write_b128 v5, %s offset:%d" % (v(QF + bb * 8 + 4, 4), LA_QRED2 + bb * 1024 + 16))
barrier()


PACE = {"n": 0}


def pace():
    if PACE["n"] >= WIN:
        g("s_waitcnt vmcnt(%d)" % (WIN - 1))
    PACE["n"] += 1


def k_issue(u):
    if u < 5:
        g("v_add_u32 v6, %d, v11" % (u * 4096))
    else:
        g("v_add_u32 v6, %s, v11" % s(S_U5))
    for j in range(4):
        pace()
        g("global_load_dwordx4 %s, v6, %s offset:%d%s" % (v(BUF1 + (u * 4 + j) * 4, 4), sp(P_K), j * 64, NT))


def v_issue(u):
    for i in range(4 * u, 4 * u + 4):
        if u < 5:
            g("v_add_u32 v6, %d, v60" % (i * 1024))
        else:
            g("v_add_u32 v6, %d, v61" % ((i - 20) * 1024))
        pace()
        g("global_load_dwordx4 %s, v6, %s%s" % (v(BUF0 + i * 4, 4), sp(P_V), NT))


NV_PRE = 2


NPRE = int(os.environ.get("NPRE", "0"))


def k_stage(lo=0, hi=6 + NV_PRE):
    if lo == 0:
        PACE["n"] = 0
    for u in range(lo, hi):
        if u < 6:
            k_issue(u)
        else:
            v_issue(u - 6)


lw0 = g.newlabel("AW0")
lwj = g.newlabel("AWJ")
g("s_cmp_eq_u32 %s, 0" % s(S_WAVE))
g("s_cbranch_scc1 %s" % lw0)
WS_QBPART = 0x3A0000
WS_FQB = 0x383000
lw1 = g.newlabel("AW1")
g("s_cmp_lg_u32 %s, 1" % s(S_WAVE))
g("s_cbranch_scc1 %s" % lw1)
get_nonce(6, 7, S_T1)
g("v_lshlrev_b32 v5, 4, %s" % v(VL))
g("v_add_u32 v5, %d, v5" % LA_QBRED)
for i in range(32):
    g("ds_read_b128 %s, v5 offset:%d" % (v(BUF0 + i * 4, 4), i * 1024))
g("s_waitcnt lgkmcnt(0)")
for st in (16, 8, 4, 2, 1):
    for i in range(st):
        for k in range(4):
            g("v_add_f32 %s, %s, %s" % (v(BUF0 + i * 4 + k), v(BUF0 + i * 4 + k), v(BUF0 + (i + st) * 4 + k)))
g("s_mul_i32 %s, %s, 6" % (s(S_T0), s(S_PAIR)))
g("s_add_u32 %s, %s, %s" % (s(S_T0), s(S_T0), s(S_SPLIT)))
g("s_lshl_b32 %s, %s, 10" % (s(S_T0), s(S_T0)))
g("s_add_u32 %s, %s, 0x%x" % (s(S_T0), s(S_T0), WS_QBPART))
g("v_lshl_add_u32 v6, %s, 4, %s" % (v(VL), s(S_T0)))
g("global_store_dwordx4 v6, %s, %s sc1" % (v(BUF0, 4), sp(P_WS)))
g("s_waitcnt vmcnt(0)")
g("s_lshl_b32 %s, %s, 7" % (s(S_T0), s(S_PAIR)))
g("s_lshl_b32 %s, %s, 2" % (s(S_T1), s(S_SPLIT)))
g("s_add_u32 %s, %s, %s" % (s(S_T0), s(S_T0), s(S_T1)))
g("s_add_u32 %s, %s, 0x%x" % (s(S_T0), s(S_T0), WS_FQB))
g("v_mov_b32 v6, %s" % s(S_T0))
set_ws(6, 7, 1)
g.label(lw1)
stamp(7)
k_stage(0, NPRE)
stamp(8)
g("s_barrier")
stamp(9)
k_stage(NPRE)
g("s_branch %s" % lwj)
g.label(lw0)
g.c("wave 0: sum partial q, publish, gather")
get_nonce(6, 7, S_T1)
g("v_lshlrev_b32 v5, 4, %s" % v(VL))
for i in range(16):
    for bb in range(2):
        g("ds_read_b128 %s, v5 offset:%d" % (v(BUF0 + (i * 2 + bb) * 4, 4), LA_QRED2 + i * 2048 + bb * 1024))
g("s_waitcnt lgkmcnt(0)")
for st in (8, 4, 2, 1):
    for i in range(st):
        for k in range(8):
            g("v_add_f32 %s, %s, %s" % (v(BUF0 + i * 8 + k), v(BUF0 + i * 8 + k), v(BUF0 + (i + st) * 8 + k)))
g("s_mul_i32 %s, %s, 6" % (s(S_T0), s(S_B)))
g("s_add_u32 %s, %s, %s" % (s(S_T0), s(S_T0), s(S_SPLIT)))
g("s_mul_i32 %s, %s, 12" % (s(S_T1), s(S_KVH)))
g("s_add_u32 %s, %s, %s" % (s(S_T0), s(S_T0), s(S_T1)))
g("s_lshl_b32 %s, %s, 11" % (s(S_T0), s(S_T0)))
g("s_add_u32 %s, %s, 0x%x" % (s(S_T0), s(S_T0), WS_QPART))
g("v_add_u32 v6, %s, v5" % s(S_T0))
g("global_store_dwordx4 v6, %s, %s sc1" % (v(BUF0, 4), sp(P_WS)))
g("global_store_dwordx4 v6, %s, %s offset:1024 sc1" % (v(BUF0 + 4, 4), sp(P_WS)))
g("s_waitcnt vmcnt(0)")
g("s_mul_i32 %s, %s, 6" % (s(S_T0), s(S_B)))
g("s_add_u32 %s, %s, %s" % (s(S_T0), s(S_T0), s(S_SPLIT)))
g("s_lshl_b32 %s, %s, 2" % (s(S_T0), s(S_T0)))
g("s_lshl_b32 %s, %s, 7" % (s(S_T1), s(S_KVH)))
g("s_add_u32 %s, %s, 0x%x" % (s(S_T1), s(S_T1), WS_FA1))
g("s_add_u32 %s, %s, %s" % (s(S_T0), s(S_T0), s(S_T1)))
g("v_mov_b32 v6, %s" % s(S_T0))
set_ws(6, 7, 1)
stamp(7)
g("v_lshl_add_u32 v6, %s, 2, %s" % (v(VL), s(S_T1)))
poll_ws(6, 7, 12, S_T1)
stamp(8)
g("s_mul_i32 %s, %s, %d" % (s(S_T0), s(S_KVH), 12 * 2048))
g("s_lshl_b32 %s, %s, 10" % (s(S_T1), s(S_B)))
g("s_add_u32 %s, %s, %s" % (s(S_T0), s(S_T0), s(S_T1)))
g("s_add_u32 %s, %s, 0x%x" % (s(S_T0), s(S_T0), WS_QPART))
g("v_add_u32 v6, %s, v5" % s(S_T0))
for i in range(12):
    g("v_add_u32 v7, %d, v6" % (2048 * i))
    g("global_load_dwordx4 %s, v7, %s sc1" % (v(BUF1 + 4 * i, 4), sp(P_WS)))
g("s_waitcnt vmcnt(0)")
for i in range(1, 12):
    for k in range(4):
        g("v_add_f32 %s, %s, %s" % (v(BUF1 + k), v(BUF1 + k), v(BUF1 + 4 * i + k)))
g("v_cvt_pk_bf16_f32 v6, %s, %s" % (v(BUF1), v(BUF1 + 1)))
g("v_cvt_pk_bf16_f32 v7, %s, %s" % (v(BUF1 + 2), v(BUF1 + 3)))
g("v_lshlrev_b32 v5, 3, %s" % v(VL))
g("ds_write_b64 v5, v[6:7] offset:%d" % LA_QBF)
barrier()
stamp(9)
k_stage()
g.label(lwj)
g.c("---- q frags (A operand): row = l&15 (<2), slab = l>>4")
for i in range(16):
    g("v_mov_b32 %s, 0" % v(QF + i))
g("v_lshlrev_b32 v5, 8, v9")
g("v_lshl_add_u32 v5, v10, 4, v5")
g("v_cmp_gt_u32 vcc, 2, v9")
g("s_and_saveexec_b64 %s, vcc" % sp(58))
for j in range(4):
    g("ds_read_b128 %s, v5 offset:%d" % (v(QF + 4 * j, 4), LA_QBF + 64 * j))
g("s_mov_b64 exec, %s" % sp(58))
v_issue(2)
g("s_waitcnt lgkmcnt(0)")
stamp(1)
g.c("---- QK")
g("s_waitcnt vmcnt(12)")
for u in range(6):
    for j in range(4):
        cc = "0" if j == 0 else v(SS + 4 * u, 4)
        g("v_mfma_f32_16x16x32_bf16 %s, %s, %s, %s" % (v(SS + 4 * u, 4), v(QF + 4 * j, 4), v(BUF1 + (u * 4 + j) * 4, 4), cc))
v_issue(3)
g("s_nop 7")
g.c("---- softmax (lanes 0..15 valid)")
stamp(2)
g("v_add_f32 %s, %s, %s" % (v(SS + 20), s(S_MASK5), v(SS + 20)))
g("v_add_f32 %s, %s, %s" % (v(SS + 21), s(S_MASK5), v(SS + 21)))
VM0, VM1, VL0, VL1 = 3, 4, 7, 8
for h in range(2):
    m = VM0 + h
    g("v_max3_f32 %s, %s, %s, %s" % (v(m), v(SS + h), v(SS + 4 + h), v(SS + 8 + h)))
    g("v_max3_f32 %s, %s, %s, %s" % (v(m), v(m), v(SS + 12 + h), v(SS + 16 + h)))
    g("v_max_f32 %s, %s, %s" % (v(m), v(m), v(SS + 20 + h)))
    allreduce16("v_max_f32", m)
g("v_mul_f32 v5, %s, %s" % (s(S_CEXP), v(VM0)))
g("v_mul_f32 v6, %s, %s" % (s(S_CEXP), v(VM1)))
for u in range(6):
    g("v_fma_f32 %s, %s, %s, -v5" % (v(SS + 4 * u), v(SS + 4 * u), s(S_CEXP)))
    g("v_fma_f32 %s, %s, %s, -v6" % (v(SS + 4 * u + 1), v(SS + 4 * u + 1), s(S_CEXP)))
for u in range(6):
    g("v_exp_f32 %s, %s" % (v(SS + 4 * u), v(SS + 4 * u)))
    g("v_exp_f32 %s, %s" % (v(SS + 4 * u + 1), v(SS + 4 * u + 1)))
v_issue(4)
for u in range(6):
    g("v_cvt_pk_bf16_f32 %s, %s, %s" % (v(SS + 4 * u + 2), v(SS + 4 * u), v(SS + 4 * u + 1)))
for h in range(2):
    l = VL0 + h
    g("v_add_f32 %s, %s, %s" % (v(l), v(SS + h), v(SS + 4 + h)))
    for u in range(2, 6):
        g("v_add_f32 %s, %s, %s" % (v(l), v(l), v(SS + 4 * u + h)))
    allreduce16("v_add_f32", l)
g("s_mul_i32 %s, %s, 384" % (s(S_T0), s(S_WAVE)))
g("v_and_b32 v5, 3, v9")
g("v_mul_u32_u24 v5, 48, v5")
g("v_lshrrev_b32 v6, 2, v9")
g("v_lshl_add_u32 v5, v6, 1, v5")
g("v_add_u32 v5, %s, v5" % s(S_T0))
g("s_mov_b64 exec, 0xffff")
for u in range(6):
    g("ds_write_b16 v5, %s offset:%d" % (v(SS + 4 * u + 2), LA_PBUF + 8 * u))
    g("ds_write_b16_d16_hi v5, %s offset:%d" % (v(SS + 4 * u + 2), LA_PBUF + 192 + 8 * u))
g("s_mov_b64 exec, -1")
v_issue(5)
g.c("---- wo slice prefetch into BUF1 (8 x dwordx3)")
g("s_lshl_b32 %s, %s, 8" % (s(S_T0), s(S_KVH)))
g("s_lshl_b32 %s, %s, 5" % (s(S_T1), s(S_WAVE)))
g("s_add_u32 %s, %s, %s" % (s(S_T0), s(S_T0), s(S_T1)))
g("s_mul_i32 %s, %s, 1152" % (s(S_T0), s(S_T0)))
g("s_mul_i32 %s, %s, 192" % (s(S_T1), s(S_SPLIT)))
g("s_add_u32 %s, %s, %s" % (s(S_T0), s(S_T0), s(S_T1)))
g("v_mul_u32_u24 v5, 2304, v10")
g("v_mul_u32_u24 v6, 12, v9")
g("v_add3_u32 v5, v5, v6, %s" % s(S_T0))
for jj in range(4):
    for t in range(2):
        g("v_add_u32 v6, %d, v5" % ((8 * jj + t) * 1152))
        g("global_load_dwordx3 %s, v6, %s" % (v(BUF1 + (jj * 2 + t) * 4, 3), sp(P_WO)))
g("s_mov_b64 exec, 1")
g("v_mov_b32 v60, %s" % v(VM0))
g("v_mov_b32 v61, %s" % v(VL0))
g("v_mov_b32 v62, %s" % v(VM1))
g("v_mov_b32 v63, %s" % v(VL1))
g("s_lshl_b32 %s, %s, 4" % (s(S_T0), s(S_WAVE)))
g("v_mov_b32 v3, %s" % s(S_T0))
g("ds_write_b128 v3, v[60:63] offset:%d" % LA_STAT)
g("s_mov_b64 exec, -1")
g("s_waitcnt lgkmcnt(0)")
g("s_mul_i32 %s, %s, 384" % (s(S_T0), s(S_WAVE)))
g("v_mul_u32_u24 v5, 48, v10")
g("v_add_u32 v5, %s, v5" % s(S_T0))
P2 = SS
for h in range(2):
    for q in range(3):
        g("ds_read_b128 %s, v5 offset:%d" % (v(P2 + h * 12 + q * 4, 4), LA_PBUF + h * 192 + q * 16))
OA = QF
for i in range(16):
    g("v_mov_b32 %s, 0" % v(OA + i))
g("s_waitcnt lgkmcnt(0)")
g.c("---- PV")
for j in range(12):
    g("s_waitcnt vmcnt(%d)" % (24 - 2 * (j + 1) + 8))
    r0 = BUF0 + (2 * j) * 4
    r1 = r0 + 4
    for e in range(4):
        g("v_perm_b32 v7, %s, %s, %s" % (v(r1 + e), v(r0 + e), s(S_SELLO)))
        g("v_perm_b32 v8, %s, %s, %s" % (v(r1 + e), v(r0 + e), s(S_SELHI)))
        for h in range(2):
            g("v_dot2_f32_bf16 %s, v7, %s, %s" % (v(OA + h * 8 + 2 * e), v(P2 + h * 12 + j), v(OA + h * 8 + 2 * e)))
            g("v_dot2_f32_bf16 %s, v8, %s, %s" % (v(OA + h * 8 + 2 * e + 1), v(P2 + h * 12 + j), v(OA + h * 8 + 2 * e + 1)))
stamp(3)
g.c("---- WG reduce of o")
g("s_lshl_b32 %s, %s, 12" % (s(S_T0), s(S_WAVE)))
g("v_lshlrev_b32 v5, 10, v10")
g("v_lshl_add_u32 v5, v9, 5, v5")
g("v_add_u32 v5, %s, v5" % s(S_T0))
for h in range(2):
    g("ds_write_b128 v5, %s offset:%d" % (v(OA + h * 8, 4), LA_ORED + h * 512))
    g("ds_write_b128 v5, %s offset:%d" % (v(OA + h * 8 + 4, 4), LA_ORED + h * 512 + 16))
barrier()
la1 = g.newlabel("ARED")
g("s_cmp_ge_u32 %s, 4" % s(S_WAVE))
g("s_cbranch_scc1 %s" % la1)
g("v_lshrrev_b32 v3, 7, v0")
g("v_lshlrev_b32 v4, 3, v3")
for w in range(8):
    g("ds_read_b64 %s, v4 offset:%d" % (v(SS + 2 * w, 2), LA_STAT + 16 * w))
g("v_lshlrev_b32 v5, 2, v0")
for i in range(32):
    g("ds_read_b32 %s, v5 offset:%d" % (v(BUF0 + i), LA_ORED + i * 1024))
g("s_waitcnt lgkmcnt(0)")
g("v_max3_f32 v6, %s, %s, %s" % (v(SS), v(SS + 2), v(SS + 4)))
g("v_max3_f32 v6, v6, %s, %s" % (v(SS + 6), v(SS + 8)))
g("v_max3_f32 v6, v6, %s, %s" % (v(SS + 10), v(SS + 12)))
g("v_max_f32 v6, v6, %s" % v(SS + 14))
for w in range(8):
    g("v_sub_f32 %s, %s, v6" % (v(SS + 2 * w), v(SS + 2 * w)))
    g("v_mul_f32 %s, %s, %s" % (v(SS + 2 * w), s(S_CEXP), v(SS + 2 * w)))
    g("v_exp_f32 %s, %s" % (v(SS + 2 * w), v(SS + 2 * w)))
g("v_mov_b32 v7, 0")
g("v_mov_b32 v8, 0")
for w in range(8):
    g("v_fmac_f32 v7, %s, %s" % (v(SS + 2 * w), v(SS + 2 * w + 1)))
    g("v_add_f32 %s, %s, %s" % (v(BUF0 + 4 * w), v(BUF0 + 4 * w), v(BUF0 + 4 * w + 1)))
    g("v_add_f32 %s, %s, %s" % (v(BUF0 + 4 * w + 2), v(BUF0 + 4 * w + 2), v(BUF0 + 4 * w + 3)))
    g("v_add_f32 %s, %s, %s" % (v(BUF0 + 4 * w), v(BUF0 + 4 * w), v(BUF0 + 4 * w + 2)))
    g("v_fmac_f32 v8, %s, %s" % (v(SS + 2 * w), v(BUF0 + 4 * w)))
g("s_mul_i32 %s, %s, 6" % (s(S_T0), s(S_PAIR)))
g("s_add_u32 %s, %s, %s" % (s(S_T0), s(S_T0), s(S_SPLIT)))
g("s_lshl_b32 %s, %s, 10" % (s(S_T1), s(S_T0)))
g("s_add_u32 %s, %s, 0x%x" % (s(S_T1), s(S_T1), WS_APART))
g("v_add_u32 v5, %s, v5" % s(S_T1))
g("global_store_dword v5, v8, %s sc1" % sp(P_WS))
g("s_lshl_b32 %s, %s, 4" % (s(S_T1), s(S_T0)))
g("s_add_u32 %s, %s, 0x%x" % (s(S_T1), s(S_T1), WS_ASTAT))
g("v_add_u32 v4, %s, v4" % s(S_T1))
g("v_and_b32 v3, 127, v0")
g("v_cmp_eq_u32 vcc, 0, v3")
g("s_and_saveexec_b64 %s, vcc" % sp(58))
lz = g.newlabel("ASTZ")
g("s_cbranch_execz %s" % lz)
g("global_store_dwordx2 v4, v[6:7], %s sc1" % sp(P_WS))
g.label(lz)
g("s_mov_b64 exec, %s" % sp(58))
g.label(la1)
g("s_waitcnt vmcnt(0)")
g("s_barrier")
lf = g.newlabel("AFL")
g("s_cmp_lg_u32 %s, 0" % s(S_WAVE))
g("s_cbranch_scc1 %s" % lf)
g("s_lshl_b32 %s, %s, 7" % (s(S_T1), s(S_PAIR)))
g("s_add_u32 %s, %s, 0x%x" % (s(S_T1), s(S_T1), WS_FA2))
g("s_lshl_b32 %s, %s, 2" % (s(S_T0), s(S_SPLIT)))
g("s_add_u32 %s, %s, %s" % (s(S_T0), s(S_T0), s(S_T1)))
g("v_mov_b32 v5, %s" % s(S_T0))
set_ws(5, 6, 1)
g("v_lshl_add_u32 v5, %s, 2, %s" % (v(VL), s(S_T1)))
poll_ws(5, 6, 6, S_T1)
g.label(lf)
g("s_barrier")
stamp(4)
g.c("---- combine")
la2 = g.newlabel("ACMB")
g("s_cmp_ge_u32 %s, 4" % s(S_WAVE))
g("s_cbranch_scc1 %s" % la2)
g("s_mul_i32 %s, %s, 6" % (s(S_T0), s(S_PAIR)))
g("s_lshl_b32 %s, %s, 10" % (s(S_T1), s(S_T0)))
g("s_add_u32 %s, %s, 0x%x" % (s(S_T1), s(S_T1), WS_APART))
g("v_lshl_add_u32 v5, v0, 2, %s" % s(S_T1))
for i in range(6):
    g("v_add_u32 v6, %d, v5" % (1024 * i))
    g("global_load_dword %s, v6, %s sc1" % (v(SS + 12 + i), sp(P_WS)))
g("s_lshl_b32 %s, %s, 4" % (s(S_T1), s(S_T0)))
g("s_add_u32 %s, %s, 0x%x" % (s(S_T1), s(S_T1), WS_ASTAT))
g("v_lshrrev_b32 v3, 7, v0")
g("v_lshl_add_u32 v4, v3, 3, %s" % s(S_T1))
for i in range(6):
    g("global_load_dwordx2 %s, v4, %s offset:%d sc1" % (v(SS + 2 * i, 2), sp(P_WS), 16 * i))
g("s_waitcnt vmcnt(0)")
g("v_max3_f32 v6, %s, %s, %s" % (v(SS), v(SS + 2), v(SS + 4)))
g("v_max3_f32 v6, v6, %s, %s" % (v(SS + 6), v(SS + 8)))
g("v_max_f32 v6, v6, %s" % v(SS + 10))
for i in range(6):
    g("v_sub_f32 %s, %s, v6" % (v(SS + 2 * i), v(SS + 2 * i)))
    g("v_mul_f32 %s, %s, %s" % (v(SS + 2 * i), s(S_CEXP), v(SS + 2 * i)))
    g("v_exp_f32 %s, %s" % (v(SS + 2 * i), v(SS + 2 * i)))
g("v_mov_b32 v7, 0")
g("v_mov_b32 v8, 0")
for i in range(6):
    g("v_fmac_f32 v7, %s, %s" % (v(SS + 2 * i), v(SS + 2 * i + 1)))
    g("v_fmac_f32 v8, %s, %s" % (v(SS + 2 * i), v(SS + 12 + i)))
g("v_rcp_f32 v7, v7")
g("s_nop 0")
g("v_mul_f32 v8, v8, v7")
g("v_cvt_pk_bf16_f32 v6, v8, v8")
g("v_lshlrev_b32 v5, 1, v0")
g("ds_write_b16 v5, v6 offset:%d" % LA_OBF)
g.label(la2)
barrier()
g.c("---- wo projection: wave rows 32w + 8jj + 2r + t")
g("s_lshl_b32 %s, %s, 6" % (s(S_T0), s(S_WAVE)))
g("v_lshl_add_u32 v5, v10, 2, %s" % s(S_T0))
for jj in range(4):
    g("ds_read_b32 %s, v5 offset:%d" % (v(SS + jj), LA_OBF + 16 * jj))
for e in range(6):
    g("v_mov_b32 %s, 0" % v(QF + e))
g("s_waitcnt lgkmcnt(0)")
for jj in range(4):
    r0 = BUF1 + (jj * 2) * 4
    r1 = r0 + 4
    for e in range(3):
        g("v_perm_b32 v7, %s, %s, %s" % (v(r1 + e), v(r0 + e), s(S_SELLO)))
        g("v_perm_b32 v8, %s, %s, %s" % (v(r1 + e), v(r0 + e), s(S_SELHI)))
        g("v_dot2_f32_bf16 %s, v7, %s, %s" % (v(QF + 2 * e), v(SS + jj), v(QF + 2 * e)))
        g("v_dot2_f32_bf16 %s, v8, %s, %s" % (v(QF + 2 * e + 1), v(SS + jj), v(QF + 2 * e + 1)))
g("s_mul_i32 %s, %s, 1536" % (s(S_T0), s(S_WAVE)))
g("v_mul_u32_u24 v5, 384, v10")
g("v_mul_u32_u24 v6, 24, v9")
g("v_add3_u32 v5, v5, v6, %s" % s(S_T0))
for e in range(3):
    g("ds_write_b64 v5, %s offset:%d" % (v(QF + 2 * e, 2), LA_YRED + 8 * e))
barrier()
la3 = g.newlabel("AY")
g("v_cmp_gt_u32 vcc, 96, v0")
g("s_and_saveexec_b64 %s, vcc" % sp(58))
g("s_cbranch_execz %s" % la3)
g("v_lshlrev_b32 v5, 2, v0")
for i in range(32):
    g("ds_read_b32 %s, v5 offset:%d" % (v(BUF0 + i), LA_YRED + i * 384))
g("s_waitcnt lgkmcnt(0)")
for st in (16, 8, 4, 2, 1):
    for i in range(st):
        g("v_add_f32 %s, %s, %s" % (v(BUF0 + i), v(BUF0 + i), v(BUF0 + i + st)))
g("s_mul_i32 %s, %s, 2304" % (s(S_T0), s(S_PAIR)))
g("s_mul_i32 %s, %s, 384" % (s(S_T1), s(S_SPLIT)))
g("s_add_u32 %s, %s, %s" % (s(S_T0), s(S_T0), s(S_T1)))
g("s_add_u32 %s, %s, 0x%x" % (s(S_T0), s(S_T0), WS_YA))
g("v_add_u32 v5, %s, v5" % s(S_T0))
g("global_store_dword v5, %s, %s sc1" % (v(BUF0), sp(P_WS)))
g.label(la3)
g("s_mov_b64 exec, %s" % sp(58))
g("s_waitcnt vmcnt(0)")
g("s_barrier")
lf2 = g.newlabel("AFL2")
g("s_cmp_lg_u32 %s, 0" % s(S_WAVE))
g("s_cbranch_scc1 %s" % lf2)
g("s_mul_i32 %s, %s, 6" % (s(S_T0), s(S_B)))
g("s_add_u32 %s, %s, %s" % (s(S_T0), s(S_T0), s(S_SPLIT)))
g("s_lshl_b32 %s, %s, 7" % (s(S_T0), s(S_T0)))
g("s_lshl_b32 %s, %s, 2" % (s(S_T1), s(S_KVH)))
g("s_add_u32 %s, %s, %s" % (s(S_T0), s(S_T0), s(S_T1)))
g("s_add_u32 %s, %s, 0x%x" % (s(S_T0), s(S_T0), WS_FA3))
g("v_mov_b32 v5, %s" % s(S_T0))
set_ws(5, 6, 1)
g.label(lf2)
stamp(5)
g.c("---- finalizer: kvh == 0")
g("s_cmp_lg_u32 %s, 0" % s(S_KVH))
g("s_cbranch_scc1 L_A_END")
lfin = g.newlabel("FIN")
g("s_cmp_lg_u32 %s, 0" % s(S_WAVE))
g("s_cbranch_scc1 %s" % lfin)
g.c("gate: wave 0 computes g for batch b")
g("s_mul_i32 %s, %s, 1152" % (s(S_T0), s(S_B)))
g("v_lshl_add_u32 v5, %s, 1, %s" % (v(VL), s(S_T0)))
g("v_lshlrev_b32 v6, 1, %s" % v(VL))
for i in range(9):
    g("global_load_ushort %s, v5, %s offset:%d" % (v(SS + i), sp(P_AX), 128 * i))
    g("global_load_ushort %s, v6, %s offset:%d" % (v(SS + 9 + i), sp(P_GW), 128 * i))
g("s_waitcnt vmcnt(0)")
g("v_mov_b32 v7, 0")
for i in range(9):
    g("v_lshlrev_b32 %s, 16, %s" % (v(SS + i), v(SS + i)))
    g("v_lshlrev_b32 %s, 16, %s" % (v(SS + 9 + i), v(SS + 9 + i)))
    g("v_mul_f32 %s, %s, %s" % (v(SS + i), v(SS + i), v(SS + 9 + i)))
    g("v_cvt_pk_bf16_f32 %s, %s, %s" % (v(SS + i), v(SS + i), v(SS + i)))
    g("v_lshlrev_b32 %s, 16, %s" % (v(SS + i), v(SS + i)))
    g("v_add_f32 v7, v7, %s" % v(SS + i))
allreduce16("v_add_f32", 7)
g("s_nop 1")
xreduce_16_32("v_add_f32", 7, 8)
g("v_cvt_pk_bf16_f32 v7, v7, v7")
g("v_lshlrev_b32 v7, 16, v7")
g("v_mul_f32 v7, %s, v7" % f32hex(-math.log2(math.e)))
g("v_exp_f32 v7, v7")
g("s_nop 0")
g("v_add_f32 v7, 1.0, v7")
g("v_rcp_f32 v7, v7")
g("s_nop 0")
g("v_cvt_pk_bf16_f32 v7, v7, v7")
g("v_lshlrev_b32 v7, 16, v7")
g("v_mov_b32 v5, 0")
g("ds_write_b32 v5, v7 offset:%d" % LA_G)
g.c("poll A flags (16 kvh) and B flags (64)")
g("s_mul_i32 %s, %s, 6" % (s(S_T0), s(S_B)))
g("s_add_u32 %s, %s, %s" % (s(S_T0), s(S_T0), s(S_SPLIT)))
g("s_lshl_b32 %s, %s, 7" % (s(S_T2), s(S_T0)))
g("s_add_u32 %s, %s, 0x%x" % (s(S_T2), s(S_T2), WS_FA3))
g("v_lshl_add_u32 v5, %s, 2, %s" % (v(VL), s(S_T2)))
poll_ws(5, 6, 16, S_T1)
g("s_lshl_b32 %s, %s, 8" % (s(S_T2), s(S_T0)))
g("s_add_u32 %s, %s, 0x%x" % (s(S_T2), s(S_T2), WS_FB3))
g("v_lshl_add_u32 v5, %s, 2, %s" % (v(VL), s(S_T2)))
poll_ws(5, 6, 64, S_T1)
g.label(lfin)
barrier()
lf3 = g.newlabel("FIN2")
g("v_cmp_gt_u32 vcc, 480, v0")
g("s_and_saveexec_b64 %s, vcc" % sp(58))
g("s_cbranch_execz %s" % lf3)
g("v_mul_u32_u24 v3, 683, v0")
g("v_lshrrev_b32 v3, 16, v3")
g("v_mul_u32_u24 v4, 96, v3")
g("v_sub_u32 v4, v0, v4")
g("s_mul_i32 %s, %s, %d" % (s(S_T0), s(S_B), 16 * 2304))
g("s_add_u32 %s, %s, 0x%x" % (s(S_T0), s(S_T0), WS_YA))
g("s_mul_i32 %s, %s, %d" % (s(S_T1), s(S_B), 64 * 2304))
g("s_add_u32 %s, %s, 0x%x" % (s(S_T1), s(S_T1), WS_YB - 16 * 2304))
g("v_mul_u32_u24 v5, %d, v3" % (16 * 2304))
g("v_add_u32 v5, %s, v5" % s(S_T1))
g("v_mov_b32 v6, %s" % s(S_T0))
g("v_cmp_eq_u32 vcc, 0, v3")
g("s_nop 1")
g("v_cndmask_b32 v5, v5, v6, vcc")
g("s_mul_i32 %s, %s, 384" % (s(S_T2), s(S_SPLIT)))
g("v_lshl_add_u32 v5, v4, 2, v5")
g("v_add_u32 v5, %s, v5" % s(S_T2))
for i in range(16):
    g("v_add_u32 v6, %d, v5" % (2304 * i))
    g("global_load_dword %s, v6, %s sc1" % (v(BUF0 + i), sp(P_WS)))
g("s_waitcnt vmcnt(0)")
for st in (8, 4, 2, 1):
    for i in range(st):
        g("v_add_f32 %s, %s, %s" % (v(BUF0 + i), v(BUF0 + i), v(BUF0 + i + st)))
g("v_lshlrev_b32 v5, 2, v0")
g("ds_write_b32 v5, %s offset:%d" % (v(BUF0), LA_FIN))
g.label(lf3)
g("s_mov_b64 exec, %s" % sp(58))
barrier()
g("v_cmp_gt_u32 vcc, 96, v0")
g("s_and_saveexec_b64 %s, vcc" % sp(58))
g("s_cbranch_execz L_A_END")
g("v_lshlrev_b32 v5, 2, v0")
for i in range(5):
    g("ds_read_b32 %s, v5 offset:%d" % (v(SS + i), LA_FIN + 384 * i))
g("v_mov_b32 v6, 0")
g("ds_read_b32 v7, v6 offset:%d" % LA_G)
g("s_waitcnt lgkmcnt(0)")
g("v_add_f32 %s, %s, %s" % (v(SS + 1), v(SS + 1), v(SS + 2)))
g("v_add_f32 %s, %s, %s" % (v(SS + 3), v(SS + 3), v(SS + 4)))
g("v_add_f32 %s, %s, %s" % (v(SS + 1), v(SS + 1), v(SS + 3)))
g("v_cvt_pk_bf16_f32 v8, %s, %s" % (v(SS), v(SS + 1)))
g("v_lshlrev_b32 %s, 16, v8" % v(SS))
g("v_and_b32 %s, 0xffff0000, v8" % v(SS + 1))
g("v_sub_f32 v8, 1.0, v7")
g("v_mul_f32 %s, v7, %s" % (v(SS), v(SS)))
g("v_cvt_pk_bf16_f32 v8, v8, v8")
g("v_lshlrev_b32 v8, 16, v8")
g("v_mul_f32 %s, v8, %s" % (v(SS + 1), v(SS + 1)))
g("v_cvt_pk_bf16_f32 v8, %s, %s" % (v(SS), v(SS + 1)))
g("v_lshlrev_b32 %s, 16, v8" % v(SS))
g("v_and_b32 %s, 0xffff0000, v8" % v(SS + 1))
g("v_add_f32 v8, %s, %s" % (v(SS), v(SS + 1)))
g("v_cvt_pk_bf16_f32 v8, v8, v8")
g("s_mul_i32 %s, %s, 1152" % (s(S_T0), s(S_B)))
g("s_mul_i32 %s, %s, 192" % (s(S_T1), s(S_SPLIT)))
g("s_add_u32 %s, %s, %s" % (s(S_T0), s(S_T0), s(S_T1)))
g("v_lshl_add_u32 v5, v0, 1, %s" % s(S_T0))
g("global_store_short v5, v8, %s" % sp(P_OUT))
g.label("L_A_END")
g("s_mov_b64 exec, -1")
stamp(6)
dump_stamps(10)
g("s_branch L_END")

S_H, S_HALF, S_B2, S_SP2 = 44, 45, 46, 47
LB_U = 131072
LB_WO = 65536
LB_CRED = 139264
LB_CBF = 155648
LB_XRED = 157696
LB_XBF = 161792
def b_prefetch():
    g.c("---- prefetch w_uv / w_o tiles into v176..v243")
    LB_WO = 65536
    LB_CRED = 139264
    LB_CBF = 155648
    LB_XRED = 157696
    LB_XBF = 161792
    g("v_lshrrev_b32 v3, 3, %s" % v(VL))
    g("v_and_b32 v4, 7, %s" % v(VL))
    g("v_lshrrev_b32 v5, 1, v3")
    g("v_and_b32 v5, 3, v5")
    g("v_lshlrev_b32 v5, 1, v5")
    g("v_xor_b32 v4, v4, v5")
    g("v_lshlrev_b32 v4, 4, v4")
    g("v_lshl_add_u32 v4, v3, 13, v4")
    g("s_lshl_b32 %s, %s, 8" % (s(S_T0), s(S_H)))
    g("s_lshl_b32 %s, %s, 7" % (s(S_T1), s(S_HALF)))
    g("s_add_u32 %s, %s, %s" % (s(S_T0), s(S_T0), s(S_T1)))
    g("s_lshl_b32 %s, %s, 19" % (s(S_T1), s(S_WAVE)))
    g("s_add_u32 %s, %s, %s" % (s(S_T0), s(S_T0), s(S_T1)))
    g("v_add_u32 v4, %s, v4" % s(S_T0))
    g("s_lshl_b32 %s, %s, 13" % (s(S_T1), s(S_WAVE)))
    for i in range(8):
        g("v_add_u32 v6, 0x%x, v4" % (i * 8 * 8192))
        g("global_load_dwordx4 %s, v6, %s%s" % (v(176 + 4 * i, 4), sp(P_WUV), NT))
    g("s_lshl_b32 %s, %s, 7" % (s(S_T0), s(S_H)))
    g("s_lshl_b32 %s, %s, 6" % (s(S_T1), s(S_HALF)))
    g("s_add_u32 %s, %s, %s" % (s(S_T0), s(S_T0), s(S_T1)))
    g("s_mul_i32 %s, %s, 1152" % (s(S_T0), s(S_T0)))
    g("s_mul_i32 %s, %s, 576" % (s(S_T1), s(S_WAVE)))
    g("s_mov_b32 %s, 58255" % s(S_T3))
    for i in range(9):
        g("v_add_u32 v3, %s, %s" % (s(S_T1), v(VL)))
        g("v_add_u32 v3, %d, v3" % (64 * i))
        g("v_mul_lo_u32 v4, v3, %s" % s(S_T3))
        g("v_lshrrev_b32 v4, 22, v4")
        g("v_mul_u32_u24 v5, 72, v4")
        g("v_sub_u32 v5, v3, v5")
        g("v_lshrrev_b32 v6, 1, v4")
        g("v_and_b32 v6, 3, v6")
        g("v_lshlrev_b32 v6, 1, v6")
        g("v_xor_b32 v5, v5, v6")
        g("v_mul_u32_u24 v4, 1152, v4")
        g("v_lshl_add_u32 v4, v5, 4, v4")
        g("v_add_u32 v4, %s, v4" % s(S_T0))
        g("global_load_dwordx4 %s, v4, %s%s" % (v(208 + 4 * i, 4), sp(P_BWO), NT))


g.label("L_ROLE_B")
g.c("---- role B setup")
stamp(0)
g("s_and_b32 %s, s2, 7" % s(S_T0))
g("s_lshr_b32 %s, s2, 3" % s(S_T1))
g("s_lshl_b32 %s, %s, 2" % (s(S_H), s(S_T0)))
g("s_lshr_b32 %s, %s, 1" % (s(S_T2), s(S_T1)))
g("s_add_u32 %s, %s, %s" % (s(S_H), s(S_H), s(S_T2)))
g("s_and_b32 %s, %s, 1" % (s(S_HALF), s(S_T1)))
g("s_lshr_b32 %s, s2, 5" % s(S_B2))
g("s_and_b32 %s, s2, 31" % s(S_SP2))
g("v_and_b32 v9, 15, %s" % v(VL))
g("v_lshrrev_b32 v10, 4, %s" % v(VL))
XP = 12
BACC = 30
WQB = 64
WUKR = 136
g("s_lshl_b32 %s, %s, 8" % (s(S_T1), s(S_H)))
g("s_lshl_b32 %s, %s, 8" % (s(S_T0), s(S_HALF)))
g("s_lshl_b32 %s, %s, 5" % (s(S_T2), s(S_WAVE)))
g("s_add_u32 %s, %s, %s" % (s(S_T0), s(S_T0), s(S_T2)))
g("s_lshl_b32 %s, %s, 13" % (s(S_T2), s(S_T0)))
g("s_add_u32 %s, %s, %s" % (s(S_T2), s(S_T2), s(S_T1)))
g("v_lshlrev_b32 v5, 13, v9")
g("v_lshl_add_u32 v5, v10, 4, v5")
g("v_add_u32 v5, %s, v5" % s(S_T2))
for gq in range(2):
    g("v_add_u32 v6, 0x%x, v5" % (gq * 16 * 8192))
    for st in range(4):
        g("global_load_dwordx4 %s, v6, %s offset:%d%s" % (v(WUKR + (gq * 4 + st) * 4, 4), sp(P_WUK), st * 64, NT))
g.c("C tile -> registers v168..v231 (rows 16w + i)")
CT = 168
g("s_lshl_b32 %s, %s, 12" % (s(S_T0), s(S_B2)))
g("s_lshl_b32 %s, %s, 7" % (s(S_T1), s(S_SP2)))
g("s_add_u32 %s, %s, %s" % (s(S_T0), s(S_T0), s(S_T1)))
g("s_lshl_b32 %s, %s, 4" % (s(S_T1), s(S_WAVE)))
g("s_add_u32 %s, %s, %s" % (s(S_T0), s(S_T0), s(S_T1)))
g("s_lshl_b32 %s, %s, 10" % (s(S_T0), s(S_T0)))
g("v_lshl_add_u32 v5, %s, 4, %s" % (v(VL), s(S_T0)))
for i in range(16):
    if i % 4 == 0 and i:
        g("v_add_u32 v5, 4096, v5")
    g("global_load_dwordx4 %s, v5, %s offset:%d%s" % (v(CT + 4 * i, 4), sp(P_CKV), (i % 4) * 1024, NT))
g.c("wave 0: wait for 6 q_B partial flags of head h")
lbq = g.newlabel("BQ")
g("s_cmp_lg_u32 %s, 0" % s(S_WAVE))
g("s_cbranch_scc1 %s" % lbq)
get_nonce(5, 6, S_T1)
g("s_lshl_b32 %s, %s, 7" % (s(S_T0), s(S_H)))
g("s_add_u32 %s, %s, 0x%x" % (s(S_T0), s(S_T0), 0x383000))
g("v_lshl_add_u32 v5, %s, 2, %s" % (v(VL), s(S_T0)))
poll_ws(5, 6, 6, S_T1)
g.c("gather: lane -> 4 values; 6 partials")
g("s_mul_i32 %s, %s, 6144" % (s(S_T0), s(S_H)))
g("s_add_u32 %s, %s, 0x%x" % (s(S_T0), s(S_T0), 0x3A0000))
g("v_lshl_add_u32 v5, %s, 4, %s" % (v(VL), s(S_T0)))
for i in range(6):
    g("v_add_u32 v6, %d, v5" % (1024 * i))
    g("global_load_dwordx4 %s, v6, %s sc1" % (v(WQB + 4 * i, 4), sp(P_WS)))
g("s_waitcnt vmcnt(0)")
for i in range(1, 6):
    for k in range(4):
        g("v_add_f32 %s, %s, %s" % (v(WQB + k), v(WQB + k), v(WQB + 4 * i + k)))
g("v_cvt_pk_bf16_f32 v6, %s, %s" % (v(WQB), v(WQB + 1)))
g("v_cvt_pk_bf16_f32 v7, %s, %s" % (v(WQB + 2), v(WQB + 3)))
g("v_lshlrev_b32 v5, 3, %s" % v(VL))
g("v_add_u32 v5, %d, v5" % LB_U)
g("ds_write_b64 v5, v[6:7]")
g.label(lbq)
barrier()
g.c("q frags (B operand): col n<2 = batch ; slab g")
QFB = 48
for i in range(16):
    g("v_mov_b32 %s, 0" % v(QFB + i))
g("v_lshlrev_b32 v5, 8, v9")
g("v_lshl_add_u32 v5, v10, 4, v5")
g("v_add_u32 v5, %d, v5" % LB_U)
g("v_cmp_gt_u32 vcc, 2, v9")
g("s_and_saveexec_b64 %s, vcc" % sp(58))
for j in range(4):
    g("ds_read_b128 %s, v5 offset:%d" % (v(QFB + 4 * j, 4), 64 * j))
g("s_mov_b64 exec, %s" % sp(58))
g("s_waitcnt vmcnt(16) lgkmcnt(0)")
DQ = 12
for gq in range(2):
    for st in range(4):
        cc = "0" if st == 0 else v(DQ + 4 * gq, 4)
        g("v_mfma_f32_16x16x32_bf16 %s, %s, %s, %s" % (v(DQ + 4 * gq, 4), v(WUKR + (gq * 4 + st) * 4, 4), v(QFB + 4 * st, 4), cc))
g("s_nop 7")
g("s_nop 1")
g("s_lshl_b32 %s, %s, 8" % (s(S_T0), s(S_HALF)))
g("s_lshl_b32 %s, %s, 5" % (s(S_T2), s(S_WAVE)))
g("s_add_u32 %s, %s, %s" % (s(S_T0), s(S_T0), s(S_T2)))
g("s_lshl_b32 %s, %s, 1" % (s(S_T0), s(S_T0)))
g("s_lshl_b32 %s, %s, 10" % (s(S_T1), s(S_H)))
g("s_add_u32 %s, %s, %s" % (s(S_T0), s(S_T0), s(S_T1)))
g("v_lshlrev_b32 v5, 15, v9")
g("v_lshl_add_u32 v5, v10, 3, v5")
g("v_add_u32 v5, %s, v5" % s(S_T0))
for gq in range(2):
    g("v_cvt_pk_bf16_f32 %s, %s, %s" % (v(20 + 2 * gq), v(DQ + 4 * gq), v(DQ + 4 * gq + 1)))
    g("v_cvt_pk_bf16_f32 %s, %s, %s" % (v(21 + 2 * gq), v(DQ + 4 * gq + 2), v(DQ + 4 * gq + 3)))
g("v_cmp_gt_u32 vcc, 2, v9")
g("s_and_saveexec_b64 %s, vcc" % sp(58))
for gq in range(2):
    g("global_store_dwordx2 v5, %s, %s offset:%d sc1" % (v(20 + 2 * gq, 2), sp(P_WS), WS_QABS + 32 * gq))
g("s_mov_b64 exec, %s" % sp(58))
stamp(1)
g("s_lshl_b32 %s, %s, 14" % (s(S_T1), s(S_WAVE)))
for k in range(8):
    g("v_xor_b32 %s, %d, %s" % (v(24 + k), 2 * k, v(VL)))
    g("v_lshl_add_u32 %s, %s, 4, %s" % (v(24 + k), v(24 + k), s(S_T1)))
g("s_waitcnt vmcnt(0)")
for i in range(16):
    g("ds_write_b128 %s, %s offset:%d" % (v(24 + (i & 7)), v(CT + 4 * i, 4), i * 1024))
g("s_waitcnt lgkmcnt(0)")
g("s_barrier")
lb3 = g.newlabel("B1F")
lb3b = g.newlabel("B1G")
g("s_cmp_lg_u32 %s, 0" % s(S_WAVE))
g("s_cbranch_scc1 %s" % lb3)
g("s_lshl_b32 %s, s2, 2" % s(S_T0))
g("s_add_u32 %s, %s, 0x%x" % (s(S_T0), s(S_T0), WS_FB1))
g("v_lshl_add_u32 v5, %s, 8, %s" % (v(VL), s(S_T0)))
set_ws(5, 6, 8)
g("s_and_b32 %s, s2, 7" % s(S_T0))
g("s_lshl_b32 %s, %s, 8" % (s(S_T0), s(S_T0)))
g("s_add_u32 %s, %s, 0x%x" % (s(S_T0), s(S_T0), WS_FB1))
g("v_lshl_add_u32 v5, %s, 2, %s" % (v(VL), s(S_T0)))
poll_ws(5, 6, 64, S_T1)
g("s_branch %s" % lb3b)
g.label(lb3)
b_prefetch()
g.label(lb3b)
g("s_barrier")
stamp(2)
g.c("---- B2: load q_abs[b2] -> LDS U (swizzled)")
g("s_lshl_b32 %s, %s, 15" % (s(S_T0), s(S_B2)))
g("s_lshl_b32 %s, %s, 12" % (s(S_T1), s(S_WAVE)))
g("s_add_u32 %s, %s, %s" % (s(S_T0), s(S_T0), s(S_T1)))
g("v_lshl_add_u32 v5, %s, 4, %s" % (v(VL), s(S_T0)))
for i in range(4):
    g("global_load_dwordx4 %s, v5, %s offset:%d sc1" % (v(64 + 4 * i, 4), sp(P_WS), WS_QABS + 1024 * i))
g("s_and_b32 %s, %s, 1" % (s(S_T2), s(S_WAVE)))
g("s_lshl_b32 %s, %s, 3" % (s(S_T2), s(S_T2)))
for i in range(4):
    g("s_add_u32 %s, %s, %d" % (s(S_T3), s(S_T2), 2 * i))
    g("v_xor_b32 %s, %s, %s" % (v(80 + i), s(S_T3), v(VL)))
    g("v_lshlrev_b32 %s, 4, %s" % (v(80 + i), v(80 + i)))
    g("v_add_u32 %s, %s, %s" % (v(80 + i), s(S_T1), v(80 + i)))
g("s_waitcnt vmcnt(0)")
for i in range(4):
    g("v_add_u32 %s, %d, %s" % (v(80 + i), LB_U + 1024 * i, v(80 + i)))
for i in range(4):
    g("ds_write_b128 %s, %s" % (v(80 + i), v(64 + 4 * i, 4)))
lb3c = g.newlabel("B1H")
g("s_cmp_lg_u32 %s, 0" % s(S_WAVE))
g("s_cbranch_scc1 %s" % lb3c)
b_prefetch()
g.label(lb3c)
barrier()
stamp(6)
g.c("QK^T: S^T[hg] (keys x heads)")
g("v_and_b32 v5, 7, v9")
g("v_lshlrev_b32 v5, 1, v5")
g("v_xor_b32 v5, v5, v10")
g("v_lshlrev_b32 v5, 4, v5")
g("s_lshl_b32 %s, %s, 14" % (s(S_T0), s(S_WAVE)))
g("v_lshlrev_b32 v6, 10, v9")
g("v_add_u32 v7, %s, v6" % s(S_T0))
g("v_add_u32 v8, %d, v6" % LB_U)
SQ = 12
FR = 64
nb = 4
for bt in range(4):
    base = FR + (bt & 1) * 48
    for k in range(4):
        st = bt * 4 + k
        g("v_xor_b32 v3, %d, v5" % (st * 64))
        g("v_add_u32 v4, v3, v7")
        g("v_add_u32 v3, v3, v8")
        g("ds_read_b128 %s, v4" % v(base + k * 12, 4))
        g("ds_read_b128 %s, v3" % v(base + k * 12 + 4, 4))
        g("ds_read_b128 %s, v3 offset:16384" % v(base + k * 12 + 8, 4))
    if bt > 0:
        g("s_waitcnt lgkmcnt(12)")
        pb = FR + ((bt - 1) & 1) * 48
        for k in range(4):
            st = (bt - 1) * 4 + k
            for hg in range(2):
                cc = "0" if st == 0 else v(SQ + 4 * hg, 4)
                g("v_mfma_f32_16x16x32_bf16 %s, %s, %s, %s" % (v(SQ + 4 * hg, 4), v(pb + k * 12, 4), v(pb + k * 12 + 4 + 4 * hg, 4), cc))
g("s_waitcnt lgkmcnt(0)")
pb = FR + 48
for k in range(4):
    for hg in range(2):
        g("v_mfma_f32_16x16x32_bf16 %s, %s, %s, %s" % (v(SQ + 4 * hg, 4), v(pb + k * 12, 4), v(pb + k * 12 + 4 + 4 * hg, 4), v(SQ + 4 * hg, 4)))
g("s_nop 7")
g("s_nop 1")
stamp(7)
MW = 20
for hg in range(2):
    g("v_max3_f32 %s, %s, %s, %s" % (v(MW + hg), v(SQ + 4 * hg), v(SQ + 4 * hg + 1), v(SQ + 4 * hg + 2)))
    g("v_max_f32 %s, %s, %s" % (v(MW + hg), v(MW + hg), v(SQ + 4 * hg + 3)))
    xreduce_16_32("v_max_f32", MW + hg, 3)
g("s_barrier")
LB_WM = LB_U
LB_WL = LB_U + 1024
LB_P = LB_U + 2048
PSTR = 288
g("s_lshl_b32 %s, %s, 7" % (s(S_T0), s(S_WAVE)))
g("v_lshl_add_u32 v3, v9, 2, %s" % s(S_T0))
g("v_add_u32 v3, %d, v3" % LB_U)
g("s_mov_b64 exec, 0xffff")
g("ds_write_b32 v3, %s" % v(MW))
g("ds_write_b32 v3, %s offset:64" % v(MW + 1))
g("s_mov_b64 exec, -1")
barrier()
g("v_lshlrev_b32 v4, 2, v9")
g("v_add_u32 v4, %d, v4" % LB_U)
for hg in range(2):
    for w in range(8):
        g("ds_read_b32 %s, v4 offset:%d" % (v(64 + hg * 8 + w), w * 128 + hg * 64))
g("s_waitcnt lgkmcnt(0)")
MG = 22
for hg in range(2):
    b0 = 64 + hg * 8
    g("v_max3_f32 %s, %s, %s, %s" % (v(MG + hg), v(b0), v(b0 + 1), v(b0 + 2)))
    g("v_max3_f32 %s, %s, %s, %s" % (v(MG + hg), v(MG + hg), v(b0 + 3), v(b0 + 4)))
    g("v_max3_f32 %s, %s, %s, %s" % (v(MG + hg), v(MG + hg), v(b0 + 5), v(b0 + 6)))
    g("v_max_f32 %s, %s, %s" % (v(MG + hg), v(MG + hg), v(b0 + 7)))
    g("v_mul_f32 v3, %s, %s" % (s(S_CEXP), v(MG + hg)))
    for r in range(4):
        g("v_fma_f32 %s, %s, %s, -v3" % (v(SQ + 4 * hg + r), v(SQ + 4 * hg + r), s(S_CEXP)))
    for r in range(4):
        g("v_exp_f32 %s, %s" % (v(SQ + 4 * hg + r), v(SQ + 4 * hg + r)))
LW = 24
for hg in range(2):
    g("v_add_f32 %s, %s, %s" % (v(LW + hg), v(SQ + 4 * hg), v(SQ + 4 * hg + 1)))
    g("v_add_f32 v3, %s, %s" % (v(SQ + 4 * hg + 2), v(SQ + 4 * hg + 3)))
    g("v_add_f32 %s, %s, v3" % (v(LW + hg), v(LW + hg)))
    xreduce_16_32("v_add_f32", LW + hg, 3)
g("s_lshl_b32 %s, %s, 5" % (s(S_T0), s(S_WAVE)))
g("v_mul_u32_u24 v4, %d, v9" % PSTR)
g("v_lshl_add_u32 v4, v10, 3, v4")
g("v_add_u32 v4, %s, v4" % s(S_T0))
g("v_add_u32 v4, %d, v4" % LB_P)
for hg in range(2):
    g("v_cvt_pk_bf16_f32 %s, %s, %s" % (v(26 + 2 * hg), v(SQ + 4 * hg), v(SQ + 4 * hg + 1)))
    g("v_cvt_pk_bf16_f32 %s, %s, %s" % (v(27 + 2 * hg), v(SQ + 4 * hg + 2), v(SQ + 4 * hg + 3)))
    g("ds_write_b64 v4, %s offset:%d" % (v(26 + 2 * hg, 2), hg * 16 * PSTR))
g("s_lshl_b32 %s, %s, 7" % (s(S_T0), s(S_WAVE)))
g("v_lshl_add_u32 v3, v9, 2, %s" % s(S_T0))
g("v_add_u32 v3, %d, v3" % LB_WL)
g("s_mov_b64 exec, 0xffff")
g("ds_write_b32 v3, %s" % v(LW))
g("ds_write_b32 v3, %s offset:64" % v(LW + 1))
g("s_mov_b64 exec, -1")
barrier()
g.c("stats by wave 0: lanes 0..15 for hg 0,1")
lb4 = g.newlabel("B2S")
g("s_cmp_lg_u32 %s, 0" % s(S_WAVE))
g("s_cbranch_scc1 %s" % lb4)
g("v_lshlrev_b32 v4, 2, v9")
g("v_add_u32 v4, %d, v4" % LB_WL)
for hg in range(2):
    for w in range(8):
        g("ds_read_b32 %s, v4 offset:%d" % (v(64 + hg * 8 + w), w * 128 + hg * 64))
g("s_waitcnt lgkmcnt(0)")
for hg in range(2):
    b0 = 64 + hg * 8
    for st in (4, 2, 1):
        for i in range(st):
            g("v_add_f32 %s, %s, %s" % (v(b0 + i), v(b0 + i), v(b0 + i + st)))
g("s_lshl_b32 %s, s2, 8" % s(S_T0))
g("s_add_u32 %s, %s, 0x%x" % (s(S_T0), s(S_T0), WS_BSTAT))
g("v_lshl_add_u32 v4, v9, 3, %s" % s(S_T0))
g("s_mov_b64 exec, 0xffff")
for hg in range(2):
    g("v_mov_b32 v6, %s" % v(MG + hg))
    g("v_mov_b32 v7, %s" % v(64 + hg * 8))
    g("global_store_dwordx2 v4, v[6:7], %s offset:%d sc1" % (sp(P_WS), hg * 128))
    g("s_nop 1")
g("s_mov_b64 exec, -1")
g.label(lb4)
stamp(8)
g.c("PV: D[hg][cg] = C^T x P^T")
g("v_lshrrev_b32 v3, 2, v9")
g("v_lshl_add_u32 v3, v10, 2, v3")
g("v_and_b32 v4, 7, v3")
g("v_lshlrev_b32 v4, 1, v4")
g("v_lshlrev_b32 v3, 10, v3")
g("v_and_b32 v5, 3, v9")
g("v_lshrrev_b32 v6, 1, v5")
g("v_and_b32 v5, 1, v5")
g("v_lshl_add_u32 v3, v5, 3, v3")
g("s_lshl_b32 %s, %s, 3" % (s(S_T0), s(S_WAVE)))
g("v_add_u32 v6, %s, v6" % s(S_T0))
AD = 32
for cg in range(4):
    g("v_add_u32 v7, %d, v6" % (2 * cg))
    g("v_xor_b32 v7, v7, v4")
    g("v_lshl_add_u32 %s, v7, 4, v3" % v(AD + cg))
    g("v_add_u32 %s, 0x10000, %s" % (v(AD + 4 + cg), v(AD + cg)))
g("v_mul_u32_u24 v7, %d, v9" % PSTR)
g("v_lshl_add_u32 v7, v10, 3, v7")
g("v_add_u32 v7, %d, v7" % LB_P)
PF = 40
g("v_add_u32 v8, %d, v7" % (16 * PSTR))
for hg in range(2):
    for ks in range(4):
        g("ds_read2_b64 %s, %s offset0:%d offset1:%d" % (v(PF + (hg * 4 + ks) * 4, 4), "v7" if hg == 0 else "v8", ks * 8, ks * 8 + 4))
CF = 80
for cg in range(4):
    for ks in range(4):
        a = AD + cg + (4 if ks >= 2 else 0)
        off = (ks & 1) * 32768
        g("ds_read_b64_tr_b16 %s, %s offset:%d" % (v(CF + (cg * 4 + ks) * 4, 2), v(a), off))
        g("ds_read_b64_tr_b16 %s, %s offset:%d" % (v(CF + (cg * 4 + ks) * 4 + 2, 2), v(a), off + 16384))
g("s_waitcnt lgkmcnt(0)")
DA = 144
for ks in range(4):
    for hg in range(2):
        for cg in range(4):
            d = DA + (hg * 4 + cg) * 4
            cc = "0" if ks == 0 else v(d, 4)
            g("v_mfma_f32_16x16x32_bf16 %s, %s, %s, %s" % (v(d, 4), v(CF + (cg * 4 + ks) * 4, 4), v(PF + (hg * 4 + ks) * 4, 4), cc))
g("s_nop 7")
g("s_nop 1")
stamp(9)
g("s_lshl_b32 %s, s2, 15" % s(S_T0))
g("s_lshl_b32 %s, %s, 7" % (s(S_T1), s(S_WAVE)))
g("s_add_u32 %s, %s, %s" % (s(S_T0), s(S_T0), s(S_T1)))
g("s_add_u32 %s, %s, 0x%x" % (s(S_T0), s(S_T0), WS_BPART))
g("v_lshlrev_b32 v3, 10, v9")
g("v_lshl_add_u32 v3, v10, 5, v3")
g("v_add_u32 v3, %s, v3" % s(S_T0))
for hg in range(2):
    for cg in range(4):
        d = DA + (hg * 4 + cg) * 4
        o = 64 + hg * 8 + cg * 2
        g("v_cvt_pk_bf16_f32 %s, %s, %s" % (v(o), v(d), v(d + 1)))
        g("v_cvt_pk_bf16_f32 %s, %s, %s" % (v(o + 1), v(d + 2), v(d + 3)))
g("v_add_u32 v4, 16384, v3")
g("global_store_dwordx4 v3, %s, %s sc1" % (v(64, 4), sp(P_WS)))
g("global_store_dwordx4 v3, %s, %s offset:16 sc1" % (v(68, 4), sp(P_WS)))
g("global_store_dwordx4 v4, %s, %s sc1" % (v(72, 4), sp(P_WS)))
g("global_store_dwordx4 v4, %s, %s offset:16 sc1" % (v(76, 4), sp(P_WS)))
g("s_waitcnt vmcnt(0)")
g("s_barrier")
lb5 = g.newlabel("B2F")
g("s_cmp_lg_u32 %s, 0" % s(S_WAVE))
g("s_cbranch_scc1 %s" % lb5)
g("s_lshl_b32 %s, s2, 2" % s(S_T0))
g("s_add_u32 %s, %s, 0x%x" % (s(S_T0), s(S_T0), WS_FB2))
g("v_lshl_add_u32 v5, %s, 8, %s" % (v(VL), s(S_T0)))
set_ws(5, 6, 8)
g.label(lb5)
stamp(3)
lb6 = g.newlabel("B3P")
g("s_cmp_lg_u32 %s, 0" % s(S_WAVE))
g("s_cbranch_scc1 %s" % lb6)
g("s_and_b32 %s, s2, 7" % s(S_T0))
g("s_lshl_b32 %s, %s, 8" % (s(S_T0), s(S_T0)))
g("s_add_u32 %s, %s, 0x%x" % (s(S_T0), s(S_T0), WS_FB2))
g("v_lshl_add_u32 v5, %s, 2, %s" % (v(VL), s(S_T0)))
poll_ws(5, 6, 64, S_T1)
g.label(lb6)
g.c("---- B3: write prefetched tiles to LDS")
g("s_lshl_b32 %s, %s, 13" % (s(S_T1), s(S_WAVE)))
g("v_lshl_add_u32 v3, %s, 4, %s" % (v(VL), s(S_T1)))
for i in range(8):
    g("ds_write_b128 v3, %s offset:%d" % (v(176 + 4 * i, 4), i * 1024))
g("s_mul_i32 %s, %s, %d" % (s(S_T1), s(S_WAVE), 576 * 16))
g("s_add_u32 %s, %s, %d" % (s(S_T1), s(S_T1), LB_WO))
g("v_lshl_add_u32 v3, %s, 4, %s" % (v(VL), s(S_T1)))
for i in range(9):
    g("ds_write_b128 v3, %s offset:%d" % (v(208 + 4 * i, 4), i * 1024))
g("s_barrier")
stamp(4)
g.c("combine partials: wave w: b = w>>2 ; splits 8(w&3)+i")
g("s_lshr_b32 %s, %s, 2" % (s(S_T0), s(S_WAVE)))
g("s_and_b32 %s, %s, 3" % (s(S_T1), s(S_WAVE)))
g("s_lshl_b32 %s, %s, 3" % (s(S_T1), s(S_T1)))
g("s_lshl_b32 %s, %s, 5" % (s(S_T2), s(S_T0)))
g("s_add_u32 %s, %s, %s" % (s(S_T2), s(S_T2), s(S_T1)))
g("s_lshl_b32 %s, %s, 15" % (s(S_T2), s(S_T2)))
g("s_lshl_b32 %s, %s, 10" % (s(S_T3), s(S_H)))
g("s_add_u32 %s, %s, %s" % (s(S_T2), s(S_T2), s(S_T3)))
g("s_add_u32 %s, %s, 0x%x" % (s(S_T2), s(S_T2), WS_BPART))
g("v_lshl_add_u32 v3, %s, 4, %s" % (v(VL), s(S_T2)))
for i in range(8):
    g("v_add_u32 v4, 0x%x, v3" % (i * 32768))
    g("global_load_dwordx4 %s, v4, %s sc1" % (v(64 + 4 * i, 4), sp(P_WS)))
g("s_lshl_b32 %s, %s, 13" % (s(S_T2), s(S_T0)))
g("s_lshl_b32 %s, %s, 3" % (s(S_T3), s(S_H)))
g("s_add_u32 %s, %s, %s" % (s(S_T2), s(S_T2), s(S_T3)))
g("s_add_u32 %s, %s, 0x%x" % (s(S_T2), s(S_T2), WS_BSTAT))
g("v_and_b32 v4, 31, %s" % v(VL))
g("v_lshl_add_u32 v4, v4, 8, %s" % s(S_T2))
g("global_load_dwordx2 v[6:7], v4, %s sc1" % sp(P_WS))
g("s_waitcnt vmcnt(0)")
g("v_mov_b32 v5, v6")
allreduce16("v_max_f32", 5)
g("v_mov_b32 v3, v5")
g("s_nop 1")
g("v_permlane16_swap_b32 v5, v3")
g("s_nop 1")
g("v_max_f32 v5, v5, v3")
g("v_sub_f32 v6, v6, v5")
g("v_mul_f32 v6, %s, v6" % s(S_CEXP))
g("v_exp_f32 v6, v6")
g("s_nop 0")
g("v_mul_f32 v7, v6, v7")
allreduce16("v_add_f32", 7)
g("v_mov_b32 v3, v7")
g("s_nop 1")
g("v_permlane16_swap_b32 v7, v3")
g("s_nop 1")
g("v_add_f32 v7, v7, v3")
g("v_rcp_f32 v7, v7")
g("s_nop 0")
g("v_mul_f32 v6, v6, v7")
g("s_nop 0")
for i in range(8):
    g("s_add_u32 %s, %s, %d" % (s(S_T3), s(S_T1), i))
    g("v_readlane_b32 %s, v6, %s" % (s(60 + i), s(S_T3)))
CA = 12
for e in range(8):
    g("v_mov_b32 %s, 0" % v(CA + e))
g("s_nop 1")
for i in range(8):
    for e in range(4):
        g("v_lshlrev_b32 v3, 16, %s" % v(64 + 4 * i + e))
        g("v_and_b32 v4, 0xffff0000, %s" % v(64 + 4 * i + e))
        g("v_fmac_f32 %s, %s, v3" % (v(CA + 2 * e), s(60 + i)))
        g("v_fmac_f32 %s, %s, v4" % (v(CA + 2 * e + 1), s(60 + i)))
g("v_lshrrev_b32 v3, 3, %s" % v(VL))
g("v_bfe_u32 v4, %s, 1, 2" % v(VL))
g("v_and_b32 v5, 1, %s" % v(VL))
g("v_lshlrev_b32 v3, 8, v3")
g("v_lshl_add_u32 v3, v5, 7, v3")
g("v_lshl_add_u32 v3, v4, 4, v3")
g("s_lshl_b32 %s, %s, 11" % (s(S_T2), s(S_WAVE)))
g("v_add_u32 v3, %s, v3" % s(S_T2))
g("v_add_u32 v3, %d, v3" % LB_CRED)
g("ds_write_b128 v3, %s" % v(CA, 4))
g("ds_write_b128 v3, %s offset:64" % v(CA + 4, 4))
barrier()
g("v_lshrrev_b32 v3, 8, v0")
g("v_and_b32 v4, 255, v0")
g("v_lshlrev_b32 v5, 13, v3")
g("v_lshl_add_u32 v5, v4, 3, v5")
g("v_add_u32 v5, %d, v5" % LB_CRED)
for i in range(4):
    g("ds_read_b64 %s, v5 offset:%d" % (v(CA + 2 * i, 2), 2048 * i))
g("s_waitcnt lgkmcnt(0)")
for k in range(2):
    g("v_add_f32 %s, %s, %s" % (v(CA + k), v(CA + k), v(CA + 2 + k)))
    g("v_add_f32 %s, %s, %s" % (v(CA + 4 + k), v(CA + 4 + k), v(CA + 6 + k)))
    g("v_add_f32 %s, %s, %s" % (v(CA + k), v(CA + k), v(CA + 4 + k)))
g("v_cvt_pk_bf16_f32 v6, %s, %s" % (v(CA), v(CA + 1)))
g("v_lshlrev_b32 v5, 2, v0")
g("v_add_u32 v5, %d, v5" % LB_CBF)
g("ds_write_b32 v5, v6")
g("s_waitcnt vmcnt(0)")
barrier()
g.c("MFMA1: ctx[b][64d] partial over c in [64w, 64w+64)")
AF = 12
for i in range(8):
    g("v_mov_b32 %s, 0" % v(AF + i))
g("s_lshl_b32 %s, %s, 7" % (s(S_T0), s(S_WAVE)))
g("v_lshlrev_b32 v3, 10, v9")
g("v_lshl_add_u32 v3, v10, 3, v3")
g("v_add_u32 v3, %s, v3" % s(S_T0))
g("v_add_u32 v3, %d, v3" % LB_CBF)
g("v_cmp_gt_u32 vcc, 2, v9")
g("s_and_saveexec_b64 %s, vcc" % sp(58))
for ks in range(2):
    g("ds_read2_b64 %s, v3 offset0:%d offset1:%d" % (v(AF + 4 * ks, 4), ks * 8, ks * 8 + 4))
g("s_mov_b64 exec, %s" % sp(58))
g("v_lshrrev_b32 v3, 2, v9")
g("v_lshl_add_u32 v3, v10, 2, v3")
g("v_lshrrev_b32 v4, 1, v3")
g("v_and_b32 v4, 3, v4")
g("v_lshlrev_b32 v4, 1, v4")
g("v_lshlrev_b32 v3, 7, v3")
g("v_and_b32 v5, 1, v9")
g("v_lshl_add_u32 v3, v5, 3, v3")
g("s_lshl_b32 %s, %s, 13" % (s(S_T0), s(S_WAVE)))
g("v_add_u32 v3, %s, v3" % s(S_T0))
g("v_bfe_u32 v5, v9, 1, 1")
BFR = 64
for cg in range(4):
    g("v_add_u32 v6, %d, v5" % (2 * cg))
    g("v_xor_b32 v6, v6, v4")
    g("v_lshl_add_u32 v6, v6, 4, v3")
    for ks in range(2):
        g("ds_read_b64_tr_b16 %s, v6 offset:%d" % (v(BFR + (cg * 2 + ks) * 4, 2), ks * 4096))
        g("ds_read_b64_tr_b16 %s, v6 offset:%d" % (v(BFR + (cg * 2 + ks) * 4 + 2, 2), ks * 4096 + 2048))
g("s_waitcnt lgkmcnt(0)")
DX = 28
for ks in range(2):
    for cg in range(4):
        cc = "0" if ks == 0 else v(DX + 4 * cg, 4)
        g("v_mfma_f32_16x16x32_bf16 %s, %s, %s, %s" % (v(DX + 4 * cg, 4), v(AF + 4 * ks, 4), v(BFR + (cg * 2 + ks) * 4, 4), cc))
g("s_nop 7")
g("s_nop 1")
g("s_lshl_b32 %s, %s, 9" % (s(S_T0), s(S_WAVE)))
g("v_lshl_add_u32 v3, v9, 2, %s" % s(S_T0))
g("v_add_u32 v3, %d, v3" % LB_XRED)
g("s_mov_b64 exec, 0xffff")
for cg in range(4):
    g("ds_write_b32 v3, %s offset:%d" % (v(DX + 4 * cg), 64 * cg))
    g("ds_write_b32 v3, %s offset:%d" % (v(DX + 4 * cg + 1), 256 + 64 * cg))
g("s_mov_b64 exec, -1")
barrier()
lb7 = g.newlabel("B3X")
g("s_cmp_ge_u32 %s, 2" % s(S_WAVE))
g("s_cbranch_scc1 %s" % lb7)
g("v_lshlrev_b32 v3, 2, v0")
g("v_add_u32 v3, %d, v3" % LB_XRED)
for w in range(8):
    g("ds_read_b32 %s, v3 offset:%d" % (v(64 + w), 512 * w))
g("s_waitcnt lgkmcnt(0)")
for st in (4, 2, 1):
    for i in range(st):
        g("v_add_f32 %s, %s, %s" % (v(64 + i), v(64 + i), v(64 + i + st)))
g("v_cvt_pk_bf16_f32 v6, v64, v64")
g("v_lshlrev_b32 v3, 1, v0")
g("v_add_u32 v3, %d, v3" % LB_XBF)
g("ds_write_b16 v3, v6")
g.label(lb7)
barrier()
g.c("MFMA2: out partial = ctx[b][64] x w_o tile")
for i in range(8):
    g("v_mov_b32 %s, 0" % v(AF + i))
g("v_lshlrev_b32 v3, 7, v9")
g("v_lshl_add_u32 v3, v10, 3, v3")
g("v_add_u32 v3, %d, v3" % LB_XBF)
g("v_cmp_gt_u32 vcc, 2, v9")
g("s_and_saveexec_b64 %s, vcc" % sp(58))
for ks in range(2):
    g("ds_read2_b64 %s, v3 offset0:%d offset1:%d" % (v(AF + 4 * ks, 4), ks * 8, ks * 8 + 4))
g("s_mov_b64 exec, %s" % sp(58))
g("v_lshrrev_b32 v3, 2, v9")
g("v_lshl_add_u32 v3, v10, 2, v3")
g("v_lshrrev_b32 v4, 1, v3")
g("v_and_b32 v4, 3, v4")
g("v_lshlrev_b32 v4, 1, v4")
g("v_mul_u32_u24 v3, 1152, v3")
g("v_and_b32 v5, 1, v9")
g("v_lshl_add_u32 v3, v5, 3, v3")
g("v_add_u32 v3, %d, v3" % LB_WO)
g("v_bfe_u32 v5, v9, 1, 1")
g("s_lshl_b32 %s, %s, 1" % (s(S_T0), s(S_WAVE)))
g("v_add_u32 v5, %s, v5" % s(S_T0))
g("s_mul_i32 %s, s2, 2304" % s(S_T1))
g("s_add_u32 %s, %s, 0x%x" % (s(S_T1), s(S_T1), WS_YB))
g("s_lshl_b32 %s, %s, 6" % (s(S_T2), s(S_WAVE)))
g("s_add_u32 %s, %s, %s" % (s(S_T1), s(S_T1), s(S_T2)))
g("v_lshl_add_u32 v7, v9, 2, %s" % s(S_T1))
for i in range(5):
    lskip = None
    if i == 4:
        lskip = g.newlabel("B3K")
        g("s_cmp_ge_u32 %s, 4" % s(S_WAVE))
        g("s_cbranch_scc1 %s" % lskip)
    g("v_add_u32 v6, %d, v5" % (16 * i))
    g("v_xor_b32 v6, v6, v4")
    g("v_lshl_add_u32 v6, v6, 4, v3")
    for ks in range(2):
        g("ds_read_b64_tr_b16 %s, v6 offset:%d" % (v(BFR + ks * 4, 2), ks * 32 * 1152))
        g("ds_read_b64_tr_b16 %s, v6 offset:%d" % (v(BFR + ks * 4 + 2, 2), ks * 32 * 1152 + 16 * 1152))
    g("s_waitcnt lgkmcnt(0)")
    g("v_mfma_f32_16x16x32_bf16 %s, %s, %s, 0" % (v(DX, 4), v(AF, 4), v(BFR, 4)))
    g("v_mfma_f32_16x16x32_bf16 %s, %s, %s, %s" % (v(DX, 4), v(AF + 4, 4), v(BFR + 4, 4), v(DX, 4)))
    g("s_nop 7")
    g("s_nop 1")
    g("s_mov_b64 exec, 0xffff")
    g("v_add_u32 v8, %d, v7" % (512 * i))
    g("global_store_dword v8, %s, %s sc1" % (v(DX), sp(P_WS)))
    g("v_add_u32 v8, %d, v8" % (64 * 2304))
    g("global_store_dword v8, %s, %s sc1" % (v(DX + 1), sp(P_WS)))
    g("s_mov_b64 exec, -1")
    g("s_nop 1")
    if lskip:
        g.label(lskip)
g("s_waitcnt vmcnt(0)")
g("s_barrier")
g("s_cmp_lg_u32 %s, 0" % s(S_WAVE))
g("s_cbranch_scc1 L_B_END")
g("s_lshl_b32 %s, s2, 2" % s(S_T0))
g("s_add_u32 %s, %s, 0x%x" % (s(S_T0), s(S_T0), WS_FB3))
g("v_lshl_add_u32 v5, %s, 8, %s" % (v(VL), s(S_T0)))
set_ws(5, 6, 12)
g.label("L_B_END")
stamp(5)
dump_stamps(10)
g("s_waitcnt vmcnt(0)")
g.label("L_END")
g("s_endpgm")
g.L.append('.section .rodata,"a"')
g.L.append(".p2align 6")
g.L.append(".amdhsa_kernel %s" % NAME)
g.L.append("  .amdhsa_next_free_vgpr 256")
g.L.append("  .amdhsa_next_free_sgpr 102")
g.L.append("  .amdhsa_accum_offset 256")
g.L.append("  .amdhsa_group_segment_fixed_size 0")
g.L.append("  .amdhsa_kernarg_size 120")
g.L.append("  .amdhsa_user_sgpr_count 2")
g.L.append("  .amdhsa_user_sgpr_kernarg_segment_ptr 1")
g.L.append("  .amdhsa_system_sgpr_workgroup_id_x 1")
g.L.append(".end_amdhsa_kernel")

out = sys.argv[1] if len(sys.argv) > 1 else "gated_mix__gqa_block_cached__compressed_kv_cla__decode.s"
open(out, "w").write("\n".join(g.L) + "\n")
print("wrote", out, len(g.L), "lines")
```
